```python
import torch

def _softmax(x, axis=-1):
    return torch.softmax(x, dim=axis)
def _gelu(x):
    return torch.nn.functional.gelu(x, approximate="tanh")
def _silu(x):
    return torch.nn.functional.silu(x)
def _sigmoid(x):
    return torch.sigmoid(x)
def _layernorm(x, axis=-1, eps=1e-5):
    m = x.mean(dim=axis, keepdim=True)
    v = x.var(dim=axis, keepdim=True, unbiased=False)
    return (x - m) / torch.sqrt(v + eps)
def _scatter_add(tgt, idx, src, axis=0):
    return tgt.clone().index_add_(axis, idx, src)
def _segment_sum(src, seg, n):
    out = torch.zeros((n,) + src.shape[1:], dtype=src.dtype)
    return out.index_add_(0, seg, src)
def _pad(x, pw):
    flat = tuple(v for pair in reversed(pw) for v in pair)
    return torch.nn.functional.pad(x, flat)

kernel_name = 'concat_heads__gqa_block_cached__mha_block_cached__near_ridge'

def setup_inputs():

    _w = (lambda a: (lambda t: t.to(torch.bfloat16) if t.is_floating_point() else t)(torch.as_tensor(a)))
    def _A_setup():
        B, Sq, D = 16, 32, 1024
        Hq, Hkv, Sk, Dh = 32, 4, 512, 128
        assert Hq % Hkv == 0, (Hq, Hkv)
        return {
            "x": _w((lambda *s: torch.randn(*s, dtype=torch.bfloat16) * 0.8)(B, Sq, D)),
            "k_cache": _w((lambda *s: torch.randn(*s, dtype=torch.bfloat16) * 0.8)(B, Hkv, Sk, Dh)),
            "v_cache": _w((lambda *s: torch.randn(*s, dtype=torch.bfloat16) * 0.05)(B, Hkv, Sk, Dh)),
            "wq": _w((lambda *s: torch.randn(*s, dtype=torch.bfloat16) * 0.8)(D, Hq * Dh) * (D ** -0.5)),
            "wo": _w((lambda *s: torch.randn(*s, dtype=torch.bfloat16) * 0.05)(Hq * Dh, D) * ((Hq * Dh) ** -0.5)),
        }
    _A_in = _A_setup()

    def _B_setup():
        B, Sq, D = 16, 32, 1024
        H, Sk, Dh = 32, 512, 128
        return {
            "x": _w((lambda *s: torch.randn(*s, dtype=torch.bfloat16) * 0.8)(B, Sq, D)),
            "k_cache": _w((lambda *s: torch.randn(*s, dtype=torch.bfloat16) * 0.8)(B, H, Sk, Dh)),
            "v_cache": _w((lambda *s: torch.randn(*s, dtype=torch.bfloat16) * 0.05)(B, H, Sk, Dh)),
            "wq": _w((lambda *s: torch.randn(*s, dtype=torch.bfloat16) * 0.8)(D, H * Dh) * (D ** -0.5)),
            "wo": _w((lambda *s: torch.randn(*s, dtype=torch.bfloat16) * 0.05)(H * Dh, D) * ((H * Dh) ** -0.5)),
        }
    _B_in = _B_setup()

    return {
        "A_x": _A_in["x"],
        "A_k_cache": _A_in["k_cache"],
        "A_v_cache": _A_in["v_cache"],
        "A_wq": _A_in["wq"],
        "A_wo": _A_in["wo"],
        "B_x": _B_in["x"],
        "B_k_cache": _B_in["k_cache"],
        "B_v_cache": _B_in["v_cache"],
        "B_wq": _B_in["wq"],
        "B_wo": _B_in["wo"],
    }

def reference(A_x, A_k_cache, A_v_cache, A_wq, A_wo, B_x, B_k_cache, B_v_cache, B_wq, B_wo):
    def _A_ref(x, k_cache, v_cache, wq, wo):
        B, Sq, D = x.shape
        Hq, Dh = 32, 128
        Hkv = k_cache.shape[1]
        rep = Hq // Hkv
        q = (lambda x, *d: x.permute(*d))((x @ wq).reshape(B, Sq, Hq, Dh), 0, 2, 1, 3)
        k = (lambda x, n, axis: torch.repeat_interleave(x, n, dim=axis))(k_cache, rep, axis=1)
        v = (lambda x, n, axis: torch.repeat_interleave(x, n, dim=axis))(v_cache, rep, axis=1)
        scores = torch.einsum("bhqd,bhkd->bhqk", q, k) * (Dh ** -0.5)
        p = _softmax(scores, axis=-1)
        o = torch.einsum("bhqk,bhkd->bhqd", p, v)
        return (lambda x, *d: x.permute(*d))(o, 0, 2, 1, 3).reshape(B, Sq, Hq * Dh) @ wo

    def _B_ref(x, k_cache, v_cache, wq, wo):
        B, Sq, D = x.shape
        H, Dh = 32, 128
        q = (lambda x, *d: x.permute(*d))((x @ wq).reshape(B, Sq, H, Dh), 0, 2, 1, 3)
        scores = torch.einsum("bhqd,bhkd->bhqk", q, k_cache) * (Dh ** -0.5)
        p = _softmax(scores, axis=-1)
        o = torch.einsum("bhqk,bhkd->bhqd", p, v_cache)
        return (lambda x, *d: x.permute(*d))(o, 0, 2, 1, 3).reshape(B, Sq, H * Dh) @ wo

    a = _A_ref(A_x, A_k_cache, A_v_cache, A_wq, A_wo)
    b = _B_ref(B_x, B_k_cache, B_v_cache, B_wq, B_wo)
    return torch.concatenate([a, b], axis=-1)
```

```python
class Em:
    def __init__(self):
        self.L = []
        self.vm_issued = 0
        self.lg_issued = 0

    def __call__(self, s):
        self.L.append("  " + s)

    def label(self, s):
        self.L.append(s + ":")

    def comment(self, s):
        self.L.append("  ; " + s)

    def raw(self, s):
        self.L.append(s)

    def vmem(self, s):
        self(s)
        self.vm_issued += 1
        return self.vm_issued

    def wait_vm(self, tok):
        n = self.vm_issued - tok
        assert n >= 0
        if n > 63:
            n = 63
        self(f"s_waitcnt vmcnt({n})")

    def lds(self, s):
        self(s)
        self.lg_issued += 1
        return self.lg_issued

    def wait_lds(self, tok):
        n = self.lg_issued - tok
        assert n >= 0
        if n > 15:
            n = 15
        self(f"s_waitcnt lgkmcnt({n})")

    def text(self):
        return "\n".join(self.L) + "\n"


def vr(base, n=1):
    return f"v{base}" if n == 1 else f"v[{base}:{base+n-1}]"


def sr(base, n=1):
    return f"s{base}" if n == 1 else f"s[{base}:{base+n-1}]"


def kernel_desc(name, vgpr=256, sgpr=102, accum=256):
    return f""".amdhsa_kernel {name}
  .amdhsa_next_free_vgpr {vgpr}
  .amdhsa_next_free_sgpr {sgpr}
  .amdhsa_accum_offset {accum}
  .amdhsa_group_segment_fixed_size 0
  .amdhsa_kernarg_size 104
  .amdhsa_user_sgpr_count 2
  .amdhsa_user_sgpr_kernarg_segment_ptr 1
  .amdhsa_system_sgpr_workgroup_id_x 1
.end_amdhsa_kernel
"""
```

```python
import sys, math, struct
sys.path.insert(0, "tools")
from asmlib import Em, vr, sr, kernel_desc

OUT = sys.argv[1] if len(sys.argv) > 1 else "concat_heads__gqa_block_cached__mha_block_cached__near_ridge.s"
OPT = dict(a.split("=") for a in sys.argv[2:])
NT_KVB = OPT.get("nt_kvb", " nt")
NT_KVA = OPT.get("nt_kva", " nt")
NT_W = OPT.get("nt_w", " nt")
NT_X = OPT.get("nt_x", " nt")
NT_WO = OPT.get("nt_wo", " nt")
NT_O = OPT.get("nt_o", "")
for k in ("NT_KVB", "NT_KVA", "NT_W", "NT_X", "NT_WO", "NT_O"):
    v = globals()[k]
    globals()[k] = "" if v.strip() in ("", "0") else " " + v.strip().replace("+", " ")

def f32bits(x):
    return struct.unpack("<I", struct.pack("<f", x))[0]

CSCALE = (128 ** -0.5) * math.log2(math.e)

HEADER = """; Kernarg layout (104 bytes, ptrs only, base s[0:1]):
; @launch kernel=attn_kernel grid=(256,1,1) block=(512,1,1) lds=163840
; @launch kernel=oproj_kernel grid=(256,1,1) block=(512,1,1) lds=163840
.amdgcn_target "amdgcn-amd-amdhsa--gfx950"
.text
"""

S_WAVE, S_W, S_H, S_BP = 3, 4, 5, 6
SRD_X, SRD_WQ, SRD_K, SRD_V, SRD_O = 44, 48, 52, 56, 60
S_WQOFF, S_XOFF, S_W2048, S_KVOFF, S_RING, S_C, S_T0, S_T1, S_T2 = 64, 65, 66, 67, 68, 69, 70, 71, 72
V_LANE = 0
V_WQD = 2
V_XD = 4
V_KVD = 6
V_KR = 10
V_VR = 18
V_T = 26
V_Q = 32
V_F = 64
V_S = 128
V_WQR = 32
V_XR = 38

WQ_SLOTS = 4
X_SLOTS = 2


def ring_params(g):
    if g == 1:
        return 3, 24576, 0
    return 2, 16384, 98304


def stage_slots(g):
    H = [w * 24576 + 16384 for w in range(4)]
    R = [98304 + 8192 * i for i in range(8)]
    if g == 0:
        return R[0:4], R[4:6]
    return H, R[6:8]


def emit_k1_prologue(e):
    e.raw(".globl attn_kernel")
    e.raw(".p2align 8")
    e.raw(".type attn_kernel,@function")
    e.label("attn_kernel")
    e("s_cmp_ge_u32 s2, 256")
    e("s_cbranch_scc1 L_k1_end")
    e("s_load_dwordx16 s[16:31], s[0:1], 0")
    e("s_load_dwordx8 s[32:39], s[0:1], 64")
    e("s_load_dwordx2 s[40:41], s[0:1], 96")
    e("v_lshrrev_b32 v1, 6, v0")
    e("v_and_b32 v0, 63, v0")
    e("s_nop 0")
    e(f"v_readfirstlane_b32 s{S_WAVE}, v1")
    e("s_and_b32 s7, s2, 7")
    e("s_lshr_b32 s8, s2, 3")
    e("s_and_b32 s9, s8, 3")
    e(f"s_lshr_b32 s{S_BP}, s8, 2")
    e("s_lshl_b32 s7, s7, 2")
    e(f"s_add_u32 s{S_H}, s7, s9")
    e(f"s_and_b32 s{S_W}, s{S_WAVE}, 3")
    e(f"s_lshl_b32 s{S_W2048}, s{S_W}, 11")
    e(f"s_mov_b32 s{S_C}, {f32bits(CSCALE):#x}")
    T0, T1, T2, T3, T4, T5 = range(V_T, V_T + 6)
    e(f"v_lshrrev_b32 v{T0}, 4, v0")
    e(f"v_and_b32 v{T1}, 15, v0")
    e(f"v_lshlrev_b32 v{T2}, 2, v{T0}")
    e(f"v_xor_b32 v{T1}, v{T1}, v{T2}")
    e(f"v_lshlrev_b32 v{T1}, 4, v{T1}")
    e(f"v_lshlrev_b32 v{T2}, 8, v{T0}")
    e(f"v_add_u32 v{V_KVD}, v{T1}, v{T2}")
    for n in range(1, 4):
        e(f"v_xor_b32 v{V_KVD+n}, {16*n}, v{V_KVD}")
    e(f"v_lshlrev_b32 v{T2}, 13, v{T0}")
    e(f"v_add_u32 v{T2}, v{T1}, v{T2}")
    e(f"s_lshl_b32 s{S_T0}, s{S_W}, 1")
    e(f"s_and_b32 s{S_T0}, s{S_T0}, 3")
    e(f"s_lshl_b32 s{S_T0}, s{S_T0}, 4")
    e(f"v_xor_b32 v{V_WQD}, s{S_T0}, v{T2}")
    e(f"v_xor_b32 v{V_WQD+1}, 16, v{V_WQD}")
    e(f"v_add_u32 v{V_WQD+1}, {32768-1024}, v{V_WQD+1}")
    e(f"v_lshrrev_b32 v{T2}, 3, v0")
    e(f"v_lshlrev_b32 v{T2}, 11, v{T2}")
    e(f"v_and_b32 v{T3}, 7, v0")
    e(f"v_xor_b32 v{T3}, v{T3}, v{T0}")
    e(f"v_lshlrev_b32 v{T3}, 4, v{T3}")
    e(f"v_add_u32 v{V_XD}, v{T2}, v{T3}")
    e(f"v_xor_b32 v{V_XD+1}, 64, v{V_XD}")
    e(f"v_add_u32 v{V_XD+1}, {8*2048-1024}, v{V_XD+1}")
    e(f"v_and_b32 v{T2}, 31, v0")
    e(f"v_lshrrev_b32 v{T3}, 5, v0")
    e(f"v_lshrrev_b32 v{T4}, 1, v{T2}")
    e(f"v_and_b32 v{T4}, 7, v{T4}")
    e(f"v_xor_b32 v{T4}, v{T4}, v{T3}")
    e(f"v_lshlrev_b32 v{T4}, 4, v{T4}")
    e(f"v_lshlrev_b32 v{T5}, 7, v{T2}")
    e(f"v_add_u32 v{V_XR}, v{T4}, v{T5}")
    for s in range(1, 4):
        e(f"v_xor_b32 v{V_XR+s}, {32*s}, v{V_XR}")
    for p in (1, 2):
        for s in range(4):
            e(f"v_add_u32 v{V_XR+4*p+s}, {65536*p}, v{V_XR+s}")
    e(f"v_and_b32 v{T4}, 3, v{T2}")
    e(f"v_lshlrev_b32 v{T4}, 2, v{T4}")
    e(f"v_lshrrev_b32 v{T5}, 2, v{T2}")
    e(f"v_and_b32 v{T5}, 3, v{T5}")
    e(f"v_or_b32 v{T4}, v{T4}, v{T5}")
    e(f"v_xor_b32 v{T4}, v{T4}, v{T3}")
    e(f"v_lshlrev_b32 v{T4}, 4, v{T4}")
    e(f"v_lshlrev_b32 v{T5}, 8, v{T2}")
    e(f"v_add_u32 v{V_KR}, v{T4}, v{T5}")
    for s in range(1, 8):
        e(f"v_xor_b32 v{V_KR+s}, {32*s}, v{V_KR}")
    e(f"v_and_b32 v{T1}, 1, v{T0}")
    e(f"v_lshrrev_b32 v{T2}, 2, v0")
    e(f"v_and_b32 v{T2}, 3, v{T2}")
    e(f"v_and_b32 v{T4}, 1, v0")
    e(f"v_lshrrev_b32 v{T5}, 1, v0")
    e(f"v_and_b32 v{T5}, 1, v{T5}")
    e(f"v_lshlrev_b32 v{T5}, 3, v{T5}")
    e(f"v_lshlrev_b32 v1, 1, v{T4}")
    e(f"v_or_b32 v1, v1, v{T1}")
    e(f"v_xor_b32 v1, v1, v{T3}")
    e(f"v_lshlrev_b32 v1, 4, v1")
    e(f"v_add_u32 v1, v1, v{T5}")
    e(f"v_lshlrev_b32 v{V_VR+1}, 6, v{T2}")
    e(f"v_add_u32 v1, v1, v{V_VR+1}")
    e(f"v_lshlrev_b32 v{V_VR+1}, 2, v{T3}")
    e(f"v_add_u32 v{V_VR+1}, v{V_VR+1}, v{T2}")
    e(f"v_lshlrev_b32 v{V_VR+1}, 8, v{V_VR+1}")
    e(f"v_add_u32 v{V_VR}, v1, v{V_VR+1}")
    for dt in range(4):
        for z in range(2):
            if dt == 0 and z == 0:
                continue
            e(f"v_xor_b32 v{V_VR+2*dt+z}, {64*dt + 32*z + 2048*z}, v{V_VR}")
    e(f"v_lshlrev_b32 v1, 1, v{T1}")
    e(f"v_or_b32 v1, v1, v{T4}")
    e(f"v_lshlrev_b32 v{V_WQR+1}, 1, v{T3}")
    e(f"v_xor_b32 v1, v1, v{V_WQR+1}")
    e(f"v_lshlrev_b32 v1, 4, v1")
    e(f"v_add_u32 v1, v1, v{T5}")
    e(f"v_xor_b32 v{V_WQR+1}, s{S_W}, v{T2}")
    e(f"v_lshlrev_b32 v{V_WQR+1}, 6, v{V_WQR+1}")
    e(f"v_add_u32 v1, v1, v{V_WQR+1}")
    e(f"v_lshlrev_b32 v{V_WQR+1}, 3, v{T3}")
    e(f"v_add_u32 v{V_WQR+1}, v{V_WQR+1}, v{T2}")
    e(f"v_lshlrev_b32 v{V_WQR+1}, 8, v{V_WQR+1}")
    e(f"v_add_u32 v{V_WQR}, v1, v{V_WQR+1}")
    e(f"v_xor_b32 v{V_WQR+1}, {16 + 1024}, v{V_WQR}")
    for p in (1, 2):
        for z in range(2):
            e(f"v_add_u32 v{V_WQR+2*p+z}, {65536*p}, v{V_WQR+z}")
    e("s_waitcnt lgkmcnt(0)")
    e(f"s_cmp_ge_u32 s{S_WAVE}, 4")
    e("s_cbranch_scc1 L_k1_grpB")


def srd(e, dst, lo, hi, size, add=0):
    if add:
        e(f"s_add_u32 s{dst}, s{lo}, {add:#x}")
        e(f"s_addc_u32 s{dst+1}, s{hi}, 0")
        e(f"s_and_b32 s{dst+1}, s{dst+1}, 0xffff")
    else:
        e(f"s_mov_b32 s{dst}, s{lo}")
        e(f"s_and_b32 s{dst+1}, s{hi}, 0xffff")
    e(f"s_mov_b32 s{dst+2}, {size:#x}")
    e(f"s_mov_b32 s{dst+3}, 0x20000")


def emit_k1_group(e, g):
    e.vm_issued = 0
    e.lg_issued = 0
    nt_kv = NT_KVB if g == 1 else NT_KVA
    nslot, wstride, rbase = ring_params(g)
    wqs, xs = stage_slots(g)
    if g == 0:
        px, pk, pv, pwq = 16, 18, 20, 22
        kvsize = 8 << 20
    else:
        px, pk, pv, pwq = 26, 28, 30, 32
        kvsize = 64 << 20
    srd(e, SRD_X, px, px + 1, 1 << 20)
    srd(e, SRD_WQ, pwq, pwq + 1, 8 << 20)
    srd(e, SRD_K, pk, pk + 1, kvsize)
    srd(e, SRD_V, pv, pv + 1, kvsize)
    srd(e, SRD_O, 40, 41, 4 << 20, add=g * (4 << 20))
    e(f"s_lshl_b32 s{S_WQOFF}, s{S_H}, 8")
    e(f"s_lshl_b32 s{S_T0}, s{S_W}, 16")
    e(f"s_add_u32 s{S_WQOFF}, s{S_WQOFF}, s{S_T0}")
    e(f"s_lshl_b32 s{S_XOFF}, s{S_BP}, 17")
    e(f"s_lshl_b32 s{S_T0}, s{S_W}, 15")
    e(f"s_add_u32 s{S_XOFF}, s{S_XOFF}, s{S_T0}")
    e(f"s_lshl_b32 s{S_T0}, s{S_BP}, 1")
    e(f"s_lshr_b32 s{S_T1}, s{S_W}, 1")
    e(f"s_add_u32 s{S_T0}, s{S_T0}, s{S_T1}")
    if g == 0:
        e(f"s_lshl_b32 s{S_T1}, s{S_T0}, 2")
        e(f"s_lshr_b32 s{S_T2}, s{S_H}, 3")
    else:
        e(f"s_lshl_b32 s{S_T1}, s{S_T0}, 5")
        e(f"s_mov_b32 s{S_T2}, s{S_H}")
    e(f"s_add_u32 s{S_T1}, s{S_T1}, s{S_T2}")
    e(f"s_lshl_b32 s{S_KVOFF}, s{S_T1}, 17")
    e(f"s_and_b32 s{S_T1}, s{S_W}, 1")
    e(f"s_lshl_b32 s{S_T1}, s{S_T1}, 16")
    e(f"s_add_u32 s{S_KVOFF}, s{S_KVOFF}, s{S_T1}")
    e(f"s_mul_i32 s{S_RING}, s{S_W}, {wstride}")
    if rbase:
        e(f"s_add_u32 s{S_RING}, s{S_RING}, {rbase}")
    for i in range(8):
        e(f"v_add_u32 v{V_KR+i}, s{S_RING}, v{V_KR+i}")
        e(f"v_add_u32 v{V_VR+i}, s{S_RING}, v{V_VR+i}")

    kv_tok = {}

    def issue_kv(n):
        srd_ = SRD_K if n < 8 else SRD_V
        t = n & 7
        slot = n % nslot
        tok = None
        for half in range(2):
            e(f"s_add_u32 m0, s{S_RING}, {slot*8192 + half*4096}")
            e(f"s_add_u32 s{S_T0}, s{S_KVOFF}, {t*8192 + half*4096}")
            for q in range(4):
                tok = e.vmem(f"buffer_load_dwordx4 v{V_KVD+q}, s[{srd_}:{srd_+3}], s{S_T0} offen offset:{q*1024}{nt_kv} lds")
        kv_tok[n] = tok

    wq_tok = {}
    x_tok = {}

    def issue_wq(c):
        slot = wqs[c % WQ_SLOTS]
        e(f"s_add_u32 m0, s{S_W2048}, {slot}")
        e(f"s_add_u32 s{S_T0}, s{S_WQOFF}, {c*32*8192}")
        e.vmem(f"buffer_load_dwordx4 v{V_WQD}, s[{SRD_WQ}:{SRD_WQ+3}], s{S_T0} offen{NT_W} lds")
        wq_tok[c] = e.vmem(f"buffer_load_dwordx4 v{V_WQD+1}, s[{SRD_WQ}:{SRD_WQ+3}], s{S_T0} offen offset:1024{NT_W} lds")

    def issue_x(X):
        slot = xs[X % X_SLOTS]
        e(f"s_add_u32 m0, s{S_W2048}, {slot}")
        e(f"s_add_u32 s{S_T0}, s{S_XOFF}, {X*128}")
        e.vmem(f"buffer_load_dwordx4 v{V_XD}, s[{SRD_X}:{SRD_X+3}], s{S_T0} offen{NT_X} lds")
        x_tok[X] = e.vmem(f"buffer_load_dwordx4 v{V_XD+1}, s[{SRD_X}:{SRD_X+3}], s{S_T0} offen offset:1024{NT_X} lds")

    issue_x(0)
    issue_wq(0)
    issue_wq(1)
    issue_x(1)
    issue_wq(2)
    npre = 2 if g == 1 else 0
    for n in range(npre):
        issue_kv(n)

    ACC = V_S
    FA = V_F
    FB = V_F + 8
    for it in range(32):
        X = it >> 1
        tok = max(wq_tok[it], x_tok[X])
        e.wait_vm(tok)
        e("s_barrier")
        if it + WQ_SLOTS - 1 < 32:
            issue_wq(it + WQ_SLOTS - 1)
        if (it & 1) == 0 and it >= 2 and X + 1 < 16:
            issue_x(X + 1)
        wslot = wqs[it % WQ_SLOTS]
        xslot = xs[X % X_SLOTS]
        toks = []
        for ks in range(2):
            for z in range(2):
                off = wslot + ks * 4096
                toks.append(e.lds(f"ds_read_b64_tr_b16 {vr(FA+4*ks+2*z,2)}, v{V_WQR+2*(off>>16)+z} offset:{off & 0xffff}"))
            s = 2 * (it & 1) + ks
            for qt in range(2):
                off = xslot + qt * 4096
                toks.append(e.lds(f"ds_read_b128 {vr(FB+8*ks+4*qt,4)}, v{V_XR+4*(off>>16)+s} offset:{off & 0xffff}"))
        for ks in range(2):
            for qt in range(2):
                e.wait_lds(toks[4 * ks + 2 + qt])
                c = "0" if (it == 0 and ks == 0) else vr(ACC + 16 * qt, 16)
                e(f"v_mfma_f32_32x32x16_bf16 {vr(ACC+16*qt,16)}, {vr(FA+4*ks,4)}, {vr(FB+8*ks+4*qt,4)}, {c}")
    e("s_nop 15")
    e("s_nop 3")
    for qt in range(2):
        for k in range(8):
            e(f"v_cvt_pk_bf16_f32 v{V_F+8*qt+k}, v{ACC+16*qt+2*k}, v{ACC+16*qt+2*k+1}")
    e(f"v_lshlrev_b32 v{V_T}, 4, v0")
    e(f"v_add_u32 v{V_T+1}, s{S_W2048}, v{V_T}")
    for qt in range(2):
        e(f"v_add_u32 v{V_T+2+qt}, {wqs[qt]}, v{V_T+1}")
    for qt in range(2):
        for ss in range(2):
            e.lds(f"ds_write_b128 v{V_T+2+qt}, {vr(V_F+8*qt+4*ss,4)} offset:{ss*1024}")
    e(f"s_lshr_b32 s{S_T1}, s{S_W}, 1")
    e(f"s_mul_i32 s{S_T1}, s{S_T1}, {wqs[1]-wqs[0]}")
    e(f"s_add_u32 s{S_T1}, s{S_T1}, {wqs[0]}")
    e(f"v_add_u32 v{V_T+4}, s{S_T1}, v{V_T}")
    e("s_waitcnt lgkmcnt(0)")
    e("s_barrier")
    for s in range(8):
        e.lds(f"ds_read_b128 {vr(V_Q+4*s,4)}, v{V_T+4} offset:{s*1024}")
    e("s_waitcnt lgkmcnt(0)")
    e("s_barrier")
    for n in range(npre, nslot):
        issue_kv(n)

    for t in range(8):
        e.comment(f"K tile {t}")
        e.wait_vm(kv_tok[t])
        slot = t % nslot
        fb = V_F + 32 * (t & 1)
        toks = []
        for s in range(8):
            toks.append(e.lds(f"ds_read_b128 {vr(fb+4*s,4)}, v{V_KR+s} offset:{slot*8192}"))
        for s in range(8):
            e.wait_lds(toks[s])
            c = "0" if s == 0 else vr(V_S + 16 * t, 16)
            e(f"v_mfma_f32_32x32x16_bf16 {vr(V_S+16*t,16)}, {vr(fb+4*s,4)}, {vr(V_Q+4*s,4)}, {c}")
        issue_kv(t + nslot)

    e("s_nop 15")
    e("s_nop 3")
    M = [V_T + i for i in range(4)]
    for ch in range(4):
        b = V_S + 32 * ch
        e(f"v_max3_f32 v{M[ch]}, v{b}, v{b+1}, v{b+2}")
    for k in range(14):
        for ch in range(4):
            b = V_S + 32 * ch + 3 + 2 * k
            e(f"v_max3_f32 v{M[ch]}, v{M[ch]}, v{b}, v{b+1}")
    for ch in range(4):
        b = V_S + 32 * ch + 31
        e(f"v_max_f32 v{M[ch]}, v{M[ch]}, v{b}")
    e(f"v_max3_f32 v{M[0]}, v{M[0]}, v{M[1]}, v{M[2]}")
    e(f"v_max_f32 v{M[0]}, v{M[0]}, v{M[3]}")
    e(f"v_mov_b32 v{M[1]}, v{M[0]}")
    e("s_nop 1")
    e(f"v_permlane32_swap_b32 v{M[0]}, v{M[1]}")
    e("s_nop 1")
    VM = V_Q
    VMC = V_Q + 1
    VL = V_Q + 2
    VE = V_Q + 8
    e(f"v_max_f32 v{VM}, v{M[0]}, v{M[1]}")
    e(f"v_mul_f32 v{VMC}, s{S_C}, v{VM}")
    for i in range(4):
        e(f"v_mov_b32 v{VL+i}, 0")
    for t in range(8):
        for i in range(16):
            e(f"v_fma_f32 v{VE+i}, v{V_S+16*t+i}, s{S_C}, -v{VMC}")
        for i in range(16):
            e(f"v_exp_f32 v{VE+i}, v{VE+i}")
        e("s_nop 0")
        for i in range(16):
            e(f"v_add_f32 v{VL+(i&3)}, v{VL+(i&3)}, v{VE+i}")
        for k in range(8):
            e(f"v_cvt_pk_bf16_f32 v{V_S+8*t+k}, v{VE+2*k}, v{VE+2*k+1}")
    e(f"v_add_f32 v{VL}, v{VL}, v{VL+1}")
    e(f"v_add_f32 v{VL+2}, v{VL+2}, v{VL+3}")
    e(f"v_add_f32 v{VL}, v{VL}, v{VL+2}")
    e(f"v_mov_b32 v{VL+1}, v{VL}")
    e("s_nop 1")
    e(f"v_permlane32_swap_b32 v{VL}, v{VL+1}")
    e("s_nop 1")
    e(f"v_add_f32 v{VL}, v{VL}, v{VL+1}")

    OACC = V_S + 64
    for t in range(8):
        n = 8 + t
        e.wait_vm(kv_tok[n])
        slot = n % nslot
        fb = V_F + 32 * (t & 1)
        toks = []
        for u in range(2):
            for dt in range(4):
                for z in range(2):
                    toks.append(e.lds(f"ds_read_b64_tr_b16 {vr(fb+16*u+4*dt+2*z,2)}, v{V_VR+2*dt+z} offset:{slot*8192+u*4096}"))
        for u in range(2):
            for dt in range(4):
                e.wait_lds(toks[8 * u + 2 * dt + 1])
                c = "0" if (t == 0 and u == 0) else vr(OACC + 16 * dt, 16)
                e(f"v_mfma_f32_32x32x16_bf16 {vr(OACC+16*dt,16)}, {vr(fb+16*u+4*dt,4)}, {vr(V_S+8*t+4*u,4)}, {c}")
        if n + nslot < 16:
            issue_kv(n + nslot)

    e("s_nop 15")
    e("s_nop 3")
    lab = f"L_k1_g{g}"
    e(f"v_lshlrev_b32 v{V_T}, 4, v0")
    e(f"v_add_u32 v{V_T+1}, s{S_RING}, v{V_T}")
    e(f"s_xor_b32 s{S_T1}, s{S_W}, 1")
    e(f"s_mul_i32 s{S_T1}, s{S_T1}, {wstride}")
    if rbase:
        e(f"s_add_u32 s{S_T1}, s{S_T1}, {rbase}")
    e(f"v_add_u32 v{V_T+2}, s{S_T1}, v{V_T}")
    e(f"v_mov_b32 v{VM+1}, v{VL}")
    e(f"v_lshlrev_b32 v{V_T+3}, 3, v0")
    e(f"v_add_u32 v{V_T+4}, s{S_T1}, v{V_T+3}")
    e(f"v_add_u32 v{V_T+3}, s{S_RING}, v{V_T+3}")
    e(f"ds_write_b64 v{V_T+3}, {vr(VM,2)} offset:8192")
    e(f"s_and_b32 s{S_T2}, s{S_W}, 1")
    e(f"s_cmp_eq_u32 s{S_T2}, 1")
    e(f"s_cbranch_scc1 {lab}_j1")
    for k in range(8):
        e(f"ds_write_b128 v{V_T+1}, {vr(OACC+32+4*k,4)} offset:{k*1024}")
    e(f"s_branch {lab}_jd")
    e.label(f"{lab}_j1")
    for k in range(8):
        e(f"ds_write_b128 v{V_T+1}, {vr(OACC+4*k,4)} offset:{k*1024}")
    e("s_waitcnt lgkmcnt(0)")
    for k in range(32):
        e(f"v_mov_b32 v{OACC+k}, v{OACC+32+k}")
    e.label(f"{lab}_jd")
    e("s_waitcnt lgkmcnt(0)")
    e("s_barrier")
    PO = V_F
    e(f"ds_read_b64 {vr(VM+2,2)}, v{V_T+4} offset:8192")
    for k in range(8):
        e(f"ds_read_b128 {vr(PO+4*k,4)}, v{V_T+2} offset:{k*1024}")
    e("s_waitcnt lgkmcnt(8)")
    MT, FA_, FB_, LT = VM + 4, VM + 5, VM + 6, VM + 7
    e(f"v_max_f32 v{MT}, v{VM}, v{VM+2}")
    e(f"v_sub_f32 v{FA_}, v{VM}, v{MT}")
    e(f"v_sub_f32 v{FB_}, v{VM+2}, v{MT}")
    e(f"v_mul_f32 v{FA_}, s{S_C}, v{FA_}")
    e(f"v_mul_f32 v{FB_}, s{S_C}, v{FB_}")
    e(f"v_exp_f32 v{FA_}, v{FA_}")
    e(f"v_exp_f32 v{FB_}, v{FB_}")
    e("s_nop 0")
    e(f"v_mul_f32 v{LT}, v{VM+1}, v{FA_}")
    e(f"v_fma_f32 v{LT}, v{VM+3}, v{FB_}, v{LT}")
    e(f"v_rcp_f32 v{LT}, v{LT}")
    e("s_nop 0")
    e(f"v_mul_f32 v{FA_}, v{FA_}, v{LT}")
    e(f"v_mul_f32 v{FB_}, v{FB_}, v{LT}")
    e(f"v_and_b32 v{V_T}, 31, v0")
    e(f"v_lshlrev_b32 v{V_T}, 13, v{V_T}")
    e(f"v_lshrrev_b32 v{V_T+1}, 5, v0")
    e(f"v_lshlrev_b32 v{V_T+1}, 5, v{V_T+1}")
    e(f"v_add_u32 v{V_T}, v{V_T}, v{V_T+1}")
    e(f"s_lshl_b32 s{S_T0}, s{S_BP}, 1")
    e(f"s_lshr_b32 s{S_T1}, s{S_W}, 1")
    e(f"s_add_u32 s{S_T0}, s{S_T0}, s{S_T1}")
    e(f"s_lshl_b32 s{S_T0}, s{S_T0}, 18")
    e(f"s_lshl_b32 s{S_T1}, s{S_H}, 8")
    e(f"s_add_u32 s{S_T0}, s{S_T0}, s{S_T1}")
    e(f"s_lshl_b32 s{S_T2}, s{S_T2}, 7")
    e(f"s_add_u32 s{S_T0}, s{S_T0}, s{S_T2}")
    e("s_waitcnt lgkmcnt(0)")
    for k in range(32):
        e(f"v_mul_f32 v{OACC+k}, v{OACC+k}, v{FA_}")
        e(f"v_fma_f32 v{OACC+k}, v{PO+k}, v{FB_}, v{OACC+k}")
    for k in range(16):
        e(f"v_cvt_pk_bf16_f32 v{PO+k}, v{OACC+2*k}, v{OACC+2*k+1}")
    for dt in range(2):
        for hh in range(2):
            e(f"buffer_store_dwordx4 {vr(PO+8*dt+4*hh,4)}, v{V_T}, s[{SRD_O}:{SRD_O+3}], s{S_T0} offen offset:{dt*64+hh*16}{NT_O}")
    e("s_endpgm")


def emit_k1(e):
    emit_k1_prologue(e)
    emit_k1_group(e, 0)
    e.label("L_k1_grpB")
    emit_k1_group(e, 1)
    e.label("L_k1_end")
    e("s_endpgm")


def emit_k2(e):
    NS = 5
    e.vm_issued = 0
    e.lg_issued = 0
    S_WV, S_BR, S_NT, S_MT = 3, 4, 5, 6
    SRD_A, SRD_W, SRD_OUT = 44, 48, 52
    S_OOFF, S_WOFF, S_W2K, S_T0k, S_T1k = 64, 65, 66, 67, 68
    V_OD, V_WD = 2, 4
    V_OR = 8
    V_WR = 20
    T0, T1, T2, T3, T4, T5 = range(26, 32)
    ACC = 64
    FA = 32
    FB = 48
    e.raw(".globl oproj_kernel")
    e.raw(".p2align 8")
    e.raw(".type oproj_kernel,@function")
    e.label("oproj_kernel")
    e("s_cmp_ge_u32 s2, 256")
    e("s_cbranch_scc1 L_k2_end")
    e("s_load_dwordx2 s[16:17], s[0:1], 32")
    e("s_load_dwordx4 s[20:23], s[0:1], 72")
    e("s_load_dwordx2 s[24:25], s[0:1], 96")
    e("v_lshrrev_b32 v1, 6, v0")
    e("v_and_b32 v0, 63, v0")
    e("s_nop 0")
    e(f"v_readfirstlane_b32 s{S_WV}, v1")
    e("s_and_b32 s7, s2, 7")
    e(f"s_lshr_b32 s{S_BR}, s7, 2")
    e("s_and_b32 s7, s7, 3")
    e("s_lshr_b32 s8, s2, 3")
    e("s_and_b32 s9, s8, 3")
    e("s_lshl_b32 s7, s7, 2")
    e(f"s_add_u32 s{S_NT}, s7, s9")
    e(f"s_lshr_b32 s{S_MT}, s8, 2")
    e(f"s_lshl_b32 s{S_W2K}, s{S_WV}, 11")
    e(f"v_lshrrev_b32 v{T0}, 4, v0")
    e(f"v_and_b32 v{T1}, 15, v0")
    e(f"v_lshlrev_b32 v{T2}, 2, v{T0}")
    e(f"v_xor_b32 v{T1}, v{T1}, v{T2}")
    e(f"v_lshlrev_b32 v{T1}, 4, v{T1}")
    e(f"v_lshlrev_b32 v{T2}, 13, v{T0}")
    e(f"v_add_u32 v{T2}, v{T1}, v{T2}")
    e(f"s_lshl_b32 s{S_T0k}, s{S_WV}, 1")
    e(f"s_and_b32 s{S_T0k}, s{S_T0k}, 3")
    e(f"s_lshl_b32 s{S_T0k}, s{S_T0k}, 4")
    e(f"v_xor_b32 v{V_OD}, s{S_T0k}, v{T2}")
    e(f"v_xor_b32 v{V_OD+1}, 16, v{V_OD}")
    e(f"v_add_u32 v{V_OD+1}, {32768-1024}, v{V_OD+1}")
    e(f"v_lshrrev_b32 v{T2}, 3, v0")
    e(f"v_lshlrev_b32 v{T2}, 11, v{T2}")
    e(f"v_lshrrev_b32 v{T3}, 2, v0")
    e(f"v_and_b32 v{T3}, 4, v{T3}")
    e(f"v_and_b32 v{T4}, 7, v0")
    e(f"v_xor_b32 v{T3}, v{T3}, v{T4}")
    e(f"v_lshlrev_b32 v{T3}, 4, v{T3}")
    e(f"v_add_u32 v{V_WD}, v{T2}, v{T3}")
    e(f"v_add_u32 v{V_WD+1}, {8*2048-1024}, v{V_WD}")
    e(f"v_and_b32 v{T2}, 31, v0")
    e(f"v_lshrrev_b32 v{T3}, 5, v0")
    e(f"v_and_b32 v{T4}, 3, v{T2}")
    e(f"v_lshlrev_b32 v{T4}, 2, v{T4}")
    e(f"v_lshrrev_b32 v{T5}, 2, v{T2}")
    e(f"v_and_b32 v{T5}, 3, v{T5}")
    e(f"v_or_b32 v{T4}, v{T4}, v{T5}")
    e(f"v_xor_b32 v{T4}, v{T4}, v{T3}")
    e(f"v_lshlrev_b32 v{T4}, 4, v{T4}")
    e(f"v_lshlrev_b32 v{T5}, 8, v{T2}")
    e(f"v_add_u32 v{T4}, v{T4}, v{T5}")
    e(f"s_lshr_b32 s{S_T0k}, s{S_WV}, 2")
    e(f"s_lshl_b32 s{S_T1k}, s{S_T0k}, 7")
    e(f"v_xor_b32 v{T4}, s{S_T1k}, v{T4}")
    e(f"s_and_b32 s{S_T1k}, s{S_WV}, 1")
    e(f"s_lshl_b32 s{S_T1k}, s{S_T1k}, 13")
    e(f"v_add_u32 v{V_OR}, s{S_T1k}, v{T4}")
    for s in range(1, 4):
        e(f"v_xor_b32 v{V_OR+s}, {32*s}, v{V_OR}")
    for p in (1, 2):
        for s in range(4):
            e(f"v_add_u32 v{V_OR+4*p+s}, {65536*p}, v{V_OR+s}")
    e(f"v_and_b32 v{T1}, 1, v{T0}")
    e(f"v_lshrrev_b32 v{T2}, 2, v0")
    e(f"v_and_b32 v{T2}, 3, v{T2}")
    e(f"v_and_b32 v{T4}, 1, v0")
    e(f"v_lshlrev_b32 v{T4}, 1, v{T4}")
    e(f"v_or_b32 v{T4}, v{T4}, v{T1}")
    e(f"v_lshrrev_b32 v{T5}, 1, v{T2}")
    e(f"s_lshr_b32 s{S_T1k}, s{S_WV}, 1")
    e(f"s_and_b32 s{S_T1k}, s{S_T1k}, 1")
    e(f"v_xor_b32 v{T5}, s{S_T1k}, v{T5}")
    e(f"v_lshlrev_b32 v{T5}, 2, v{T5}")
    e(f"v_or_b32 v{T4}, v{T4}, v{T5}")
    e(f"v_lshlrev_b32 v{T4}, 4, v{T4}")
    e(f"v_lshrrev_b32 v{T5}, 1, v0")
    e(f"v_and_b32 v{T5}, 1, v{T5}")
    e(f"v_lshlrev_b32 v{T5}, 3, v{T5}")
    e(f"v_add_u32 v{T4}, v{T4}, v{T5}")
    e(f"v_lshlrev_b32 v{T5}, 3, v{T3}")
    e(f"v_add_u32 v{T5}, v{T5}, v{T2}")
    e(f"v_lshlrev_b32 v{T5}, 7, v{T5}")
    e(f"v_add_u32 v{T4}, v{T4}, v{T5}")
    e(f"s_lshl_b32 s{S_T1k}, s{S_T0k}, 13")
    e(f"v_add_u32 v{V_WR}, s{S_T1k}, v{T4}")
    e(f"v_add_u32 v{V_WR+1}, 512, v{V_WR}")
    for p in (1, 2):
        for z in range(2):
            e(f"v_add_u32 v{V_WR+2*p+z}, {65536*p}, v{V_WR+z}")
    e("s_waitcnt lgkmcnt(0)")
    e(f"s_cmp_eq_u32 s{S_BR}, 1")
    e(f"s_cselect_b32 s{SRD_W}, s20, s16")
    e(f"s_cselect_b32 s{SRD_W+1}, s21, s17")
    e(f"s_and_b32 s{SRD_W+1}, s{SRD_W+1}, 0xffff")
    e(f"s_mov_b32 s{SRD_W+2}, {8<<20:#x}")
    e(f"s_mov_b32 s{SRD_W+3}, 0x20000")
    srd(e, SRD_A, 24, 25, 8 << 20)
    srd(e, SRD_OUT, 22, 23, 2 << 20)
    e(f"s_lshl_b32 s{S_OOFF}, s{S_BR}, 22")
    e(f"s_lshl_b32 s{S_T0k}, s{S_MT}, 19")
    e(f"s_add_u32 s{S_OOFF}, s{S_OOFF}, s{S_T0k}")
    e(f"s_lshl_b32 s{S_T0k}, s{S_WV}, 16")
    e(f"s_add_u32 s{S_OOFF}, s{S_OOFF}, s{S_T0k}")
    e(f"s_lshl_b32 s{S_WOFF}, s{S_WV}, 15")
    e(f"s_lshl_b32 s{S_T0k}, s{S_NT}, 7")
    e(f"s_add_u32 s{S_WOFF}, s{S_WOFF}, s{S_T0k}")

    tok = {}

    def issue(c):
        slot = (c % NS) * 32768
        e(f"s_add_u32 m0, s{S_W2K}, {slot}")
        e(f"s_add_u32 s{S_T0k}, s{S_OOFF}, {c*256}")
        e.vmem(f"buffer_load_dwordx4 v{V_OD}, s[{SRD_A}:{SRD_A+3}], s{S_T0k} offen lds")
        e.vmem(f"buffer_load_dwordx4 v{V_OD+1}, s[{SRD_A}:{SRD_A+3}], s{S_T0k} offen offset:1024 lds")
        e(f"s_add_u32 m0, s{S_W2K}, {slot+16384}")
        e(f"s_add_u32 s{S_T0k}, s{S_WOFF}, {c*128*2048}")
        e.vmem(f"buffer_load_dwordx4 v{V_WD}, s[{SRD_W}:{SRD_W+3}], s{S_T0k} offen{NT_WO} lds")
        tok[c] = e.vmem(f"buffer_load_dwordx4 v{V_WD+1}, s[{SRD_W}:{SRD_W+3}], s{S_T0k} offen offset:1024{NT_WO} lds")

    for c in range(NS - 1):
        issue(c)
    for it in range(32):
        e.comment(f"oproj it {it}")
        e.wait_vm(tok[it])
        e("s_barrier")
        if it + NS - 1 < 32:
            issue(it + NS - 1)
        slot = (it % NS) * 32768
        toks = []
        for s in range(4):
            for z in range(2):
                off = slot + 16384 + s * 2048
                toks.append(e.lds(f"ds_read_b64_tr_b16 {vr(FA+4*s+2*z,2)}, v{V_WR+2*(off>>16)+z} offset:{off&0xffff}"))
            off = slot
            toks.append(e.lds(f"ds_read_b128 {vr(FB+4*s,4)}, v{V_OR+4*(off>>16)+s} offset:{off&0xffff}"))
        for s in range(4):
            e.wait_lds(toks[3 * s + 2])
            c = "0" if (it == 0 and s == 0) else vr(ACC, 16)
            e(f"v_mfma_f32_32x32x16_bf16 {vr(ACC,16)}, {vr(FA+4*s,4)}, {vr(FB+4*s,4)}, {c}")
    e("s_nop 15")
    e("s_nop 3")
    e("s_barrier")
    e(f"v_lshlrev_b32 v{T0}, 4, v0")
    e(f"v_add_u32 v{T1}, s{S_W2K}, v{T0}")
    e(f"s_xor_b32 s{S_T0k}, s{S_W2K}, {4*2048}")
    e(f"v_add_u32 v{T2}, s{S_T0k}, v{T0}")
    e(f"s_cmp_ge_u32 s{S_WV}, 4")
    e("s_cbranch_scc1 L_k2_kh1")
    e(f"ds_write_b128 v{T1}, {vr(ACC+8,4)}")
    e(f"ds_write_b128 v{T1}, {vr(ACC+12,4)} offset:1024")
    e("s_branch L_k2_khd")
    e.label("L_k2_kh1")
    e(f"ds_write_b128 v{T1}, {vr(ACC,4)}")
    e(f"ds_write_b128 v{T1}, {vr(ACC+4,4)} offset:1024")
    e("s_waitcnt lgkmcnt(0)")
    for k in range(8):
        e(f"v_mov_b32 v{ACC+k}, v{ACC+8+k}")
    e.label("L_k2_khd")
    e("s_waitcnt lgkmcnt(0)")
    e("s_barrier")
    e(f"ds_read_b128 {vr(FA,4)}, v{T2}")
    e(f"ds_read_b128 {vr(FA+4,4)}, v{T2} offset:1024")
    e(f"v_and_b32 v{T3}, 31, v0")
    e(f"v_lshlrev_b32 v{T3}, 12, v{T3}")
    e(f"v_lshrrev_b32 v{T4}, 5, v0")
    e(f"v_lshlrev_b32 v{T4}, 5, v{T4}")
    e(f"v_add_u32 v{T3}, v{T3}, v{T4}")
    e(f"s_lshl_b32 s{S_T0k}, s{S_MT}, 18")
    e(f"s_and_b32 s{S_T1k}, s{S_WV}, 1")
    e(f"s_lshl_b32 s{S_T1k}, s{S_T1k}, 17")
    e(f"s_add_u32 s{S_T0k}, s{S_T0k}, s{S_T1k}")
    e(f"s_lshl_b32 s{S_T1k}, s{S_BR}, 11")
    e(f"s_add_u32 s{S_T0k}, s{S_T0k}, s{S_T1k}")
    e(f"s_lshl_b32 s{S_T1k}, s{S_NT}, 7")
    e(f"s_add_u32 s{S_T0k}, s{S_T0k}, s{S_T1k}")
    e(f"s_lshr_b32 s{S_T1k}, s{S_WV}, 1")
    e(f"s_and_b32 s{S_T1k}, s{S_T1k}, 1")
    e(f"s_lshl_b32 s{S_T1k}, s{S_T1k}, 6")
    e(f"s_add_u32 s{S_T0k}, s{S_T0k}, s{S_T1k}")
    e(f"s_lshr_b32 s{S_T1k}, s{S_WV}, 2")
    e(f"s_lshl_b32 s{S_T1k}, s{S_T1k}, 4")
    e(f"s_add_u32 s{S_T0k}, s{S_T0k}, s{S_T1k}")
    e("s_waitcnt lgkmcnt(0)")
    for k in range(8):
        e(f"v_add_f32 v{ACC+k}, v{ACC+k}, v{FA+k}")
    for k in range(4):
        e(f"v_cvt_pk_bf16_f32 v{FB+k}, v{ACC+2*k}, v{ACC+2*k+1}")
    e(f"buffer_store_dwordx4 {vr(FB,4)}, v{T3}, s[{SRD_OUT}:{SRD_OUT+3}], s{S_T0k} offen")
    e.label("L_k2_end")
    e("s_endpgm")


e = Em()
emit_k1(e)
emit_k2(e)
txt = HEADER + e.text() + '.section .rodata,"a"\n.p2align 6\n' + kernel_desc("attn_kernel") + ".p2align 6\n" + kernel_desc("oproj_kernel", vgpr=128, accum=128)
open(OUT, "w").write(txt)
print("wrote", OUT, len(txt), "bytes")
```

```python
import sys, math, struct
sys.path.insert(0, "tools")
from asmlib import Em, vr, sr, kernel_desc

OUT = sys.argv[1] if len(sys.argv) > 1 else "concat_heads__gqa_block_cached__mha_block_cached__near_ridge.s"
OPT = dict(a.split("=") for a in sys.argv[2:])


def pol(name, dflt):
    v = OPT.get(name, dflt).strip()
    return "" if v in ("", "0") else " " + v.replace("+", " ")


NT_KVB = pol("nt_kvb", "nt")
NT_KVA = pol("nt_kva", "nt")
NT_W = pol("nt_w", "nt")
NT_X = pol("nt_x", "nt")
NT_WO = pol("nt_wo", "nt")
NT_OST = pol("nt_ost", "0")
NT_OLD = pol("nt_old", "nt")
FT = int(OPT.get("ft", "0"))
FTO = int(OPT.get("fto", "1"))
STAMP = int(OPT.get("stamp", "0"))
ONLY = OPT.get("only", "")
K1_ROT = int(OPT.get("k1_rot", "1"))
KV_ROT = int(OPT.get("kv_rot", "1"))
K2_ROT = int(OPT.get("k2_rot", "1"))
SRD_ST = 88


def srd(e, dst, lo, hi, size, add=0):
    if add:
        e(f"s_add_u32 s{dst}, s{lo}, {add:#x}")
        e(f"s_addc_u32 s{dst+1}, s{hi}, 0")
        e(f"s_and_b32 s{dst+1}, s{dst+1}, 0xffff")
    else:
        e(f"s_mov_b32 s{dst}, s{lo}")
        e(f"s_and_b32 s{dst+1}, s{hi}, 0xffff")
    e(f"s_mov_b32 s{dst+2}, {size:#x}")
    e(f"s_mov_b32 s{dst+3}, 0x20000")


def stamp_init(e, wsreg, wavereg, base):
    if not STAMP: return
    srd(e, SRD_ST, wsreg, wsreg + 1, 1 << 20, add=base)
    e(f"s_lshl_b32 s92, s2, 3")
    e(f"s_add_u32 s92, s92, s{wavereg}")
    e(f"s_lshl_b32 s92, s92, 8")


def stamp(e, idx, vt):
    if not STAMP: return
    e("s_memrealtime s[94:95]")
    e("s_waitcnt lgkmcnt(0)")
    e(f"v_mov_b32 v{vt}, s94")
    e(f"v_mov_b32 v{vt+1}, 0")
    e.vmem(f"buffer_store_dword v{vt}, v{vt+1}, s[{SRD_ST}:{SRD_ST+3}], s92 offen offset:{idx*4}")


def f32bits(x):
    return struct.unpack("<I", struct.pack("<f", x))[0]


CSCALE = (128 ** -0.5) * math.log2(math.e)

HEADER = """; Kernarg layout (104 bytes, ptrs only, base s[0:1]):
; @launch kernel=attn_kernel grid=(256,1,1) block=(512,1,1) lds=163840
; @launch kernel=oproj_kernel grid=(256,1,1) block=(512,1,1) lds=163840
.amdgcn_target "amdgcn-amd-amdhsa--gfx950"
.text
"""

S_WAVE, S_W, S_XCD, S_CI = 3, 4, 7, 8
S_HA, S_BPA, S_HB, S_BPB = 9, 10, 11, 12
SRD_XA, SRD_WQA, SRD_XB, SRD_WQB, SRD_K, SRD_V, SRD_O = 44, 48, 52, 56, 60, 64, 68
S_WQOFF, S_XOFF, S_KVOFF, S_RING, S_C, S_T0, S_T1, S_T2 = 72, 73, 74, 75, 76, 77, 78, 79
S_WQK, S_XK, S_KROT, S_W4096, S_W2048 = 80, 81, 82, 83, 84
V_WQD = 2
V_XD = 6
V_KVD = 8
V_KR = 12
V_VR = 20
V_T = 28
V_Q = 32
V_F = 64
V_G = 96
V_S = 128
V_WQR = 96
V_XR = 112

R_BASE = 65536
R_SLOT = 24576
NR = 4


def emit_k1_prologue(e):
    e.raw(".globl attn_kernel")
    e.raw(".p2align 8")
    e.raw(".type attn_kernel,@function")
    e.label("attn_kernel")
    e("s_cmp_ge_u32 s2, 256")
    e("s_cbranch_scc1 L_k1_end")
    e("s_load_dwordx16 s[16:31], s[0:1], 0")
    e("s_load_dwordx8 s[32:39], s[0:1], 64")
    e("s_load_dwordx2 s[40:41], s[0:1], 96")
    e("v_lshrrev_b32 v1, 6, v0")
    e("v_and_b32 v0, 63, v0")
    e("s_nop 0")
    e(f"v_readfirstlane_b32 s{S_WAVE}, v1")
    e(f"s_and_b32 s{S_XCD}, s2, 7")
    e(f"s_lshr_b32 s{S_CI}, s2, 3")
    e(f"s_and_b32 s{S_W}, s{S_WAVE}, 3")
    e(f"s_lshl_b32 s{S_W2048}, s{S_W}, 11")
    e(f"s_lshl_b32 s{S_W4096}, s{S_W}, 12")
    e(f"s_mov_b32 s{S_C}, {f32bits(CSCALE):#x}")
    e(f"s_lshr_b32 s{S_HA}, s{S_XCD}, 1")
    e(f"s_lshl_b32 s{S_HA}, s{S_HA}, 3")
    e(f"s_and_b32 s{S_T0}, s{S_CI}, 7")
    e(f"s_add_u32 s{S_HA}, s{S_HA}, s{S_T0}")
    e(f"s_and_b32 s{S_BPA}, s{S_XCD}, 1")
    e(f"s_lshl_b32 s{S_BPA}, s{S_BPA}, 2")
    e(f"s_lshr_b32 s{S_T0}, s{S_CI}, 3")
    e(f"s_add_u32 s{S_BPA}, s{S_BPA}, s{S_T0}")
    e(f"s_lshl_b32 s{S_HB}, s{S_XCD}, 2")
    e(f"s_and_b32 s{S_T0}, s{S_CI}, 3")
    e(f"s_add_u32 s{S_HB}, s{S_HB}, s{S_T0}")
    e(f"s_lshr_b32 s{S_BPB}, s{S_CI}, 2")
    T0, T1, T2, T3, T4, T5 = 64, 65, 66, 67, 68, 69
    e(f"v_lshrrev_b32 v{T0}, 4, v0")
    e(f"v_and_b32 v{T1}, 15, v0")
    e(f"v_lshlrev_b32 v{T2}, 2, v{T0}")
    e(f"v_xor_b32 v{T1}, v{T1}, v{T2}")
    e(f"v_lshlrev_b32 v{T1}, 4, v{T1}")
    e(f"v_lshlrev_b32 v{T2}, 8, v{T0}")
    e(f"v_add_u32 v{V_KVD}, v{T1}, v{T2}")
    for n in range(1, 4):
        e(f"v_xor_b32 v{V_KVD+n}, {16*n}, v{V_KVD}")
    e(f"v_lshlrev_b32 v{T2}, 13, v{T0}")
    e(f"v_add_u32 v{V_WQD}, v{T1}, v{T2}")
    for q in range(1, 4):
        e(f"v_xor_b32 v{V_WQD+q}, {16*q}, v{V_WQD}")
        e(f"v_add_u32 v{V_WQD+q}, {q*(32768-1024)}, v{V_WQD+q}")
    e(f"v_lshrrev_b32 v{T2}, 3, v0")
    e(f"v_lshlrev_b32 v{T2}, 11, v{T2}")
    e(f"v_and_b32 v{T3}, 7, v0")
    e(f"v_xor_b32 v{T3}, v{T3}, v{T0}")
    e(f"v_lshlrev_b32 v{T3}, 4, v{T3}")
    e(f"v_add_u32 v{V_XD}, v{T2}, v{T3}")
    e(f"v_xor_b32 v{V_XD+1}, 64, v{V_XD}")
    e(f"v_add_u32 v{V_XD+1}, {8*2048-1024}, v{V_XD+1}")
    e(f"v_and_b32 v{T2}, 31, v0")
    e(f"v_lshrrev_b32 v{T3}, 5, v0")
    e(f"v_lshrrev_b32 v{T4}, 1, v{T2}")
    e(f"v_and_b32 v{T4}, 7, v{T4}")
    e(f"v_xor_b32 v{T4}, v{T4}, v{T3}")
    e(f"v_lshlrev_b32 v{T4}, 4, v{T4}")
    e(f"v_lshlrev_b32 v{T5}, 7, v{T2}")
    e(f"v_add_u32 v{T4}, v{T4}, v{T5}")
    e(f"s_lshr_b32 s{S_T0}, s{S_W}, 1")
    e(f"s_lshl_b32 s{S_T0}, s{S_T0}, 12")
    e(f"s_add_u32 s{S_T0}, s{S_T0}, 65536")
    e(f"v_add_u32 v{V_XR}, s{S_T0}, v{T4}")
    for s in range(1, 4):
        e(f"v_xor_b32 v{V_XR+s}, {32*s}, v{V_XR}")
    for s in range(4):
        e(f"v_add_u32 v{V_XR+4+s}, 65536, v{V_XR+s}")
    e(f"v_and_b32 v{T4}, 3, v{T2}")
    e(f"v_lshlrev_b32 v{T4}, 2, v{T4}")
    e(f"v_lshrrev_b32 v{T5}, 2, v{T2}")
    e(f"v_and_b32 v{T5}, 3, v{T5}")
    e(f"v_or_b32 v{T4}, v{T4}, v{T5}")
    e(f"v_xor_b32 v{T4}, v{T4}, v{T3}")
    e(f"v_lshlrev_b32 v{T4}, 4, v{T4}")
    e(f"v_lshlrev_b32 v{T5}, 8, v{T2}")
    e(f"v_add_u32 v{V_KR}, v{T4}, v{T5}")
    for s in range(1, 8):
        e(f"v_xor_b32 v{V_KR+s}, {32*s}, v{V_KR}")
    e(f"v_and_b32 v{T1}, 1, v{T0}")
    e(f"v_lshrrev_b32 v{T2}, 2, v0")
    e(f"v_and_b32 v{T2}, 3, v{T2}")
    e(f"v_and_b32 v{T4}, 1, v0")
    e(f"v_lshrrev_b32 v{T5}, 1, v0")
    e(f"v_and_b32 v{T5}, 1, v{T5}")
    e(f"v_lshlrev_b32 v{T5}, 3, v{T5}")
    e(f"v_lshlrev_b32 v{V_VR+2}, 6, v{T2}")
    e(f"v_add_u32 v{T5}, v{T5}, v{V_VR+2}")
    e(f"v_lshlrev_b32 v1, 1, v{T4}")
    e(f"v_or_b32 v1, v1, v{T1}")
    e(f"v_xor_b32 v1, v1, v{T3}")
    e(f"v_lshlrev_b32 v1, 4, v1")
    e(f"v_add_u32 v1, v1, v{T5}")
    e(f"v_lshlrev_b32 v{V_VR+1}, 2, v{T3}")
    e(f"v_add_u32 v{V_VR+1}, v{V_VR+1}, v{T2}")
    e(f"v_lshlrev_b32 v{V_VR+1}, 8, v{V_VR+1}")
    e(f"v_add_u32 v{V_VR}, v1, v{V_VR+1}")
    for dt in range(4):
        for z in range(2):
            if dt == 0 and z == 0:
                continue
            e(f"v_xor_b32 v{V_VR+2*dt+z}, {64*dt + 32*z + 2048*z}, v{V_VR}")
    e(f"v_lshlrev_b32 v1, 1, v{T1}")
    e(f"v_or_b32 v1, v1, v{T4}")
    e(f"v_lshlrev_b32 v{V_WQR+1}, 1, v{T3}")
    e(f"v_xor_b32 v1, v1, v{V_WQR+1}")
    e(f"v_lshlrev_b32 v1, 4, v1")
    e(f"v_add_u32 v1, v1, v{T5}")
    e(f"v_lshlrev_b32 v{V_WQR+1}, 3, v{T3}")
    e(f"v_add_u32 v{V_WQR+1}, v{V_WQR+1}, v{T2}")
    e(f"v_lshlrev_b32 v{V_WQR+1}, 8, v{V_WQR+1}")
    e(f"v_add_u32 v1, v1, v{V_WQR+1}")
    e(f"v_add_u32 v{V_WQR}, 65536, v1")
    for dt in range(4):
        for z in range(2):
            if dt == 0 and z == 0:
                continue
            e(f"v_xor_b32 v{V_WQR+2*dt+z}, {64*dt + 16*z + 1024*z}, v{V_WQR}")
    for i in range(8):
        e(f"v_add_u32 v{V_WQR+8+i}, 65536, v{V_WQR+i}")
    e("s_waitcnt lgkmcnt(0)")
    e(f"s_cmp_ge_u32 s{S_WAVE}, 4")
    e("s_cbranch_scc1 L_k1_S")


class Role:
    pass


def emit_kv_setup(e, g):
    SH, SBP = (S_HA, S_BPA) if g == 0 else (S_HB, S_BPB)
    pk, pv = (18, 20) if g == 0 else (28, 30)
    kvsize = (8 << 20) if g == 0 else (64 << 20)
    srd(e, SRD_K, pk, pk + 1, kvsize)
    srd(e, SRD_V, pv, pv + 1, kvsize)
    srd(e, SRD_O, 40, 41, 4 << 20, add=g * (4 << 20))
    e(f"s_lshl_b32 s{S_T0}, s{SBP}, 1")
    e(f"s_lshr_b32 s{S_T1}, s{S_W}, 1")
    e(f"s_add_u32 s{S_T0}, s{S_T0}, s{S_T1}")
    if g == 0:
        e(f"s_lshl_b32 s{S_T1}, s{S_T0}, 2")
        e(f"s_lshr_b32 s{S_T2}, s{SH}, 3")
    else:
        e(f"s_lshl_b32 s{S_T1}, s{S_T0}, 5")
        e(f"s_mov_b32 s{S_T2}, s{SH}")
    e(f"s_add_u32 s{S_T1}, s{S_T1}, s{S_T2}")
    e(f"s_lshl_b32 s{S_KVOFF}, s{S_T1}, 17")
    e(f"s_and_b32 s{S_T1}, s{S_W}, 1")
    e(f"s_lshl_b32 s{S_T1}, s{S_T1}, 16")
    e(f"s_add_u32 s{S_KVOFF}, s{S_KVOFF}, s{S_T1}")
    if KV_ROT and g == 1:
        e(f"s_add_u32 s{S_KROT}, s{SH}, s{S_T0}")
        e(f"s_and_b32 s{S_KROT}, s{S_KROT}, 7")
        e(f"s_lshl_b32 s{S_KROT}, s{S_KROT}, 13")
    elif KV_ROT:
        e(f"s_and_b32 s{S_KROT}, s{SH}, 7")
        e(f"s_lshl_b32 s{S_KROT}, s{S_KROT}, 13")
    else:
        e(f"s_mov_b32 s{S_KROT}, 0")
    if g == 1:
        e(f"s_lshl_b32 s{S_RING}, s{S_W}, 14")
    else:
        e(f"s_lshl_b32 s{S_RING}, s{S_W}, 13")
        e(f"s_add_u32 s{S_RING}, s{S_RING}, {R_BASE}")
    for i in range(8):
        e(f"v_add_u32 v{V_KR+i}, s{S_RING}, v{V_KR+i}")
        e(f"v_add_u32 v{V_VR+i}, s{S_RING}, v{V_VR+i}")


def emit_k1_role(e, g):
    e.vm_issued = 0
    e.lg_issued = 0
    nt_kv = NT_KVB if g == 1 else NT_KVA
    slot_stride = 8192 if g == 1 else 32768
    SH, SBP = (S_HA, S_BPA) if g == 0 else (S_HB, S_BPB)
    nbar = [0]

    def barrier():
        e("s_barrier")
        nbar[0] += 1

    kv_tok = {}

    def issue_kv(n):
        srd_ = SRD_K if n < 8 else SRD_V
        t = n & 7
        slot = n & 1
        tok = None
        nt_kv = NT_KVB if g == 1 else NT_KVA
        if FT and g == 0 and t == 0:
            nt_kv = " nt"
        e(f"s_add_u32 s{S_T0}, s{S_KROT}, {t*8192}")
        e(f"s_and_b32 s{S_T0}, s{S_T0}, 0xffff")
        e(f"s_add_u32 s{S_T0}, s{S_T0}, s{S_KVOFF}")
        for half in range(2):
            e(f"s_add_u32 m0, s{S_RING}, {slot*slot_stride + half*4096}")
            if half:
                e(f"s_add_u32 s{S_T0}, s{S_T0}, 4096")
            else:
                e("s_nop 0")
            for q in range(4):
                tok = e.vmem(f"buffer_load_dwordx4 v{V_KVD+q}, s[{srd_}:{srd_+3}], s{S_T0} offen offset:{q*1024}{nt_kv} lds")
        kv_tok[n] = tok

    ch_tok = {}

    def ring_setup(br):
        sh, sbp = (S_HA, S_BPA) if br == 0 else (S_HB, S_BPB)
        e(f"s_lshl_b32 s{S_WQOFF}, s{sh}, 8")
        e(f"s_lshl_b32 s{S_T0}, s{S_W}, 17")
        e(f"s_add_u32 s{S_WQOFF}, s{S_WQOFF}, s{S_T0}")
        e(f"s_lshl_b32 s{S_XOFF}, s{sbp}, 17")
        e(f"s_lshl_b32 s{S_T0}, s{S_W}, 15")
        e(f"s_add_u32 s{S_XOFF}, s{S_XOFF}, s{S_T0}")
        if K1_ROT:
            if br == 1:
                e(f"s_lshl_b32 s{S_T0}, s{sbp}, 1")
                e(f"s_and_b32 s{S_T1}, s{S_CI}, 3")
                e(f"s_lshl_b32 s{S_T1}, s{S_T1}, 2")
            else:
                e(f"s_lshr_b32 s{S_T0}, s{S_CI}, 3")
                e(f"s_lshl_b32 s{S_T0}, s{S_T0}, 2")
                e(f"s_and_b32 s{S_T1}, s{S_CI}, 7")
                e(f"s_lshl_b32 s{S_T1}, s{S_T1}, 1")
            e(f"s_add_u32 s{S_T0}, s{S_T0}, s{S_T1}")
            e(f"s_and_b32 s{S_T0}, s{S_T0}, 15")
            e(f"s_lshl_b32 s{S_WQK}, s{S_T0}, 19")
            e(f"s_lshl_b32 s{S_XK}, s{S_T0}, 7")
        else:
            e(f"s_mov_b32 s{S_WQK}, 0")
            e(f"s_mov_b32 s{S_XK}, 0")

    def issue_chunk(c):
        br = 1 if c < 16 else 0
        if c == 16:
            ring_setup(0)
        sw, sx = (SRD_WQA, SRD_XA) if br == 0 else (SRD_WQB, SRD_XB)
        slot = R_BASE + (c % NR) * R_SLOT
        NT_X, NT_W = globals()["NT_X"], globals()["NT_W"]
        if FT:
            cc = c & 15
            if cc < (4 if br == 1 else 2): NT_X = " nt"
            if cc < (2 if br == 1 else 4): NT_W = " nt"
        e(f"s_add_u32 m0, s{S_W2048}, {slot+16384}")
        e(f"s_add_u32 s{S_T0}, s{S_XOFF}, s{S_XK}")
        e.vmem(f"buffer_load_dwordx4 v{V_XD}, s[{sx}:{sx+3}], s{S_T0} offen{NT_X} lds")
        e.vmem(f"buffer_load_dwordx4 v{V_XD+1}, s[{sx}:{sx+3}], s{S_T0} offen offset:1024{NT_X} lds")
        e(f"s_add_u32 m0, s{S_W4096}, {slot}")
        e(f"s_add_u32 s{S_T0}, s{S_WQOFF}, s{S_WQK}")
        for q in range(4):
            ch_tok[c] = e.vmem(f"buffer_load_dwordx4 v{V_WQD+q}, s[{sw}:{sw+3}], s{S_T0} offen offset:{q*1024}{NT_W} lds")
        e(f"s_add_u32 s{S_XK}, s{S_XK}, 128")
        e(f"s_and_b32 s{S_XK}, s{S_XK}, 2047")
        e(f"s_add_u32 s{S_WQK}, s{S_WQK}, 0x80000")
        e(f"s_and_b32 s{S_WQK}, s{S_WQK}, 0x7fffff")

    ACC = V_S

    def qproj_compute(c, first):
        slot = R_BASE + (c % NR) * R_SLOT
        fs = [32, 52, 72]
        toks = {}

        def reads(ks):
            b = fs[ks % 3]
            off = slot + 16384
            pg = (off >> 16) - 1
            toks[(ks, 'b')] = e.lds(f"ds_read_b128 {vr(b+16,4)}, v{V_XR+4*pg+ks} offset:{off & 0xffff}")
            for dt in range(4):
                for z in range(2):
                    off = slot + ks * 4096
                    pg = (off >> 16) - 1
                    toks[(ks, dt)] = e.lds(f"ds_read_b64_tr_b16 {vr(b+4*dt+2*z,2)}, v{V_WQR+8*pg+2*dt+z} offset:{off & 0xffff}")

        def mfmas(ks):
            b = fs[ks % 3]
            for dt in range(4):
                e.wait_lds(toks[(ks, dt)])
                cc = "0" if (first and ks == 0) else vr(ACC + 16 * dt, 16)
                e(f"v_mfma_f32_32x32x16_bf16 {vr(ACC+16*dt,16)}, {vr(b+4*dt,4)}, {vr(b+16,4)}, {cc}")

        reads(0)
        reads(1)
        mfmas(0)
        reads(2)
        mfmas(1)
        reads(3)
        mfmas(2)
        mfmas(3)

    def q_finish():
        e("s_nop 15")
        e("s_nop 3")
        for k in range(32):
            e(f"v_cvt_pk_bf16_f32 v{V_Q+k}, v{ACC+2*k}, v{ACC+2*k+1}")

    VMX = V_T

    def k_tile(t):
        e.comment(f"K tile {t}")
        e.wait_vm(kv_tok[t])
        off = (t & 1) * slot_stride
        toks = []
        for s in range(8):
            toks.append(e.lds(f"ds_read_b128 {vr(V_F+4*s,4)}, v{V_KR+s} offset:{off}"))
        if t > 0:
            max_tile(t - 1)
        for s in range(8):
            e.wait_lds(toks[s])
            c = "0" if s == 0 else vr(V_S + 16 * t, 16)
            e(f"v_mfma_f32_32x32x16_bf16 {vr(V_S+16*t,16)}, {vr(V_F+4*s,4)}, {vr(V_Q+4*s,4)}, {c}")
        issue_kv(t + 2)

    def max_tile(t):
        b = V_S + 16 * t
        for ch in range(2):
            bb = b + 8 * ch
            if t == 0:
                e(f"v_max3_f32 v{VMX+ch}, v{bb}, v{bb+1}, v{bb+2}")
                e(f"v_max3_f32 v{VMX+ch}, v{VMX+ch}, v{bb+3}, v{bb+4}")
                e(f"v_max3_f32 v{VMX+ch}, v{VMX+ch}, v{bb+5}, v{bb+6}")
                e(f"v_max_f32 v{VMX+ch}, v{VMX+ch}, v{bb+7}")
            else:
                for k in range(4):
                    e(f"v_max3_f32 v{VMX+ch}, v{VMX+ch}, v{bb+2*k}, v{bb+2*k+1}")

    VM = V_Q
    VMC = V_Q + 1
    VL = V_Q + 2
    VE = V_Q + 8
    VP = V_Q + 16

    def softmax_head():
        e("s_nop 15")
        e("s_nop 3")
        max_tile(7)
        e(f"v_max_f32 v{VMX}, v{VMX}, v{VMX+1}")
        e(f"v_mov_b32 v{VMX+1}, v{VMX}")
        e("s_nop 1")
        e(f"v_permlane32_swap_b32 v{VMX}, v{VMX+1}")
        e("s_nop 1")
        e(f"v_max_f32 v{VM}, v{VMX}, v{VMX+1}")
        e(f"v_mul_f32 v{VMC}, s{S_C}, v{VM}")
        for i in range(4):
            e(f"v_mov_b32 v{VL+i}, 0")

    def exp_tile(t):
        p = VP + 8 * (t & 1)
        for hf in range(2):
            b = V_S + 16 * t + 8 * hf
            for i in range(8):
                e(f"v_fma_f32 v{VE+i}, v{b+i}, s{S_C}, -v{VMC}")
            for i in range(8):
                e(f"v_exp_f32 v{VE+i}, v{VE+i}")
            e("s_nop 0")
            for i in range(8):
                e(f"v_add_f32 v{VL+(i&3)}, v{VL+(i&3)}, v{VE+i}")
            for k in range(4):
                e(f"v_cvt_pk_bf16_f32 v{p+4*hf+k}, v{VE+2*k}, v{VE+2*k+1}")

    OA = [V_S, V_S + 16, V_G, V_G + 16]

    def v_tile(t):
        n = 8 + t
        e.wait_vm(kv_tok[n])
        toks = []
        for u in range(2):
            for dt in range(4):
                for z in range(2):
                    toks.append(e.lds(f"ds_read_b64_tr_b16 {vr(V_F+16*u+4*dt+2*z,2)}, v{V_VR+2*dt+z} offset:{(n&1)*slot_stride+u*4096}"))
        p = VP + 8 * (t & 1)
        for u in range(2):
            for dt in range(4):
                e.wait_lds(toks[8 * u + 2 * dt + 1])
                c = "0" if (t == 0 and u == 0) else vr(OA[dt], 16)
                e(f"v_mfma_f32_32x32x16_bf16 {vr(OA[dt],16)}, {vr(V_F+16*u+4*dt,4)}, {vr(p+4*u,4)}, {c}")
        if n + 2 < 16:
            issue_kv(n + 2)
        if t + 2 < 8:
            exp_tile(t + 2)

    stamp_init(e, 40, S_WAVE, 16 << 20)
    stamp(e, 0, 70)
    if g == 0:
        srd(e, SRD_XB, 26, 27, 1 << 20)
        srd(e, SRD_WQB, 32, 33, 8 << 20)
        ring_setup(1)
        for c in range(NR - 1):
            issue_chunk(c)
        srd(e, SRD_XA, 16, 17, 1 << 20)
        srd(e, SRD_WQA, 22, 23, 8 << 20)
        emit_kv_setup(e, 0)
        for s in range(32):
            e.comment(f"H step {s}")
            e.wait_vm(ch_tok[s])
            barrier()
            if s >= 16:
                qproj_compute(s, s == 16)
            if s + NR - 1 < 32:
                issue_chunk(s + NR - 1)
            if s == 30:
                issue_kv(0)
            if s == 31:
                issue_kv(1)
            if STAMP == 2:
                stamp(e, 1 + s, 70)
        q_finish()
        for t in range(8):
            barrier()
            k_tile(t)
            if STAMP == 2:
                stamp(e, 33 + t, V_T + 2)
        softmax_head()
        exp_tile(0)
        exp_tile(1)
        for t in range(8):
            barrier()
            v_tile(t)
            if STAMP == 2:
                stamp(e, 41 + t, V_T + 2)
    else:
        emit_kv_setup(e, 1)
        issue_kv(0)
        issue_kv(1)
        for s in range(16):
            e.comment(f"S step {s}")
            barrier()
            qproj_compute(s, s == 0)
            if STAMP == 2:
                stamp(e, 1 + s, 120)
        q_finish()
        e(f"s_cmp_lt_u32 s{S_W}, 2")
        e("s_cbranch_scc1 L_k1_S_nost")
        e("s_barrier")
        e.label("L_k1_S_nost")
        for t in range(8):
            barrier()
            k_tile(t)
            if STAMP == 2:
                stamp(e, 17 + 2 * t, V_T + 2)
            if t == 7:
                softmax_head()
                exp_tile(0)
            barrier()
            if t == 7:
                exp_tile(1)
        for t in range(8):
            barrier()
            v_tile(t)
            if STAMP == 2:
                stamp(e, 33 + 2 * t, V_T + 2)
            if t < 7:
                barrier()
        e(f"s_cmp_ge_u32 s{S_W}, 2")
        e("s_cbranch_scc1 L_k1_S_nost2")
        e("s_barrier")
        e.label("L_k1_S_nost2")
        nbar[0] += 1
    assert nbar[0] == 48, nbar[0]
    stamp(e, 60, V_T + 2)
    e(f"v_add_f32 v{VL}, v{VL}, v{VL+1}")
    e(f"v_add_f32 v{VL+2}, v{VL+2}, v{VL+3}")
    e(f"v_add_f32 v{VL}, v{VL}, v{VL+2}")
    e(f"v_mov_b32 v{VL+1}, v{VL}")
    e("s_nop 1")
    e(f"v_permlane32_swap_b32 v{VL}, v{VL+1}")
    e("s_nop 1")
    e(f"v_add_f32 v{VM+1}, v{VL}, v{VL+1}")
    e("s_nop 15")
    lab = f"L_k1_g{g}"
    wstride = 16384 if g == 1 else 8192
    e(f"v_lshlrev_b32 v{V_T}, 4, v0")
    e(f"v_add_u32 v{V_T+1}, s{S_RING}, v{V_T}")
    e(f"s_xor_b32 s{S_T1}, s{S_RING}, {wstride}")
    e(f"v_add_u32 v{V_T+2}, s{S_T1}, v{V_T}")
    e(f"v_lshlrev_b32 v{V_T+3}, 3, v0")
    e(f"v_add_u32 v1, s{S_T1}, v{V_T+3}")
    e(f"v_add_u32 v{V_T+3}, s{S_RING}, v{V_T+3}")
    e(f"ds_write_b64 v{V_T+3}, {vr(VM,2)} offset:{slot_stride}")
    e(f"s_and_b32 s{S_T2}, s{S_W}, 1")
    e(f"s_cmp_eq_u32 s{S_T2}, 1")
    e(f"s_cbranch_scc1 {lab}_j1")
    for k in range(8):
        e(f"ds_write_b128 v{V_T+1}, {vr(V_G+4*k,4)} offset:{k*1024}")
    e(f"s_branch {lab}_jd")
    e.label(f"{lab}_j1")
    for k in range(8):
        e(f"ds_write_b128 v{V_T+1}, {vr(V_S+4*k,4)} offset:{k*1024}")
    e("s_waitcnt lgkmcnt(0)")
    for k in range(32):
        e(f"v_mov_b32 v{V_S+k}, v{V_G+k}")
    e.label(f"{lab}_jd")
    e("s_waitcnt lgkmcnt(0)")
    e("s_barrier")
    PO = V_F
    OACC = V_S
    e(f"ds_read_b64 {vr(VM+2,2)}, v1 offset:{slot_stride}")
    for k in range(8):
        e(f"ds_read_b128 {vr(PO+4*k,4)}, v{V_T+2} offset:{k*1024}")
    e("s_waitcnt lgkmcnt(8)")
    MT, FA_, FB_, LT = VM + 4, VM + 5, VM + 6, VM + 7
    e(f"v_max_f32 v{MT}, v{VM}, v{VM+2}")
    e(f"v_sub_f32 v{FA_}, v{VM}, v{MT}")
    e(f"v_sub_f32 v{FB_}, v{VM+2}, v{MT}")
    e(f"v_mul_f32 v{FA_}, s{S_C}, v{FA_}")
    e(f"v_mul_f32 v{FB_}, s{S_C}, v{FB_}")
    e(f"v_exp_f32 v{FA_}, v{FA_}")
    e(f"v_exp_f32 v{FB_}, v{FB_}")
    e("s_nop 0")
    e(f"v_mul_f32 v{LT}, v{VM+1}, v{FA_}")
    e(f"v_fma_f32 v{LT}, v{VM+3}, v{FB_}, v{LT}")
    e(f"v_rcp_f32 v{LT}, v{LT}")
    e("s_nop 0")
    e(f"v_mul_f32 v{FA_}, v{FA_}, v{LT}")
    e(f"v_mul_f32 v{FB_}, v{FB_}, v{LT}")
    e(f"s_lshl_b32 s{S_T0}, s{SBP}, 5")
    e(f"s_add_u32 s{S_T0}, s{S_T0}, s{SH}")
    e(f"s_lshl_b32 s{S_T0}, s{S_T0}, 14")
    e(f"s_add_u32 s{S_T0}, s{S_T0}, s{S_W4096}")
    e("s_waitcnt lgkmcnt(0)")
    for k in range(32):
        e(f"v_mul_f32 v{OACC+k}, v{OACC+k}, v{FA_}")
        e(f"v_fma_f32 v{OACC+k}, v{PO+k}, v{FB_}, v{OACC+k}")
    for k in range(16):
        e(f"v_cvt_pk_bf16_f32 v{PO+k}, v{OACC+2*k}, v{OACC+2*k+1}")
    for fr in range(4):
        e(f"buffer_store_dwordx4 {vr(PO+4*fr,4)}, v{V_T}, s[{SRD_O}:{SRD_O+3}], s{S_T0} offen offset:{fr*1024}{NT_OST}")
    if STAMP:
        e("s_waitcnt vmcnt(0)")
    stamp(e, 61, V_T + 2)
    e("s_endpgm")


def emit_k1(e):
    emit_k1_prologue(e)
    emit_k1_role(e, 0)
    e.label("L_k1_S")
    emit_k1_role(e, 1)
    e.label("L_k1_end")
    e("s_endpgm")


def emit_k2(e):
    NS = 5
    e.vm_issued = 0
    e.lg_issued = 0
    S_WV, S_BR, S_NT, S_MT = 3, 4, 5, 6
    SRD_A, SRD_W, SRD_OUT = 44, 48, 52
    S_OOFF, S_WOFF, S_W2K, S_T0k, S_T1k = 64, 65, 66, 67, 68
    S_CH = 72
    V_OD, V_WD = 2, 4
    V_OR = 8
    V_WR = 20
    T0, T1, T2, T3, T4, T5 = range(26, 32)
    ACC = 64
    FA = 32
    FB = 48
    e.raw(".globl oproj_kernel")
    e.raw(".p2align 8")
    e.raw(".type oproj_kernel,@function")
    e.label("oproj_kernel")
    e("s_cmp_ge_u32 s2, 256")
    e("s_cbranch_scc1 L_k2_end")
    e("s_load_dwordx2 s[16:17], s[0:1], 32")
    e("s_load_dwordx4 s[20:23], s[0:1], 72")
    e("s_load_dwordx2 s[24:25], s[0:1], 96")
    e("v_lshrrev_b32 v1, 6, v0")
    e("v_and_b32 v0, 63, v0")
    e("s_nop 0")
    e(f"v_readfirstlane_b32 s{S_WV}, v1")
    e("s_and_b32 s7, s2, 7")
    e(f"s_lshr_b32 s{S_BR}, s7, 2")
    e("s_and_b32 s7, s7, 3")
    e("s_lshr_b32 s8, s2, 3")
    e("s_and_b32 s9, s8, 3")
    e("s_lshl_b32 s10, s7, 2")
    e(f"s_add_u32 s{S_NT}, s10, s9")
    e(f"s_lshr_b32 s{S_MT}, s8, 2")
    e(f"s_lshl_b32 s{S_W2K}, s{S_WV}, 11")
    if K2_ROT:
        e(f"s_lshl_b32 s{S_CH}, s{S_MT}, 1")
        e(f"s_lshl_b32 s10, s9, 2")
        e(f"s_add_u32 s{S_CH}, s{S_CH}, s10")
        e(f"s_and_b32 s{S_CH}, s{S_CH}, 15")
    else:
        e(f"s_mov_b32 s{S_CH}, 0")
    e(f"v_lshrrev_b32 v{T0}, 4, v0")
    e(f"v_lshlrev_b32 v{V_OD}, 4, v0")
    e(f"v_lshrrev_b32 v{T2}, 3, v0")
    e(f"v_lshlrev_b32 v{T2}, 11, v{T2}")
    e(f"v_lshrrev_b32 v{T3}, 2, v0")
    e(f"v_and_b32 v{T3}, 4, v{T3}")
    e(f"v_and_b32 v{T4}, 7, v0")
    e(f"v_xor_b32 v{T3}, v{T3}, v{T4}")
    e(f"v_lshlrev_b32 v{T3}, 4, v{T3}")
    e(f"v_add_u32 v{V_WD}, v{T2}, v{T3}")
    e(f"v_add_u32 v{V_WD+1}, {8*2048-1024}, v{V_WD}")
    e(f"v_lshrrev_b32 v{T3}, 5, v0")
    e(f"s_lshr_b32 s{S_T0k}, s{S_WV}, 2")
    e(f"s_lshl_b32 s{S_T1k}, s{S_T0k}, 12")
    e(f"v_add_u32 v{T4}, s{S_T1k}, v{V_OD}")
    e(f"s_and_b32 s{S_T1k}, s{S_WV}, 1")
    e(f"s_lshl_b32 s{S_T1k}, s{S_T1k}, 13")
    e(f"v_add_u32 v{V_OR}, s{S_T1k}, v{T4}")
    for p in (1, 2):
        e(f"v_add_u32 v{V_OR+p}, {65536*p}, v{V_OR}")
    e(f"v_and_b32 v{T1}, 1, v{T0}")
    e(f"v_lshrrev_b32 v{T2}, 2, v0")
    e(f"v_and_b32 v{T2}, 3, v{T2}")
    e(f"v_and_b32 v{T4}, 1, v0")
    e(f"v_lshlrev_b32 v{T4}, 1, v{T4}")
    e(f"v_or_b32 v{T4}, v{T4}, v{T1}")
    e(f"v_lshrrev_b32 v{T5}, 1, v{T2}")
    e(f"s_lshr_b32 s{S_T1k}, s{S_WV}, 1")
    e(f"s_and_b32 s{S_T1k}, s{S_T1k}, 1")
    e(f"v_xor_b32 v{T5}, s{S_T1k}, v{T5}")
    e(f"v_lshlrev_b32 v{T5}, 2, v{T5}")
    e(f"v_or_b32 v{T4}, v{T4}, v{T5}")
    e(f"v_lshlrev_b32 v{T4}, 4, v{T4}")
    e(f"v_lshrrev_b32 v{T5}, 1, v0")
    e(f"v_and_b32 v{T5}, 1, v{T5}")
    e(f"v_lshlrev_b32 v{T5}, 3, v{T5}")
    e(f"v_add_u32 v{T4}, v{T4}, v{T5}")
    e(f"v_lshlrev_b32 v{T5}, 4, v{T3}")
    e(f"v_add_u32 v{T5}, v{T5}, v{T2}")
    e(f"v_lshlrev_b32 v{T5}, 7, v{T5}")
    e(f"v_add_u32 v{T4}, v{T4}, v{T5}")
    e(f"s_lshl_b32 s{S_T1k}, s{S_T0k}, 13")
    e(f"v_add_u32 v{V_WR}, s{S_T1k}, v{T4}")
    e(f"v_add_u32 v{V_WR+1}, 512, v{V_WR}")
    for p in (1, 2):
        for z in range(2):
            e(f"v_add_u32 v{V_WR+2*p+z}, {65536*p}, v{V_WR+z}")
    e("s_waitcnt lgkmcnt(0)")
    e(f"s_cmp_eq_u32 s{S_BR}, 1")
    e(f"s_cselect_b32 s{SRD_W}, s20, s16")
    e(f"s_cselect_b32 s{SRD_W+1}, s21, s17")
    e(f"s_and_b32 s{SRD_W+1}, s{SRD_W+1}, 0xffff")
    e(f"s_mov_b32 s{SRD_W+2}, {8<<20:#x}")
    e(f"s_mov_b32 s{SRD_W+3}, 0x20000")
    srd(e, SRD_A, 24, 25, 8 << 20)
    srd(e, SRD_OUT, 22, 23, 2 << 20)
    stamp_init(e, 24, S_WV, 17 << 20)
    stamp(e, 0, ACC)
    e(f"s_lshl_b32 s{S_OOFF}, s{S_BR}, 22")
    e(f"s_lshl_b32 s{S_T0k}, s{S_MT}, 19")
    e(f"s_add_u32 s{S_OOFF}, s{S_OOFF}, s{S_T0k}")
    e(f"s_add_u32 s{S_OOFF}, s{S_OOFF}, s{S_W2K}")
    e(f"s_lshl_b32 s{S_WOFF}, s{S_WV}, 15")
    e(f"s_lshl_b32 s{S_T0k}, s{S_NT}, 7")
    e(f"s_add_u32 s{S_WOFF}, s{S_WOFF}, s{S_T0k}")

    tok = {}

    def issue(c):
        slot = (c % NS) * 32768
        half = c >> 4
        NT_OLD, NT_WO = globals()["NT_OLD"], globals()["NT_WO"]
        if FT:
            if (c & 15) < 4 and FTO: NT_OLD = " nt"
            if (c & 15) < 2: NT_WO = " nt"
        e(f"s_add_u32 m0, s{S_W2K}, {slot}")
        e(f"s_lshl_b32 s{S_T0k}, s{S_CH}, 14")
        e(f"s_add_u32 s{S_T0k}, s{S_T0k}, s{S_OOFF}")
        e.vmem(f"buffer_load_dwordx4 v{V_OD}, s[{SRD_A}:{SRD_A+3}], s{S_T0k} offen{NT_OLD} lds")
        e.vmem(f"buffer_load_dwordx4 v{V_OD}, s[{SRD_A}:{SRD_A+3}], s{S_T0k} offen offset:1024{NT_OLD} lds")
        e(f"s_add_u32 m0, s{S_W2K}, {slot+16384}")
        e(f"s_lshl_b32 s{S_T0k}, s{S_CH}, 18")
        e(f"s_add_u32 s{S_T0k}, s{S_T0k}, s{S_WOFF}")
        e.vmem(f"buffer_load_dwordx4 v{V_WD}, s[{SRD_W}:{SRD_W+3}], s{S_T0k} offen{NT_WO} lds")
        tok[c] = e.vmem(f"buffer_load_dwordx4 v{V_WD+1}, s[{SRD_W}:{SRD_W+3}], s{S_T0k} offen offset:1024{NT_WO} lds")
        nh = (c + 1) >> 4
        e(f"s_add_u32 s{S_CH}, s{S_CH}, 1")
        e(f"s_and_b32 s{S_CH}, s{S_CH}, 15")
        if nh:
            e(f"s_or_b32 s{S_CH}, s{S_CH}, 16")

    for c in range(NS - 1):
        issue(c)
    for it in range(32):
        e.comment(f"oproj it {it}")
        e.wait_vm(tok[it])
        e("s_barrier")
        slot = (it % NS) * 32768
        toks = []
        for s in range(4):
            for z in range(2):
                off = slot + 16384 + (s >> 1) * 4096 + (s & 1) * 1024
                toks.append(e.lds(f"ds_read_b64_tr_b16 {vr(FA+4*s+2*z,2)}, v{V_WR+2*(off>>16)+z} offset:{off&0xffff}"))
            off = slot + s * 1024
            toks.append(e.lds(f"ds_read_b128 {vr(FB+4*s,4)}, v{V_OR+(off>>16)} offset:{off&0xffff}"))
        for s in range(4):
            e.wait_lds(toks[3 * s + 2])
            c = "0" if (it == 0 and s == 0) else vr(ACC, 16)
            e(f"v_mfma_f32_32x32x16_bf16 {vr(ACC,16)}, {vr(FA+4*s,4)}, {vr(FB+4*s,4)}, {c}")
        if it + NS - 1 < 32:
            issue(it + NS - 1)
        if STAMP == 2:
            stamp(e, 1 + it, 90)
    stamp(e, 60, T0)
    e("s_nop 15")
    e("s_nop 3")
    e("s_barrier")
    e(f"v_lshlrev_b32 v{T0}, 4, v0")
    e(f"v_add_u32 v{T1}, s{S_W2K}, v{T0}")
    e(f"s_xor_b32 s{S_T0k}, s{S_W2K}, {4*2048}")
    e(f"v_add_u32 v{T2}, s{S_T0k}, v{T0}")
    e(f"s_cmp_ge_u32 s{S_WV}, 4")
    e("s_cbranch_scc1 L_k2_kh1")
    e(f"ds_write_b128 v{T1}, {vr(ACC+8,4)}")
    e(f"ds_write_b128 v{T1}, {vr(ACC+12,4)} offset:1024")
    e("s_branch L_k2_khd")
    e.label("L_k2_kh1")
    e(f"ds_write_b128 v{T1}, {vr(ACC,4)}")
    e(f"ds_write_b128 v{T1}, {vr(ACC+4,4)} offset:1024")
    e("s_waitcnt lgkmcnt(0)")
    for k in range(8):
        e(f"v_mov_b32 v{ACC+k}, v{ACC+8+k}")
    e.label("L_k2_khd")
    e("s_waitcnt lgkmcnt(0)")
    e("s_barrier")
    e(f"ds_read_b128 {vr(FA,4)}, v{T2}")
    e(f"ds_read_b128 {vr(FA+4,4)}, v{T2} offset:1024")
    e(f"v_and_b32 v{T3}, 31, v0")
    e(f"v_lshlrev_b32 v{T3}, 12, v{T3}")
    e(f"v_lshrrev_b32 v{T4}, 5, v0")
    e(f"v_lshlrev_b32 v{T4}, 5, v{T4}")
    e(f"v_add_u32 v{T3}, v{T3}, v{T4}")
    e(f"s_lshl_b32 s{S_T0k}, s{S_MT}, 18")
    e(f"s_and_b32 s{S_T1k}, s{S_WV}, 1")
    e(f"s_lshl_b32 s{S_T1k}, s{S_T1k}, 17")
    e(f"s_add_u32 s{S_T0k}, s{S_T0k}, s{S_T1k}")
    e(f"s_lshl_b32 s{S_T1k}, s{S_BR}, 11")
    e(f"s_add_u32 s{S_T0k}, s{S_T0k}, s{S_T1k}")
    e(f"s_lshl_b32 s{S_T1k}, s{S_NT}, 7")
    e(f"s_add_u32 s{S_T0k}, s{S_T0k}, s{S_T1k}")
    e(f"s_lshr_b32 s{S_T1k}, s{S_WV}, 1")
    e(f"s_and_b32 s{S_T1k}, s{S_T1k}, 1")
    e(f"s_lshl_b32 s{S_T1k}, s{S_T1k}, 6")
    e(f"s_add_u32 s{S_T0k}, s{S_T0k}, s{S_T1k}")
    e(f"s_lshr_b32 s{S_T1k}, s{S_WV}, 2")
    e(f"s_lshl_b32 s{S_T1k}, s{S_T1k}, 4")
    e(f"s_add_u32 s{S_T0k}, s{S_T0k}, s{S_T1k}")
    e("s_waitcnt lgkmcnt(0)")
    for k in range(8):
        e(f"v_add_f32 v{ACC+k}, v{ACC+k}, v{FA+k}")
    for k in range(4):
        e(f"v_cvt_pk_bf16_f32 v{FB+k}, v{ACC+2*k}, v{ACC+2*k+1}")
    e(f"buffer_store_dwordx4 {vr(FB,4)}, v{T3}, s[{SRD_OUT}:{SRD_OUT+3}], s{S_T0k} offen")
    if STAMP:
        e("s_waitcnt vmcnt(0)")
    stamp(e, 61, T0)
    e.label("L_k2_end")
    e("s_endpgm")


e = Em()
emit_k1(e)
emit_k2(e)
if ONLY == "k1":
    HEADER = HEADER.replace("; @launch kernel=oproj_kernel grid=(256,1,1) block=(512,1,1) lds=163840\n", "")
if ONLY == "k2":
    HEADER = HEADER.replace("; @launch kernel=attn_kernel grid=(256,1,1) block=(512,1,1) lds=163840\n", "")
txt = HEADER + e.text() + '.section .rodata,"a"\n.p2align 6\n' + kernel_desc("attn_kernel") + ".p2align 6\n" + kernel_desc("oproj_kernel", vgpr=128, accum=128)
open(OUT, "w").write(txt)
print("wrote", OUT, len(txt), "bytes")
```

```python
import sys, math, struct
sys.path.insert(0, "tools")
from asmlib import Em, vr, sr, kernel_desc

OUT = sys.argv[1] if len(sys.argv) > 1 else "concat_heads__gqa_block_cached__mha_block_cached__near_ridge.s"
OPT = dict(a.split("=") for a in sys.argv[2:])


def pol(name, dflt):
    v = OPT.get(name, dflt).strip()
    return "" if v in ("", "0") else " " + v.replace("+", " ")


NT_KVB = pol("nt_kvb", "nt")
NT_KVA = pol("nt_kva", "0")
NT_W = pol("nt_w", "0")
NT_X = pol("nt_x", "0")
NT_WO = pol("nt_wo", "0")
NT_OST = pol("nt_ost", "0")
NT_OLD = pol("nt_old", "0")
STAMP = int(OPT.get("stamp", "0"))
ONLY = OPT.get("only", "")
GRPBIT = int(OPT.get("grpbit", "4"))
FT = int(OPT.get("ft", "0"))
FT2 = int(OPT.get("ft2", "0"))
FT2O = int(OPT.get("ft2o", "0"))
KPRE_STEP = int(OPT.get("kpre_step", "2"))
SRD_ST = 88


def srd(e, dst, lo, hi, size, add=0):
    if add:
        e(f"s_add_u32 s{dst}, s{lo}, {add:#x}")
        e(f"s_addc_u32 s{dst+1}, s{hi}, 0")
        e(f"s_and_b32 s{dst+1}, s{dst+1}, 0xffff")
    else:
        e(f"s_mov_b32 s{dst}, s{lo}")
        e(f"s_and_b32 s{dst+1}, s{hi}, 0xffff")
    e(f"s_mov_b32 s{dst+2}, {size:#x}")
    e(f"s_mov_b32 s{dst+3}, 0x20000")


def stamp_init(e, wsreg, wavereg, base):
    if not STAMP: return
    srd(e, SRD_ST, wsreg, wsreg + 1, 1 << 20, add=base)
    e(f"s_lshl_b32 s92, s2, 3")
    e(f"s_add_u32 s92, s92, s{wavereg}")
    e(f"s_lshl_b32 s92, s92, 8")


def stamp(e, idx, vt=250):
    if not STAMP: return
    e("s_memrealtime s[94:95]")
    e("s_waitcnt lgkmcnt(0)")
    e(f"v_mov_b32 v{vt}, s94")
    e(f"v_mov_b32 v{vt+1}, 0")
    e.vmem(f"buffer_store_dword v{vt}, v{vt+1}, s[{SRD_ST}:{SRD_ST+3}], s92 offen offset:{idx*4}")


def f32bits(x):
    return struct.unpack("<I", struct.pack("<f", x))[0]


CSCALE = (128 ** -0.5) * math.log2(math.e)

HEADER = """; Kernarg layout (104 bytes, ptrs only, base s[0:1]):
; @launch kernel=attn_kernel grid=(256,1,1) block=(512,1,1) lds=163840
; @launch kernel=oproj_kernel grid=(256,1,1) block=(512,1,1) lds=163840
.amdgcn_target "amdgcn-amd-amdhsa--gfx950"
.text
"""

S_W, S_J, S_I, S_XCD, S_CI = 3, 4, 5, 7, 8
S_HA, S_BPA, S_HB, S_BPB = 9, 10, 11, 12
SRD_X, SRD_WQ, SRD_K, SRD_V, SRD_O = 44, 48, 52, 56, 60
S_WQOFF, S_XOFF, S_KVOFF, S_RING, S_C, S_T0, S_T1, S_T2 = 72, 73, 74, 75, 76, 77, 78, 79
S_WQK, S_XK, S_KROT, S_WQM, S_XM = 80, 81, 82, 83, 84
V_WQD = 2
V_XD = 4
V_L16 = 5
V_KVD = 6
V_KR = 10
V_VR = 18
V_T = 26
V_Q = 32
V_F = 64
V_G = 96
V_S = 128
V_WQR = 96
V_XR = 100
V_QXW = 108
V_QB = 112
V_TWQ, V_TX, V_TD = 120, 121, 122
V_TKV = 31
QF = 128
QACC = 192

NR = 4
KPRE1 = int(OPT.get("kpre1", "6"))
FTKV = int(OPT.get("ftkv", "0"))
PACE = int(OPT.get("pace", "1"))


def wq_piece(slot):
    return 98304 + 16384 * slot


def x_piece(slot):
    return 16384 + 24576 * slot


XCH = 98304


def emit_k1_prologue(e):
    e.raw(".globl attn_kernel")
    e.raw(".p2align 8")
    e.raw(".type attn_kernel,@function")
    e.label("attn_kernel")
    e("s_cmp_ge_u32 s2, 256")
    e("s_cbranch_scc1 L_k1_end")
    e("s_load_dwordx16 s[16:31], s[0:1], 0")
    e("s_load_dwordx8 s[32:39], s[0:1], 64")
    e("s_load_dwordx2 s[40:41], s[0:1], 96")
    e("v_lshrrev_b32 v1, 6, v0")
    e("v_and_b32 v0, 63, v0")
    e("s_nop 0")
    e(f"v_readfirstlane_b32 s{S_W}, v1")
    e(f"s_and_b32 s{S_XCD}, s2, 7")
    e(f"s_lshr_b32 s{S_CI}, s2, 3")
    e(f"s_and_b32 s{S_J}, s{S_W}, 3")
    e(f"s_lshr_b32 s{S_I}, s{S_W}, 2")
    e(f"s_mov_b32 s{S_C}, {f32bits(CSCALE):#x}")
    e(f"s_lshl_b32 s{S_WQM}, s{S_W}, 11")
    e(f"s_lshl_b32 s{S_XM}, s{S_W}, 10")
    e(f"s_lshr_b32 s{S_HA}, s{S_XCD}, 1")
    e(f"s_lshl_b32 s{S_HA}, s{S_HA}, 3")
    e(f"s_and_b32 s{S_T0}, s{S_CI}, 7")
    e(f"s_add_u32 s{S_HA}, s{S_HA}, s{S_T0}")
    e(f"s_and_b32 s{S_BPA}, s{S_XCD}, 1")
    e(f"s_lshl_b32 s{S_BPA}, s{S_BPA}, 2")
    e(f"s_lshr_b32 s{S_T0}, s{S_CI}, 3")
    e(f"s_add_u32 s{S_BPA}, s{S_BPA}, s{S_T0}")
    e(f"s_lshl_b32 s{S_HB}, s{S_XCD}, 2")
    e(f"s_and_b32 s{S_T0}, s{S_CI}, 3")
    e(f"s_add_u32 s{S_HB}, s{S_HB}, s{S_T0}")
    e(f"s_lshr_b32 s{S_BPB}, s{S_CI}, 2")
    T0, T1, T2, T3, T4, T5 = 64, 65, 66, 67, 68, 69
    e(f"v_lshlrev_b32 v{V_L16}, 4, v0")
    e(f"v_lshrrev_b32 v{T0}, 4, v0")
    e(f"v_and_b32 v{T1}, 15, v0")
    e(f"v_lshlrev_b32 v{T2}, 2, v{T0}")
    e(f"v_xor_b32 v{T1}, v{T1}, v{T2}")
    e(f"v_lshlrev_b32 v{T1}, 4, v{T1}")
    e(f"v_lshlrev_b32 v{T2}, 8, v{T0}")
    e(f"v_add_u32 v{V_KVD}, v{T1}, v{T2}")
    for n in range(1, 4):
        e(f"v_xor_b32 v{V_KVD+n}, {16*n}, v{V_KVD}")
    e(f"v_lshlrev_b32 v{T2}, 13, v{T0}")
    e(f"v_add_u32 v{T2}, v{T1}, v{T2}")
    e(f"s_lshl_b32 s{S_T0}, s{S_W}, 1")
    e(f"s_and_b32 s{S_T0}, s{S_T0}, 3")
    e(f"s_lshl_b32 s{S_T0}, s{S_T0}, 4")
    e(f"v_xor_b32 v{V_WQD}, s{S_T0}, v{T2}")
    e(f"v_xor_b32 v{V_WQD+1}, 16, v{V_WQD}")
    e(f"v_add_u32 v{V_WQD+1}, {32768-1024}, v{V_WQD+1}")
    e(f"v_lshrrev_b32 v{T2}, 3, v0")
    e(f"v_lshlrev_b32 v{T2}, 11, v{T2}")
    e(f"v_and_b32 v{T3}, 7, v0")
    e(f"v_xor_b32 v{T3}, v{T3}, v{T0}")
    e(f"v_lshlrev_b32 v{T3}, 4, v{T3}")
    e(f"v_add_u32 v{T2}, v{T2}, v{T3}")
    e(f"s_and_b32 s{S_T0}, s{S_W}, 1")
    e(f"s_lshl_b32 s{S_T0}, s{S_T0}, 6")
    e(f"v_xor_b32 v{V_XD}, s{S_T0}, v{T2}")
    e(f"v_and_b32 v{T2}, 31, v0")
    e(f"v_lshrrev_b32 v{T3}, 5, v0")
    e(f"v_lshrrev_b32 v{T4}, 1, v{T2}")
    e(f"v_and_b32 v{T4}, 7, v{T4}")
    e(f"v_xor_b32 v{T4}, v{T4}, v{T3}")
    e(f"v_lshlrev_b32 v{T4}, 4, v{T4}")
    e(f"v_lshlrev_b32 v{T5}, 7, v{T2}")
    e(f"v_add_u32 v{T4}, v{T4}, v{T5}")
    e(f"s_lshl_b32 s{S_T0}, s{S_I}, 12")
    e(f"v_add_u32 v{V_XR}, s{S_T0}, v{T4}")
    for s in range(1, 4):
        e(f"v_xor_b32 v{V_XR+s}, {32*s}, v{V_XR}")
    for s in range(4):
        e(f"v_add_u32 v{V_XR+4+s}, 65536, v{V_XR+s}")
    e(f"v_and_b32 v{T4}, 3, v{T2}")
    e(f"v_lshlrev_b32 v{T4}, 2, v{T4}")
    e(f"v_lshrrev_b32 v{T5}, 2, v{T2}")
    e(f"v_and_b32 v{T5}, 3, v{T5}")
    e(f"v_or_b32 v{T4}, v{T4}, v{T5}")
    e(f"v_xor_b32 v{T4}, v{T4}, v{T3}")
    e(f"v_lshlrev_b32 v{T4}, 4, v{T4}")
    e(f"v_lshlrev_b32 v{T5}, 8, v{T2}")
    e(f"v_add_u32 v{V_KR}, v{T4}, v{T5}")
    for s in range(1, 8):
        e(f"v_xor_b32 v{V_KR+s}, {32*s}, v{V_KR}")
    e(f"v_and_b32 v{T1}, 1, v{T0}")
    e(f"v_lshrrev_b32 v{T2}, 2, v0")
    e(f"v_and_b32 v{T2}, 3, v{T2}")
    e(f"v_and_b32 v{T4}, 1, v0")
    e(f"v_lshrrev_b32 v{T5}, 1, v0")
    e(f"v_and_b32 v{T5}, 1, v{T5}")
    e(f"v_lshlrev_b32 v{T5}, 3, v{T5}")
    e(f"v_lshlrev_b32 v{V_VR+2}, 6, v{T2}")
    e(f"v_add_u32 v{T5}, v{T5}, v{V_VR+2}")
    e(f"v_lshlrev_b32 v1, 1, v{T4}")
    e(f"v_or_b32 v1, v1, v{T1}")
    e(f"v_xor_b32 v1, v1, v{T3}")
    e(f"v_lshlrev_b32 v1, 4, v1")
    e(f"v_add_u32 v1, v1, v{T5}")
    e(f"v_lshlrev_b32 v{V_VR+1}, 2, v{T3}")
    e(f"v_add_u32 v{V_VR+1}, v{V_VR+1}, v{T2}")
    e(f"v_lshlrev_b32 v{V_VR+1}, 8, v{V_VR+1}")
    e(f"v_add_u32 v{V_VR}, v1, v{V_VR+1}")
    for dt in range(4):
        for z in range(2):
            if dt == 0 and z == 0:
                continue
            e(f"v_xor_b32 v{V_VR+2*dt+z}, {64*dt + 32*z + 2048*z}, v{V_VR}")
    e(f"v_lshlrev_b32 v1, 1, v{T1}")
    e(f"v_or_b32 v1, v1, v{T4}")
    e(f"v_lshlrev_b32 v{V_WQR+1}, 1, v{T3}")
    e(f"v_xor_b32 v1, v1, v{V_WQR+1}")
    e(f"v_lshlrev_b32 v1, 4, v1")
    e(f"v_add_u32 v1, v1, v{T5}")
    e(f"v_lshlrev_b32 v{V_WQR+1}, 3, v{T3}")
    e(f"v_add_u32 v{V_WQR+1}, v{V_WQR+1}, v{T2}")
    e(f"v_lshlrev_b32 v{V_WQR+1}, 8, v{V_WQR+1}")
    e(f"v_add_u32 v1, v1, v{V_WQR+1}")
    e(f"s_lshl_b32 s{S_T0}, s{S_J}, 6")
    e(f"v_xor_b32 v1, s{S_T0}, v1")
    e(f"v_add_u32 v{V_WQR}, 65536, v1")
    e(f"v_xor_b32 v{V_WQR+1}, {16+1024}, v{V_WQR}")
    e(f"v_add_u32 v{V_WQR+2}, 65536, v{V_WQR}")
    e(f"v_add_u32 v{V_WQR+3}, 65536, v{V_WQR+1}")
    e(f"s_add_u32 s{S_T0}, s{S_WQM}, {XCH}")
    e(f"v_add_u32 v{V_QXW}, s{S_T0}, v{V_L16}")
    e(f"v_and_b32 v1, 15, v0")
    e(f"v_lshrrev_b32 v{V_TWQ}, 1, v1")
    e(f"v_lshlrev_b32 v{V_TWQ}, 13, v{V_TWQ}")
    e(f"v_and_b32 v1, 1, v1")
    e(f"v_lshlrev_b32 v1, 7, v1")
    e(f"v_add_u32 v{V_TWQ}, v{V_TWQ}, v1")
    e(f"v_and_b32 v{V_TX}, 7, v0")
    e(f"v_lshlrev_b32 v{V_TX}, 11, v{V_TX}")
    e(f"v_lshlrev_b32 v{V_TKV}, 7, v0")
    e("s_waitcnt lgkmcnt(0)")
    stamp_init(e, 40, S_W, 16 << 20)
    e(f"s_cmp_ge_u32 s{S_W}, 4")
    e("s_cbranch_scc1 L_k1_B")


def emit_k1_role(e, g):
    e.vm_issued = 0
    e.lg_issued = 0
    nslot = 3 if g == 1 else 2
    wstride = 24576 if g == 1 else 16384
    rbase = 0 if g == 1 else 98304
    SH, SBP = (S_HA, S_BPA) if g == 0 else (S_HB, S_BPB)
    kv_tok, wq_tok, x_tok = {}, {}, {}

    def ring_setup(br):
        sh, sbp = (S_HA, S_BPA) if br == 0 else (S_HB, S_BPB)
        px, pw = (16, 22) if br == 0 else (26, 32)
        srd(e, SRD_X, px, px + 1, 1 << 20)
        srd(e, SRD_WQ, pw, pw + 1, 8 << 20)
        e(f"s_lshl_b32 s{S_XOFF}, s{sbp}, 17")
        e(f"s_lshl_b32 s{S_T0}, s{S_W}, 14")
        e(f"s_add_u32 s{S_XOFF}, s{S_XOFF}, s{S_T0}")
        e(f"s_lshl_b32 s{S_WQOFF}, s{sh}, 8")
        e(f"s_lshl_b32 s{S_T0}, s{S_W}, 16")
        e(f"s_add_u32 s{S_WQOFF}, s{S_WQOFF}, s{S_T0}")
        if br == 1:
            e(f"s_lshl_b32 s{S_T0}, s{sbp}, 1")
            e(f"s_and_b32 s{S_T1}, s{S_CI}, 3")
            e(f"s_lshl_b32 s{S_T1}, s{S_T1}, 2")
        else:
            e(f"s_lshr_b32 s{S_T0}, s{S_CI}, 3")
            e(f"s_lshl_b32 s{S_T0}, s{S_T0}, 2")
            e(f"s_and_b32 s{S_T1}, s{S_CI}, 7")
            e(f"s_lshl_b32 s{S_T1}, s{S_T1}, 1")
        e(f"s_add_u32 s{S_T0}, s{S_T0}, s{S_T1}")
        e(f"s_and_b32 s{S_T0}, s{S_T0}, 15")
        e(f"s_lshl_b32 s{S_WQK}, s{S_T0}, 19")
        e(f"s_lshl_b32 s{S_XK}, s{S_T0}, 7")

    def issue_chunk(c):
        br = 1 if c < 16 else 0
        if c == 16:
            ring_setup(0)
        cc = c & 15
        ftx = FT and cc < (4 if br == 1 else 2)
        ftw = FT and cc < (2 if br == 1 else 4)
        e(f"s_add_u32 m0, s{S_XM}, {x_piece(c % NR)}")
        e(f"s_add_u32 s{S_T0}, s{S_XOFF}, s{S_XK}")
        x_tok[c] = e.vmem(f"buffer_load_dwordx4 v{V_XD}, s[{SRD_X}:{SRD_X+3}], s{S_T0} offen{' nt' if ftx else NT_X} lds")
        if ftx:
            e.vmem(f"buffer_load_dword v{V_TD}, v{V_TX}, s[{SRD_X}:{SRD_X+3}], s{S_T0} offen")
        e(f"s_add_u32 m0, s{S_WQM}, {wq_piece(c % NR)}")
        e(f"s_add_u32 s{S_T0}, s{S_WQOFF}, s{S_WQK}")
        pw = " nt" if ftw else NT_W
        e.vmem(f"buffer_load_dwordx4 v{V_WQD}, s[{SRD_WQ}:{SRD_WQ+3}], s{S_T0} offen{pw} lds")
        wq_tok[c] = e.vmem(f"buffer_load_dwordx4 v{V_WQD+1}, s[{SRD_WQ}:{SRD_WQ+3}], s{S_T0} offen offset:1024{pw} lds")
        if ftw:
            e.vmem(f"buffer_load_dword v{V_TD}, v{V_TWQ}, s[{SRD_WQ}:{SRD_WQ+3}], s{S_T0} offen")
        e(f"s_add_u32 s{S_XK}, s{S_XK}, 128")
        e(f"s_and_b32 s{S_XK}, s{S_XK}, 2047")
        e(f"s_add_u32 s{S_WQK}, s{S_WQK}, 0x80000")
        e(f"s_and_b32 s{S_WQK}, s{S_WQK}, 0x7fffff")

    def kv_setup():
        pk, pv = (18, 20) if g == 0 else (28, 30)
        kvsize = (8 << 20) if g == 0 else (64 << 20)
        srd(e, SRD_K, pk, pk + 1, kvsize)
        srd(e, SRD_V, pv, pv + 1, kvsize)
        srd(e, SRD_O, 40, 41, 4 << 20, add=g * (4 << 20))
        e(f"s_lshl_b32 s{S_T0}, s{SBP}, 1")
        e(f"s_lshr_b32 s{S_T1}, s{S_J}, 1")
        e(f"s_add_u32 s{S_T0}, s{S_T0}, s{S_T1}")
        if g == 0:
            e(f"s_lshl_b32 s{S_T1}, s{S_T0}, 2")
            e(f"s_lshr_b32 s{S_T2}, s{SH}, 3")
        else:
            e(f"s_lshl_b32 s{S_T1}, s{S_T0}, 5")
            e(f"s_mov_b32 s{S_T2}, s{SH}")
        e(f"s_add_u32 s{S_T1}, s{S_T1}, s{S_T2}")
        e(f"s_lshl_b32 s{S_KVOFF}, s{S_T1}, 17")
        e(f"s_and_b32 s{S_T1}, s{S_J}, 1")
        e(f"s_lshl_b32 s{S_T1}, s{S_T1}, 16")
        e(f"s_add_u32 s{S_KVOFF}, s{S_KVOFF}, s{S_T1}")
        if g == 1:
            e(f"s_add_u32 s{S_KROT}, s{SH}, s{S_T0}")
        else:
            e(f"s_mov_b32 s{S_KROT}, s{SH}")
        e(f"s_and_b32 s{S_KROT}, s{S_KROT}, 7")
        e(f"s_lshl_b32 s{S_KROT}, s{S_KROT}, 13")
        e(f"s_mul_i32 s{S_RING}, s{S_J}, {wstride}")
        if rbase:
            e(f"s_add_u32 s{S_RING}, s{S_RING}, {rbase}")
        for i in range(8):
            e(f"v_add_u32 v{V_KR+i}, s{S_RING}, v{V_KR+i}")
            e(f"v_add_u32 v{V_VR+i}, s{S_RING}, v{V_VR+i}")

    def issue_kv(n):
        nt_kv = NT_KVB if g == 1 else NT_KVA
        srd_ = SRD_K if n < 8 else SRD_V
        t = n & 7
        slot = n % nslot
        e(f"s_add_u32 s{S_T0}, s{S_KROT}, {t*8192}")
        e(f"s_and_b32 s{S_T0}, s{S_T0}, 0xffff")
        e(f"s_add_u32 s{S_T0}, s{S_T0}, s{S_KVOFF}")
        for half in range(2):
            e(f"s_add_u32 m0, s{S_RING}, {slot*8192 + half*4096}")
            if half:
                e(f"s_add_u32 s{S_T0}, s{S_T0}, 4096")
            else:
                e("s_nop 0")
            for q in range(4):
                tok = e.vmem(f"buffer_load_dwordx4 v{V_KVD+q}, s[{srd_}:{srd_+3}], s{S_T0} offen offset:{q*1024}{nt_kv} lds")
        kv_tok[n] = tok

    def touch_kva():
        e(f"s_add_u32 s{S_T0}, s{S_KROT}, s{S_KVOFF}")
        for srd_ in (SRD_K, SRD_V):
            if FTKV == 1:
                e.vmem(f"buffer_load_dword v{V_TD}, v{V_TKV}, s[{srd_}:{srd_+3}], s{S_T0} offen nt")
            e.vmem(f"buffer_load_dword v{V_TD}, v{V_TKV}, s[{srd_}:{srd_+3}], s{S_T0} offen")

    def reads(c):
        fb = QF + 32 * (c & 1)
        slot = c % NR
        for ks in range(4):
            off = wq_piece(slot) + ks * 4096
            for z in range(2):
                e.lds(f"ds_read_b64_tr_b16 {vr(fb+8*ks+2*z,2)}, v{V_WQR+2*((off>>16)-1)+z} offset:{off & 0xffff}")
            off = x_piece(slot)
            e.lds(f"ds_read_b128 {vr(fb+8*ks+4,4)}, v{V_XR+4*(off>>16)+ks} offset:{off & 0xffff}")

    def mfmas(c):
        fb = QF + 32 * (c & 1)
        acc = QACC + (16 if c >= 16 else 0)
        for ks in range(4):
            cc = "0" if ((c & 15) == 0 and ks == 0) else vr(acc, 16)
            e(f"v_mfma_f32_32x32x16_bf16 {vr(acc,16)}, {vr(fb+8*ks,4)}, {vr(fb+8*ks+4,4)}, {cc}")

    stamp(e, 0)
    ring_setup(1)
    for c in range(NR - 1):
        issue_chunk(c)
    kv_setup()
    for s in range(32):
        e.comment(f"qproj step {s}")
        e.wait_vm(max(wq_tok[s], x_tok[s]))
        e("s_barrier")
        reads(s)
        if s > 0:
            mfmas(s - 1)
        if s + NR - 1 < 32:
            issue_chunk(s + NR - 1)
        if g == 1 and s == KPRE_STEP:
            issue_kv(0)
        if g == 1 and s == KPRE1:
            issue_kv(1)
        if g == 0 and FTKV and s == KPRE1:
            touch_kva()
        e("s_waitcnt lgkmcnt(0)")
        if STAMP == 2:
            stamp(e, 1 + s)
    mfmas(31)
    e("s_nop 15")
    e("s_nop 3")
    for k in range(16):
        e(f"v_cvt_pk_bf16_f32 v{V_F+k}, v{QACC+2*k}, v{QACC+2*k+1}")
    for ss in range(2):
        e(f"ds_write_b128 v{V_QXW}, {vr(V_F+4*ss,4)} offset:{16384+ss*1024}")
        e(f"ds_write_b128 v{V_QXW}, {vr(V_F+8+4*ss,4)} offset:{ss*1024}")
    e(f"s_lshr_b32 s{S_T1}, s{S_J}, 1")
    e(f"s_lshl_b32 s{S_T1}, s{S_T1}, 13")
    e(f"s_add_u32 s{S_T1}, s{S_T1}, {XCH + g*16384}")
    e(f"v_add_u32 v{V_T}, s{S_T1}, v{V_L16}")
    e("s_waitcnt lgkmcnt(0)")
    e("s_barrier")
    for s in range(8):
        e(f"ds_read_b128 {vr(V_Q+4*s,4)}, v{V_T} offset:{s*1024}")
    e("s_waitcnt lgkmcnt(0)")
    e("s_barrier")
    for n in range(2 if g == 1 else 0, nslot):
        issue_kv(n)
    stamp(e, 33, V_T + 2)

    VMX = V_T
    VM, VMC, VL, VE, VP = V_Q, V_Q + 1, V_Q + 2, V_Q + 8, V_Q + 16

    def max_tile(t):
        b = V_S + 16 * t
        for ch in range(2):
            bb = b + 8 * ch
            if t == 0:
                e(f"v_max3_f32 v{VMX+ch}, v{bb}, v{bb+1}, v{bb+2}")
                e(f"v_max3_f32 v{VMX+ch}, v{VMX+ch}, v{bb+3}, v{bb+4}")
                e(f"v_max3_f32 v{VMX+ch}, v{VMX+ch}, v{bb+5}, v{bb+6}")
                e(f"v_max_f32 v{VMX+ch}, v{VMX+ch}, v{bb+7}")
            else:
                for k in range(4):
                    e(f"v_max3_f32 v{VMX+ch}, v{VMX+ch}, v{bb+2*k}, v{bb+2*k+1}")

    def exp_tile(t):
        p = VP + 8 * (t & 1)
        for hf in range(2):
            b = V_S + 16 * t + 8 * hf
            for i in range(8):
                e(f"v_fma_f32 v{VE+i}, v{b+i}, s{S_C}, -v{VMC}")
            for i in range(8):
                e(f"v_exp_f32 v{VE+i}, v{VE+i}")
            e("s_nop 0")
            for i in range(8):
                e(f"v_add_f32 v{VL+(i&3)}, v{VL+(i&3)}, v{VE+i}")
            for k in range(4):
                e(f"v_cvt_pk_bf16_f32 v{p+4*hf+k}, v{VE+2*k}, v{VE+2*k+1}")

    for t in range(8):
        e.comment(f"K tile {t}")
        if PACE == 2 and t > 0:
            e("s_barrier")
        e.wait_vm(kv_tok[t])
        if PACE == 1 and t > 0:
            e("s_barrier")
        toks = []
        for s in range(8):
            toks.append(e.lds(f"ds_read_b128 {vr(V_F+4*s,4)}, v{V_KR+s} offset:{(t%nslot)*8192}"))
        if t > 0:
            max_tile(t - 1)
        for s in range(8):
            e.wait_lds(toks[s])
            c = "0" if s == 0 else vr(V_S + 16 * t, 16)
            e(f"v_mfma_f32_32x32x16_bf16 {vr(V_S+16*t,16)}, {vr(V_F+4*s,4)}, {vr(V_Q+4*s,4)}, {c}")
        issue_kv(t + nslot)
        if STAMP == 2:
            stamp(e, 34 + t, V_T + 2)
    e("s_nop 7")
    max_tile(7)
    e(f"v_max_f32 v{VMX}, v{VMX}, v{VMX+1}")
    e(f"v_mov_b32 v{VMX+1}, v{VMX}")
    e("s_nop 1")
    e(f"v_permlane32_swap_b32 v{VMX}, v{VMX+1}")
    e("s_nop 1")
    e(f"v_max_f32 v{VM}, v{VMX}, v{VMX+1}")
    e(f"v_mul_f32 v{VMC}, s{S_C}, v{VM}")
    for i in range(4):
        e(f"v_mov_b32 v{VL+i}, 0")
    exp_tile(0)
    exp_tile(1)
    OA = [V_S, V_S + 16, V_G, V_G + 16]
    for t in range(8):
        n = 8 + t
        if PACE == 2:
            e("s_barrier")
        e.wait_vm(kv_tok[n])
        if PACE == 1:
            e("s_barrier")
        toks = []
        for u in range(2):
            for dt in range(4):
                for z in range(2):
                    toks.append(e.lds(f"ds_read_b64_tr_b16 {vr(V_F+16*u+4*dt+2*z,2)}, v{V_VR+2*dt+z} offset:{(n%nslot)*8192+u*4096}"))
        p = VP + 8 * (t & 1)
        for u in range(2):
            for dt in range(4):
                e.wait_lds(toks[8 * u + 2 * dt + 1])
                c = "0" if (t == 0 and u == 0) else vr(OA[dt], 16)
                e(f"v_mfma_f32_32x32x16_bf16 {vr(OA[dt],16)}, {vr(V_F+16*u+4*dt,4)}, {vr(p+4*u,4)}, {c}")
        if n + nslot < 16:
            issue_kv(n + nslot)
        if t + 2 < 8:
            exp_tile(t + 2)
        if STAMP == 2:
            stamp(e, 42 + t, V_T + 2)
    stamp(e, 60, V_T + 2)
    e(f"v_add_f32 v{VL}, v{VL}, v{VL+1}")
    e(f"v_add_f32 v{VL+2}, v{VL+2}, v{VL+3}")
    e(f"v_add_f32 v{VL}, v{VL}, v{VL+2}")
    e(f"v_mov_b32 v{VL+1}, v{VL}")
    e("s_nop 1")
    e(f"v_permlane32_swap_b32 v{VL}, v{VL+1}")
    e("s_nop 1")
    e(f"v_add_f32 v{VM+1}, v{VL}, v{VL+1}")
    e("s_nop 15")
    lab = f"L_k1_g{g}"
    e(f"v_add_u32 v{V_T+1}, s{S_RING}, v{V_L16}")
    e(f"s_xor_b32 s{S_T1}, s{S_J}, 1")
    e(f"s_mul_i32 s{S_T1}, s{S_T1}, {wstride}")
    if rbase:
        e(f"s_add_u32 s{S_T1}, s{S_T1}, {rbase}")
    e(f"v_add_u32 v{V_T+2}, s{S_T1}, v{V_L16}")
    e(f"v_lshlrev_b32 v{V_T+3}, 3, v0")
    e(f"v_add_u32 v1, s{S_T1}, v{V_T+3}")
    e(f"v_add_u32 v{V_T+3}, s{S_RING}, v{V_T+3}")
    e(f"ds_write_b64 v{V_T+3}, {vr(VM,2)} offset:8192")
    e(f"s_and_b32 s{S_T2}, s{S_J}, 1")
    e(f"s_cmp_eq_u32 s{S_T2}, 1")
    e(f"s_cbranch_scc1 {lab}_j1")
    for k in range(8):
        e(f"ds_write_b128 v{V_T+1}, {vr(V_G+4*k,4)} offset:{k*1024}")
    e(f"s_branch {lab}_jd")
    e.label(f"{lab}_j1")
    for k in range(8):
        e(f"ds_write_b128 v{V_T+1}, {vr(V_S+4*k,4)} offset:{k*1024}")
    e("s_waitcnt lgkmcnt(0)")
    for k in range(32):
        e(f"v_mov_b32 v{V_S+k}, v{V_G+k}")
    e.label(f"{lab}_jd")
    e("s_waitcnt lgkmcnt(0)")
    e("s_barrier")
    PO = V_F
    OACC = V_S
    e(f"ds_read_b64 {vr(VM+2,2)}, v1 offset:8192")
    for k in range(8):
        e(f"ds_read_b128 {vr(PO+4*k,4)}, v{V_T+2} offset:{k*1024}")
    e("s_waitcnt lgkmcnt(8)")
    MT, FA_, FB_, LT = VM + 4, VM + 5, VM + 6, VM + 7
    e(f"v_max_f32 v{MT}, v{VM}, v{VM+2}")
    e(f"v_sub_f32 v{FA_}, v{VM}, v{MT}")
    e(f"v_sub_f32 v{FB_}, v{VM+2}, v{MT}")
    e(f"v_mul_f32 v{FA_}, s{S_C}, v{FA_}")
    e(f"v_mul_f32 v{FB_}, s{S_C}, v{FB_}")
    e(f"v_exp_f32 v{FA_}, v{FA_}")
    e(f"v_exp_f32 v{FB_}, v{FB_}")
    e("s_nop 0")
    e(f"v_mul_f32 v{LT}, v{VM+1}, v{FA_}")
    e(f"v_fma_f32 v{LT}, v{VM+3}, v{FB_}, v{LT}")
    e(f"v_rcp_f32 v{LT}, v{LT}")
    e("s_nop 0")
    e(f"v_mul_f32 v{FA_}, v{FA_}, v{LT}")
    e(f"v_mul_f32 v{FB_}, v{FB_}, v{LT}")
    e(f"s_lshl_b32 s{S_T0}, s{SBP}, 5")
    e(f"s_add_u32 s{S_T0}, s{S_T0}, s{SH}")
    e(f"s_lshl_b32 s{S_T0}, s{S_T0}, 14")
    e(f"s_lshl_b32 s{S_T1}, s{S_J}, 12")
    e(f"s_add_u32 s{S_T0}, s{S_T0}, s{S_T1}")
    e("s_waitcnt lgkmcnt(0)")
    for k in range(32):
        e(f"v_mul_f32 v{OACC+k}, v{OACC+k}, v{FA_}")
        e(f"v_fma_f32 v{OACC+k}, v{PO+k}, v{FB_}, v{OACC+k}")
    for k in range(16):
        e(f"v_cvt_pk_bf16_f32 v{PO+k}, v{OACC+2*k}, v{OACC+2*k+1}")
    for fr in range(4):
        e(f"buffer_store_dwordx4 {vr(PO+4*fr,4)}, v{V_L16}, s[{SRD_O}:{SRD_O+3}], s{S_T0} offen offset:{fr*1024}{NT_OST}")
    if STAMP:
        e("s_waitcnt vmcnt(0)")
    stamp(e, 61, V_T + 2)
    e("s_endpgm")


def emit_k1(e):
    emit_k1_prologue(e)
    emit_k1_role(e, 0)
    e.label("L_k1_B")
    emit_k1_role(e, 1)
    e.label("L_k1_end")
    e("s_endpgm")


def emit_k2(e):
    NS = 5
    e.vm_issued = 0
    e.lg_issued = 0
    S_WV, S_BR, S_NT, S_MT = 3, 4, 5, 6
    SRD_A, SRD_W, SRD_OUT = 44, 48, 52
    S_OOFF, S_WOFF, S_W2K, S_T0k, S_T1k = 64, 65, 66, 67, 68
    S_CH = 72
    V_OD, V_WD = 2, 4
    V_OR = 8
    V_WR = 20
    T0, T1, T2, T3, T4, T5 = range(26, 32)
    ACC = 96
    FA = 32
    e.raw(".globl oproj_kernel")
    e.raw(".p2align 8")
    e.raw(".type oproj_kernel,@function")
    e.label("oproj_kernel")
    e("s_cmp_ge_u32 s2, 256")
    e("s_cbranch_scc1 L_k2_end")
    e("s_load_dwordx2 s[16:17], s[0:1], 32")
    e("s_load_dwordx4 s[20:23], s[0:1], 72")
    e("s_load_dwordx2 s[24:25], s[0:1], 96")
    e("v_lshrrev_b32 v1, 6, v0")
    e("v_and_b32 v0, 63, v0")
    e("s_nop 0")
    e(f"v_readfirstlane_b32 s{S_WV}, v1")
    e("s_and_b32 s7, s2, 7")
    e(f"s_lshr_b32 s{S_BR}, s7, 2")
    e("s_and_b32 s7, s7, 3")
    e("s_lshr_b32 s8, s2, 3")
    e("s_and_b32 s9, s8, 3")
    e("s_lshl_b32 s10, s7, 2")
    e(f"s_add_u32 s{S_NT}, s10, s9")
    e(f"s_lshr_b32 s{S_MT}, s8, 2")
    e(f"s_lshl_b32 s{S_W2K}, s{S_WV}, 11")
    e(f"s_lshl_b32 s{S_CH}, s{S_MT}, 1")
    e(f"s_lshl_b32 s10, s9, 2")
    e(f"s_add_u32 s{S_CH}, s{S_CH}, s10")
    e(f"s_and_b32 s{S_CH}, s{S_CH}, 15")
    e(f"v_lshrrev_b32 v{T0}, 4, v0")
    e(f"v_lshlrev_b32 v{V_OD}, 4, v0")
    e(f"v_lshrrev_b32 v{T2}, 3, v0")
    e(f"v_lshlrev_b32 v{T2}, 11, v{T2}")
    e(f"v_lshrrev_b32 v{T3}, 2, v0")
    e(f"v_and_b32 v{T3}, 4, v{T3}")
    e(f"v_and_b32 v{T4}, 7, v0")
    e(f"v_xor_b32 v{T3}, v{T3}, v{T4}")
    e(f"v_lshlrev_b32 v{T3}, 4, v{T3}")
    e(f"v_add_u32 v{V_WD}, v{T2}, v{T3}")
    e(f"v_add_u32 v{V_WD+1}, {8*2048-1024}, v{V_WD}")
    e(f"v_lshrrev_b32 v{T3}, 5, v0")
    e(f"s_lshr_b32 s{S_T0k}, s{S_WV}, 2")
    e(f"s_lshl_b32 s{S_T1k}, s{S_T0k}, 12")
    e(f"v_add_u32 v{T4}, s{S_T1k}, v{V_OD}")
    e(f"s_and_b32 s{S_T1k}, s{S_WV}, 1")
    e(f"s_lshl_b32 s{S_T1k}, s{S_T1k}, 13")
    e(f"v_add_u32 v{V_OR}, s{S_T1k}, v{T4}")
    for p in (1, 2):
        e(f"v_add_u32 v{V_OR+p}, {65536*p}, v{V_OR}")
    e(f"v_and_b32 v{T1}, 1, v{T0}")
    e(f"v_lshrrev_b32 v{T2}, 2, v0")
    e(f"v_and_b32 v{T2}, 3, v{T2}")
    e(f"v_and_b32 v{T4}, 1, v0")
    e(f"v_lshlrev_b32 v{T4}, 1, v{T4}")
    e(f"v_or_b32 v{T4}, v{T4}, v{T1}")
    e(f"v_lshrrev_b32 v{T5}, 1, v{T2}")
    e(f"s_lshr_b32 s{S_T1k}, s{S_WV}, 1")
    e(f"s_and_b32 s{S_T1k}, s{S_T1k}, 1")
    e(f"v_xor_b32 v{T5}, s{S_T1k}, v{T5}")
    e(f"v_lshlrev_b32 v{T5}, 2, v{T5}")
    e(f"v_or_b32 v{T4}, v{T4}, v{T5}")
    e(f"v_lshlrev_b32 v{T4}, 4, v{T4}")
    e(f"v_lshrrev_b32 v{T5}, 1, v0")
    e(f"v_and_b32 v{T5}, 1, v{T5}")
    e(f"v_lshlrev_b32 v{T5}, 3, v{T5}")
    e(f"v_add_u32 v{T4}, v{T4}, v{T5}")
    e(f"v_lshlrev_b32 v{T5}, 4, v{T3}")
    e(f"v_add_u32 v{T5}, v{T5}, v{T2}")
    e(f"v_lshlrev_b32 v{T5}, 7, v{T5}")
    e(f"v_add_u32 v{T4}, v{T4}, v{T5}")
    e(f"s_lshl_b32 s{S_T1k}, s{S_T0k}, 13")
    e(f"v_add_u32 v{V_WR}, s{S_T1k}, v{T4}")
    e(f"v_add_u32 v{V_WR+1}, 512, v{V_WR}")
    for p in (1, 2):
        for z in range(2):
            e(f"v_add_u32 v{V_WR+2*p+z}, {65536*p}, v{V_WR+z}")
    e(f"v_and_b32 v112, 15, v0")
    e(f"v_lshlrev_b32 v113, 7, v112")
    e(f"v_lshlrev_b32 v112, 11, v112")
    e("s_waitcnt lgkmcnt(0)")
    e(f"s_cmp_eq_u32 s{S_BR}, 1")
    e(f"s_cselect_b32 s{SRD_W}, s20, s16")
    e(f"s_cselect_b32 s{SRD_W+1}, s21, s17")
    e(f"s_and_b32 s{SRD_W+1}, s{SRD_W+1}, 0xffff")
    e(f"s_mov_b32 s{SRD_W+2}, {8<<20:#x}")
    e(f"s_mov_b32 s{SRD_W+3}, 0x20000")
    srd(e, SRD_A, 24, 25, 8 << 20)
    srd(e, SRD_OUT, 22, 23, 2 << 20)
    stamp_init(e, 24, S_WV, 17 << 20)
    stamp(e, 0, 120)
    e(f"s_lshl_b32 s{S_OOFF}, s{S_BR}, 22")
    e(f"s_lshl_b32 s{S_T0k}, s{S_MT}, 19")
    e(f"s_add_u32 s{S_OOFF}, s{S_OOFF}, s{S_T0k}")
    e(f"s_add_u32 s{S_OOFF}, s{S_OOFF}, s{S_W2K}")
    e(f"s_lshl_b32 s{S_WOFF}, s{S_WV}, 15")
    e(f"s_lshl_b32 s{S_T0k}, s{S_NT}, 7")
    e(f"s_add_u32 s{S_WOFF}, s{S_WOFF}, s{S_T0k}")

    tok = {}

    def issue(c):
        slot = (c % NS) * 32768
        e(f"s_add_u32 m0, s{S_W2K}, {slot}")
        e(f"s_lshl_b32 s{S_T0k}, s{S_CH}, 14")
        e(f"s_add_u32 s{S_T0k}, s{S_T0k}, s{S_OOFF}")
        fo = FT2O and (c & 15) < 4
        fw = FT2 and (c & 15) < 2
        po = " nt" if fo else NT_OLD
        pw = " nt" if fw else NT_WO
        e.vmem(f"buffer_load_dwordx4 v{V_OD}, s[{SRD_A}:{SRD_A+3}], s{S_T0k} offen{po} lds")
        e.vmem(f"buffer_load_dwordx4 v{V_OD}, s[{SRD_A}:{SRD_A+3}], s{S_T0k} offen offset:1024{po} lds")
        if fo:
            e.vmem(f"buffer_load_dword v114, v113, s[{SRD_A}:{SRD_A+3}], s{S_T0k} offen")
        e(f"s_add_u32 m0, s{S_W2K}, {slot+16384}")
        e(f"s_lshl_b32 s{S_T0k}, s{S_CH}, 18")
        e(f"s_add_u32 s{S_T0k}, s{S_T0k}, s{S_WOFF}")
        e.vmem(f"buffer_load_dwordx4 v{V_WD}, s[{SRD_W}:{SRD_W+3}], s{S_T0k} offen{pw} lds")
        tok[c] = e.vmem(f"buffer_load_dwordx4 v{V_WD+1}, s[{SRD_W}:{SRD_W+3}], s{S_T0k} offen offset:1024{pw} lds")
        if fw:
            e.vmem(f"buffer_load_dword v114, v112, s[{SRD_W}:{SRD_W+3}], s{S_T0k} offen")
        nh = (c + 1) >> 4
        e(f"s_add_u32 s{S_CH}, s{S_CH}, 1")
        e(f"s_and_b32 s{S_CH}, s{S_CH}, 15")
        if nh:
            e(f"s_or_b32 s{S_CH}, s{S_CH}, 16")

    def reads(it):
        slot = (it % NS) * 32768
        fb = FA + 32 * (it & 1)
        for s in range(4):
            for z in range(2):
                off = slot + 16384 + (s >> 1) * 4096 + (s & 1) * 1024
                e.lds(f"ds_read_b64_tr_b16 {vr(fb+4*s+2*z,2)}, v{V_WR+2*(off>>16)+z} offset:{off&0xffff}")
            off = slot + s * 1024
            e.lds(f"ds_read_b128 {vr(fb+16+4*s,4)}, v{V_OR+(off>>16)} offset:{off&0xffff}")

    def mfmas(it):
        fb = FA + 32 * (it & 1)
        for s in range(4):
            c = "0" if (it == 0 and s == 0) else vr(ACC, 16)
            e(f"v_mfma_f32_32x32x16_bf16 {vr(ACC,16)}, {vr(fb+4*s,4)}, {vr(fb+16+4*s,4)}, {c}")

    for c in range(NS - 1):
        issue(c)
    for it in range(32):
        e.comment(f"oproj it {it}")
        e.wait_vm(tok[it])
        e("s_barrier")
        reads(it)
        if it > 0:
            mfmas(it - 1)
        if it + NS - 1 < 32:
            issue(it + NS - 1)
        e("s_waitcnt lgkmcnt(0)")
        if STAMP == 2:
            stamp(e, 1 + it, 120)
    mfmas(31)
    stamp(e, 60, 120)
    e("s_nop 15")
    e("s_nop 3")
    e("s_barrier")
    e(f"v_lshlrev_b32 v{T0}, 4, v0")
    e(f"v_add_u32 v{T1}, s{S_W2K}, v{T0}")
    e(f"s_xor_b32 s{S_T0k}, s{S_W2K}, {4*2048}")
    e(f"v_add_u32 v{T2}, s{S_T0k}, v{T0}")
    e(f"s_cmp_ge_u32 s{S_WV}, 4")
    e("s_cbranch_scc1 L_k2_kh1")
    e(f"ds_write_b128 v{T1}, {vr(ACC+8,4)}")
    e(f"ds_write_b128 v{T1}, {vr(ACC+12,4)} offset:1024")
    e("s_branch L_k2_khd")
    e.label("L_k2_kh1")
    e(f"ds_write_b128 v{T1}, {vr(ACC,4)}")
    e(f"ds_write_b128 v{T1}, {vr(ACC+4,4)} offset:1024")
    e("s_waitcnt lgkmcnt(0)")
    for k in range(8):
        e(f"v_mov_b32 v{ACC+k}, v{ACC+8+k}")
    e.label("L_k2_khd")
    e("s_waitcnt lgkmcnt(0)")
    e("s_barrier")
    e(f"ds_read_b128 {vr(FA,4)}, v{T2}")
    e(f"ds_read_b128 {vr(FA+4,4)}, v{T2} offset:1024")
    e(f"v_and_b32 v{T3}, 31, v0")
    e(f"v_lshlrev_b32 v{T3}, 12, v{T3}")
    e(f"v_lshrrev_b32 v{T4}, 5, v0")
    e(f"v_lshlrev_b32 v{T4}, 5, v{T4}")
    e(f"v_add_u32 v{T3}, v{T3}, v{T4}")
    e(f"s_lshl_b32 s{S_T0k}, s{S_MT}, 18")
    e(f"s_and_b32 s{S_T1k}, s{S_WV}, 1")
    e(f"s_lshl_b32 s{S_T1k}, s{S_T1k}, 17")
    e(f"s_add_u32 s{S_T0k}, s{S_T0k}, s{S_T1k}")
    e(f"s_lshl_b32 s{S_T1k}, s{S_BR}, 11")
    e(f"s_add_u32 s{S_T0k}, s{S_T0k}, s{S_T1k}")
    e(f"s_lshl_b32 s{S_T1k}, s{S_NT}, 7")
    e(f"s_add_u32 s{S_T0k}, s{S_T0k}, s{S_T1k}")
    e(f"s_lshr_b32 s{S_T1k}, s{S_WV}, 1")
    e(f"s_and_b32 s{S_T1k}, s{S_T1k}, 1")
    e(f"s_lshl_b32 s{S_T1k}, s{S_T1k}, 6")
    e(f"s_add_u32 s{S_T0k}, s{S_T0k}, s{S_T1k}")
    e(f"s_lshr_b32 s{S_T1k}, s{S_WV}, 2")
    e(f"s_lshl_b32 s{S_T1k}, s{S_T1k}, 4")
    e(f"s_add_u32 s{S_T0k}, s{S_T0k}, s{S_T1k}")
    e("s_waitcnt lgkmcnt(0)")
    for k in range(8):
        e(f"v_add_f32 v{ACC+k}, v{ACC+k}, v{FA+k}")
    for k in range(4):
        e(f"v_cvt_pk_bf16_f32 v{FA+16+k}, v{ACC+2*k}, v{ACC+2*k+1}")
    e(f"buffer_store_dwordx4 {vr(FA+16,4)}, v{T3}, s[{SRD_OUT}:{SRD_OUT+3}], s{S_T0k} offen")
    if STAMP:
        e("s_waitcnt vmcnt(0)")
    stamp(e, 61, 120)
    e.label("L_k2_end")
    e("s_endpgm")


e = Em()
emit_k1(e)
emit_k2(e)
if ONLY == "k1":
    HEADER = HEADER.replace("; @launch kernel=oproj_kernel grid=(256,1,1) block=(512,1,1) lds=163840\n", "")
if ONLY == "k2":
    HEADER = HEADER.replace("; @launch kernel=attn_kernel grid=(256,1,1) block=(512,1,1) lds=163840\n", "")
txt = HEADER + e.text() + '.section .rodata,"a"\n.p2align 6\n' + kernel_desc("attn_kernel") + ".p2align 6\n" + kernel_desc("oproj_kernel", vgpr=128, accum=128)
open(OUT, "w").write(txt)
print("wrote", OUT, len(txt), "bytes")
```

```python
import sys, math, struct
sys.path.insert(0, "tools")
from asmlib import Em, vr, sr, kernel_desc

OUT = sys.argv[1] if len(sys.argv) > 1 else "concat_heads__gqa_block_cached__mha_block_cached__near_ridge.s"
OPT = dict(a.split("=") for a in sys.argv[2:])


def pol(name, dflt):
    v = OPT.get(name, dflt).strip()
    return "" if v in ("", "0") else " " + v.replace("+", " ")


NT_KVB = pol("nt_kvb", "nt")
NT_KVA = pol("nt_kva", "0")
NT_W = pol("nt_w", "0")
NT_X = pol("nt_x", "0")
NT_WO = pol("nt_wo", "0")
NT_OST = pol("nt_ost", "sc1")
NT_OLD = pol("nt_old", "sc1")
STAMP = int(OPT.get("stamp", "0"))
ONLY = OPT.get("only", "")
GRPBIT = int(OPT.get("grpbit", "4"))
FT = int(OPT.get("ft", "0"))
FT2 = int(OPT.get("ft2", "0"))
FT2O = int(OPT.get("ft2o", "0"))
KPRE_STEP = int(OPT.get("kpre_step", "2"))
SRD_ST = 88


def srd(e, dst, lo, hi, size, add=0):
    if add:
        e(f"s_add_u32 s{dst}, s{lo}, {add:#x}")
        e(f"s_addc_u32 s{dst+1}, s{hi}, 0")
        e(f"s_and_b32 s{dst+1}, s{dst+1}, 0xffff")
    else:
        e(f"s_mov_b32 s{dst}, s{lo}")
        e(f"s_and_b32 s{dst+1}, s{hi}, 0xffff")
    e(f"s_mov_b32 s{dst+2}, {size:#x}")
    e(f"s_mov_b32 s{dst+3}, 0x20000")


def stamp_init(e, wsreg, wavereg, base):
    if not STAMP: return
    srd(e, SRD_ST, wsreg, wsreg + 1, 1 << 20, add=base)
    e(f"s_lshl_b32 s92, s2, 3")
    e(f"s_add_u32 s92, s92, s{wavereg}")
    e(f"s_lshl_b32 s92, s92, 8")


def stamp(e, idx, vt=250):
    if not STAMP: return
    e("s_memrealtime s[94:95]")
    e("s_waitcnt lgkmcnt(0)")
    e(f"v_mov_b32 v{vt}, s94")
    e(f"v_mov_b32 v{vt+1}, 0")
    e.vmem(f"buffer_store_dword v{vt}, v{vt+1}, s[{SRD_ST}:{SRD_ST+3}], s92 offen offset:{idx*4}")


def f32bits(x):
    return struct.unpack("<I", struct.pack("<f", x))[0]


CSCALE = (128 ** -0.5) * math.log2(math.e)

HEADER = """; Kernarg layout (104 bytes, ptrs only, base s[0:1]):
; @launch grid=(256,1,1) block=(512,1,1) lds=163840
.amdgcn_target "amdgcn-amd-amdhsa--gfx950"
.text
"""

S_W, S_J, S_I, S_XCD, S_CI = 3, 4, 5, 7, 8
S_HA, S_BPA, S_HB, S_BPB = 9, 10, 11, 12
SRD_X, SRD_WQ, SRD_K, SRD_V, SRD_O = 44, 48, 52, 56, 60
S_WQOFF, S_XOFF, S_KVOFF, S_RING, S_C, S_T0, S_T1, S_T2 = 72, 73, 74, 75, 76, 77, 78, 79
S_WQK, S_XK, S_KROT, S_WQM, S_XM = 80, 81, 82, 83, 84
V_WQD = 2
V_XD = 4
V_L16 = 5
V_KVD = 6
V_KR = 10
V_VR = 18
V_T = 26
V_Q = 32
V_F = 64
V_G = 96
V_S = 128
V_WQR = 96
V_XR = 100
V_QXW = 108
V_QB = 112
V_TWQ, V_TX, V_TD = 120, 121, 122
V_TKV = 31
QF = 128
QACC = 192

NR = 4
KPRE1 = int(OPT.get("kpre1", "6"))
FTKV = int(OPT.get("ftkv", "0"))
PACE = int(OPT.get("pace", "1"))
AROT = int(OPT.get("arot", "1"))
FTA = int(OPT.get("fta", "0"))
STAG = int(OPT.get("stag", "1"))
FLAG_OFF = 8 << 20


def wq_piece(slot):
    return 98304 + 16384 * slot


def x_piece(slot):
    return 16384 + 24576 * slot


XCH = 98304


def emit_k1_prologue(e):
    e.raw(".globl concat_heads__gqa_block_cached__mha_block_cached__near_ridge_kernel")
    e.raw(".p2align 8")
    e.raw(".type concat_heads__gqa_block_cached__mha_block_cached__near_ridge_kernel,@function")
    e.label("concat_heads__gqa_block_cached__mha_block_cached__near_ridge_kernel")
    e("s_cmp_ge_u32 s2, 256")
    e("s_cbranch_scc1 L_k1_end")
    e("s_load_dwordx16 s[16:31], s[0:1], 0")
    e("s_load_dwordx8 s[32:39], s[0:1], 64")
    e("s_load_dwordx2 s[40:41], s[0:1], 96")
    e("v_lshrrev_b32 v1, 6, v0")
    e("v_and_b32 v0, 63, v0")
    e("s_nop 0")
    e(f"v_readfirstlane_b32 s{S_W}, v1")
    e(f"s_and_b32 s{S_XCD}, s2, 7")
    e(f"s_lshr_b32 s{S_CI}, s2, 3")
    e(f"s_and_b32 s{S_J}, s{S_W}, 3")
    e(f"s_lshr_b32 s{S_I}, s{S_W}, 2")
    e(f"s_mov_b32 s{S_C}, {f32bits(CSCALE):#x}")
    e(f"s_lshl_b32 s{S_WQM}, s{S_W}, 11")
    e(f"s_lshl_b32 s{S_XM}, s{S_W}, 10")
    e(f"s_lshr_b32 s{S_HA}, s{S_XCD}, 1")
    e(f"s_lshl_b32 s{S_HA}, s{S_HA}, 3")
    e(f"s_and_b32 s{S_T0}, s{S_CI}, 7")
    e(f"s_add_u32 s{S_HA}, s{S_HA}, s{S_T0}")
    e(f"s_and_b32 s{S_BPA}, s{S_XCD}, 1")
    e(f"s_lshl_b32 s{S_BPA}, s{S_BPA}, 2")
    e(f"s_lshr_b32 s{S_T0}, s{S_CI}, 3")
    e(f"s_add_u32 s{S_BPA}, s{S_BPA}, s{S_T0}")
    e(f"s_lshl_b32 s{S_HB}, s{S_XCD}, 2")
    e(f"s_and_b32 s{S_T0}, s{S_CI}, 3")
    e(f"s_add_u32 s{S_HB}, s{S_HB}, s{S_T0}")
    e(f"s_lshr_b32 s{S_BPB}, s{S_CI}, 2")
    T0, T1, T2, T3, T4, T5 = 64, 65, 66, 67, 68, 69
    e(f"v_lshlrev_b32 v{V_L16}, 4, v0")
    e(f"v_lshrrev_b32 v{T0}, 4, v0")
    e(f"v_and_b32 v{T1}, 15, v0")
    e(f"v_lshlrev_b32 v{T2}, 2, v{T0}")
    e(f"v_xor_b32 v{T1}, v{T1}, v{T2}")
    e(f"v_lshlrev_b32 v{T1}, 4, v{T1}")
    e(f"v_lshlrev_b32 v{T2}, 8, v{T0}")
    e(f"v_add_u32 v{V_KVD}, v{T1}, v{T2}")
    for n in range(1, 4):
        e(f"v_xor_b32 v{V_KVD+n}, {16*n}, v{V_KVD}")
    e(f"v_lshlrev_b32 v{T2}, 13, v{T0}")
    e(f"v_add_u32 v{T2}, v{T1}, v{T2}")
    e(f"s_lshl_b32 s{S_T0}, s{S_W}, 1")
    e(f"s_and_b32 s{S_T0}, s{S_T0}, 3")
    e(f"s_lshl_b32 s{S_T0}, s{S_T0}, 4")
    e(f"v_xor_b32 v{V_WQD}, s{S_T0}, v{T2}")
    e(f"v_xor_b32 v{V_WQD+1}, 16, v{V_WQD}")
    e(f"v_add_u32 v{V_WQD+1}, {32768-1024}, v{V_WQD+1}")
    e(f"v_lshrrev_b32 v{T2}, 3, v0")
    e(f"v_lshlrev_b32 v{T2}, 11, v{T2}")
    e(f"v_and_b32 v{T3}, 7, v0")
    e(f"v_xor_b32 v{T3}, v{T3}, v{T0}")
    e(f"v_lshlrev_b32 v{T3}, 4, v{T3}")
    e(f"v_add_u32 v{T2}, v{T2}, v{T3}")
    e(f"s_and_b32 s{S_T0}, s{S_W}, 1")
    e(f"s_lshl_b32 s{S_T0}, s{S_T0}, 6")
    e(f"v_xor_b32 v{V_XD}, s{S_T0}, v{T2}")
    e(f"v_and_b32 v{T2}, 31, v0")
    e(f"v_lshrrev_b32 v{T3}, 5, v0")
    e(f"v_lshrrev_b32 v{T4}, 1, v{T2}")
    e(f"v_and_b32 v{T4}, 7, v{T4}")
    e(f"v_xor_b32 v{T4}, v{T4}, v{T3}")
    e(f"v_lshlrev_b32 v{T4}, 4, v{T4}")
    e(f"v_lshlrev_b32 v{T5}, 7, v{T2}")
    e(f"v_add_u32 v{T4}, v{T4}, v{T5}")
    e(f"s_lshl_b32 s{S_T0}, s{S_I}, 12")
    e(f"v_add_u32 v{V_XR}, s{S_T0}, v{T4}")
    for s in range(1, 4):
        e(f"v_xor_b32 v{V_XR+s}, {32*s}, v{V_XR}")
    for s in range(4):
        e(f"v_add_u32 v{V_XR+4+s}, 65536, v{V_XR+s}")
    e(f"v_and_b32 v{T4}, 3, v{T2}")
    e(f"v_lshlrev_b32 v{T4}, 2, v{T4}")
    e(f"v_lshrrev_b32 v{T5}, 2, v{T2}")
    e(f"v_and_b32 v{T5}, 3, v{T5}")
    e(f"v_or_b32 v{T4}, v{T4}, v{T5}")
    e(f"v_xor_b32 v{T4}, v{T4}, v{T3}")
    e(f"v_lshlrev_b32 v{T4}, 4, v{T4}")
    e(f"v_lshlrev_b32 v{T5}, 8, v{T2}")
    e(f"v_add_u32 v{V_KR}, v{T4}, v{T5}")
    for s in range(1, 8):
        e(f"v_xor_b32 v{V_KR+s}, {32*s}, v{V_KR}")
    e(f"v_and_b32 v{T1}, 1, v{T0}")
    e(f"v_lshrrev_b32 v{T2}, 2, v0")
    e(f"v_and_b32 v{T2}, 3, v{T2}")
    e(f"v_and_b32 v{T4}, 1, v0")
    e(f"v_lshrrev_b32 v{T5}, 1, v0")
    e(f"v_and_b32 v{T5}, 1, v{T5}")
    e(f"v_lshlrev_b32 v{T5}, 3, v{T5}")
    e(f"v_lshlrev_b32 v{V_VR+2}, 6, v{T2}")
    e(f"v_add_u32 v{T5}, v{T5}, v{V_VR+2}")
    e(f"v_lshlrev_b32 v1, 1, v{T4}")
    e(f"v_or_b32 v1, v1, v{T1}")
    e(f"v_xor_b32 v1, v1, v{T3}")
    e(f"v_lshlrev_b32 v1, 4, v1")
    e(f"v_add_u32 v1, v1, v{T5}")
    e(f"v_lshlrev_b32 v{V_VR+1}, 2, v{T3}")
    e(f"v_add_u32 v{V_VR+1}, v{V_VR+1}, v{T2}")
    e(f"v_lshlrev_b32 v{V_VR+1}, 8, v{V_VR+1}")
    e(f"v_add_u32 v{V_VR}, v1, v{V_VR+1}")
    for dt in range(4):
        for z in range(2):
            if dt == 0 and z == 0:
                continue
            e(f"v_xor_b32 v{V_VR+2*dt+z}, {64*dt + 32*z + 2048*z}, v{V_VR}")
    e(f"v_lshlrev_b32 v1, 1, v{T1}")
    e(f"v_or_b32 v1, v1, v{T4}")
    e(f"v_lshlrev_b32 v{V_WQR+1}, 1, v{T3}")
    e(f"v_xor_b32 v1, v1, v{V_WQR+1}")
    e(f"v_lshlrev_b32 v1, 4, v1")
    e(f"v_add_u32 v1, v1, v{T5}")
    e(f"v_lshlrev_b32 v{V_WQR+1}, 3, v{T3}")
    e(f"v_add_u32 v{V_WQR+1}, v{V_WQR+1}, v{T2}")
    e(f"v_lshlrev_b32 v{V_WQR+1}, 8, v{V_WQR+1}")
    e(f"v_add_u32 v1, v1, v{V_WQR+1}")
    e(f"s_lshl_b32 s{S_T0}, s{S_J}, 6")
    e(f"v_xor_b32 v1, s{S_T0}, v1")
    e(f"v_add_u32 v{V_WQR}, 65536, v1")
    e(f"v_xor_b32 v{V_WQR+1}, {16+1024}, v{V_WQR}")
    e(f"v_add_u32 v{V_WQR+2}, 65536, v{V_WQR}")
    e(f"v_add_u32 v{V_WQR+3}, 65536, v{V_WQR+1}")
    e(f"s_add_u32 s{S_T0}, s{S_WQM}, {XCH}")
    e(f"v_add_u32 v{V_QXW}, s{S_T0}, v{V_L16}")
    e(f"v_and_b32 v1, 15, v0")
    e(f"v_lshrrev_b32 v{V_TWQ}, 1, v1")
    e(f"v_lshlrev_b32 v{V_TWQ}, 13, v{V_TWQ}")
    e(f"v_and_b32 v1, 1, v1")
    e(f"v_lshlrev_b32 v1, 7, v1")
    e(f"v_add_u32 v{V_TWQ}, v{V_TWQ}, v1")
    e(f"v_and_b32 v{V_TX}, 7, v0")
    e(f"v_lshlrev_b32 v{V_TX}, 11, v{V_TX}")
    e(f"v_lshlrev_b32 v{V_TKV}, 7, v0")
    e("s_waitcnt lgkmcnt(0)")
    stamp_init(e, 40, S_W, 16 << 20)
    srd(e, 64, 40, 41, 65536, add=FLAG_OFF)
    e(f"s_cmp_lg_u32 s{S_W}, 0")
    e("s_cbranch_scc1 L_k1_noflag")
    e("s_lshl_b32 s68, s2, 8")
    e("v_mov_b32 v1, 0")
    e("s_mov_b64 exec, 1")
    e("buffer_store_dword v1, v1, s[64:67], s68 offen sc1")
    e("s_mov_b64 exec, -1")
    e.label("L_k1_noflag")
    e(f"s_cmp_ge_u32 s{S_W}, 4")
    e("s_cbranch_scc1 L_k1_B")


def emit_k1_role(e, g):
    e.vm_issued = 0
    e.lg_issued = 0
    nslot = 3 if g == 1 else 2
    wstride = 24576 if g == 1 else 16384
    rbase = 0 if g == 1 else 98304
    SH, SBP = (S_HA, S_BPA) if g == 0 else (S_HB, S_BPB)
    kv_tok, wq_tok, x_tok = {}, {}, {}

    def ring_setup(br):
        sh, sbp = (S_HA, S_BPA) if br == 0 else (S_HB, S_BPB)
        px, pw = (16, 22) if br == 0 else (26, 32)
        srd(e, SRD_X, px, px + 1, 1 << 20)
        srd(e, SRD_WQ, pw, pw + 1, 8 << 20)
        e(f"s_lshl_b32 s{S_XOFF}, s{sbp}, 17")
        e(f"s_lshl_b32 s{S_T0}, s{S_W}, 14")
        e(f"s_add_u32 s{S_XOFF}, s{S_XOFF}, s{S_T0}")
        e(f"s_lshl_b32 s{S_WQOFF}, s{sh}, 8")
        e(f"s_lshl_b32 s{S_T0}, s{S_W}, 16")
        e(f"s_add_u32 s{S_WQOFF}, s{S_WQOFF}, s{S_T0}")
        if br == 1:
            e(f"s_lshl_b32 s{S_T0}, s{sbp}, 1")
            e(f"s_and_b32 s{S_T1}, s{S_CI}, 3")
            e(f"s_lshl_b32 s{S_T1}, s{S_T1}, 2")
        else:
            e(f"s_lshr_b32 s{S_T0}, s{S_CI}, 3")
            e(f"s_lshl_b32 s{S_T0}, s{S_T0}, 2")
            e(f"s_and_b32 s{S_T1}, s{S_CI}, 7")
            e(f"s_lshl_b32 s{S_T1}, s{S_T1}, 1")
        e(f"s_add_u32 s{S_T0}, s{S_T0}, s{S_T1}")
        e(f"s_and_b32 s{S_T0}, s{S_T0}, 15")
        e(f"s_lshl_b32 s{S_WQK}, s{S_T0}, 19")
        e(f"s_lshl_b32 s{S_XK}, s{S_T0}, 7")

    def issue_chunk(c):
        br = 1 if c < 16 else 0
        if c == 16:
            ring_setup(0)
        cc = c & 15
        ftx = FT and cc < (4 if br == 1 else 2)
        ftw = FT and cc < (2 if br == 1 else 4)
        e(f"s_add_u32 m0, s{S_XM}, {x_piece(c % NR)}")
        e(f"s_add_u32 s{S_T0}, s{S_XOFF}, s{S_XK}")
        x_tok[c] = e.vmem(f"buffer_load_dwordx4 v{V_XD}, s[{SRD_X}:{SRD_X+3}], s{S_T0} offen{' nt' if ftx else NT_X} lds")
        if ftx:
            e.vmem(f"buffer_load_dword v{V_TD}, v{V_TX}, s[{SRD_X}:{SRD_X+3}], s{S_T0} offen")
        e(f"s_add_u32 m0, s{S_WQM}, {wq_piece(c % NR)}")
        e(f"s_add_u32 s{S_T0}, s{S_WQOFF}, s{S_WQK}")
        pw = " nt" if ftw else NT_W
        e.vmem(f"buffer_load_dwordx4 v{V_WQD}, s[{SRD_WQ}:{SRD_WQ+3}], s{S_T0} offen{pw} lds")
        wq_tok[c] = e.vmem(f"buffer_load_dwordx4 v{V_WQD+1}, s[{SRD_WQ}:{SRD_WQ+3}], s{S_T0} offen offset:1024{pw} lds")
        if ftw:
            e.vmem(f"buffer_load_dword v{V_TD}, v{V_TWQ}, s[{SRD_WQ}:{SRD_WQ+3}], s{S_T0} offen")
        e(f"s_add_u32 s{S_XK}, s{S_XK}, 128")
        e(f"s_and_b32 s{S_XK}, s{S_XK}, 2047")
        e(f"s_add_u32 s{S_WQK}, s{S_WQK}, 0x80000")
        e(f"s_and_b32 s{S_WQK}, s{S_WQK}, 0x7fffff")

    def kv_setup():
        pk, pv = (18, 20) if g == 0 else (28, 30)
        kvsize = (8 << 20) if g == 0 else (64 << 20)
        srd(e, SRD_K, pk, pk + 1, kvsize)
        srd(e, SRD_V, pv, pv + 1, kvsize)
        srd(e, SRD_O, 40, 41, 4 << 20, add=g * (4 << 20))
        e(f"s_lshl_b32 s{S_T0}, s{SBP}, 1")
        e(f"s_lshr_b32 s{S_T1}, s{S_J}, 1")
        e(f"s_add_u32 s{S_T0}, s{S_T0}, s{S_T1}")
        if g == 0:
            e(f"s_lshl_b32 s{S_T1}, s{S_T0}, 2")
            e(f"s_lshr_b32 s{S_T2}, s{SH}, 3")
        else:
            e(f"s_lshl_b32 s{S_T1}, s{S_T0}, 5")
            e(f"s_mov_b32 s{S_T2}, s{SH}")
        e(f"s_add_u32 s{S_T1}, s{S_T1}, s{S_T2}")
        e(f"s_lshl_b32 s{S_KVOFF}, s{S_T1}, 17")
        e(f"s_and_b32 s{S_T1}, s{S_J}, 1")
        e(f"s_lshl_b32 s{S_T1}, s{S_T1}, 16")
        e(f"s_add_u32 s{S_KVOFF}, s{S_KVOFF}, s{S_T1}")
        if g == 1:
            e(f"s_add_u32 s{S_KROT}, s{SH}, s{S_T0}")
        elif AROT:
            e(f"s_mov_b32 s{S_KROT}, s{SH}")
        else:
            e(f"s_mov_b32 s{S_KROT}, s{S_T0}")
        e(f"s_and_b32 s{S_KROT}, s{S_KROT}, 7")
        e(f"s_lshl_b32 s{S_KROT}, s{S_KROT}, 13")
        e(f"s_mul_i32 s{S_RING}, s{S_J}, {wstride}")
        if rbase:
            e(f"s_add_u32 s{S_RING}, s{S_RING}, {rbase}")
        for i in range(8):
            e(f"v_add_u32 v{V_KR+i}, s{S_RING}, v{V_KR+i}")
            e(f"v_add_u32 v{V_VR+i}, s{S_RING}, v{V_VR+i}")

    def issue_kv(n):
        nt_kv = NT_KVB if g == 1 else NT_KVA
        srd_ = SRD_K if n < 8 else SRD_V
        t = n & 7
        slot = n % nslot
        fta = FTA and g == 0 and t == 0
        if fta:
            nt_kv = " nt"
        e(f"s_add_u32 s{S_T0}, s{S_KROT}, {t*8192}")
        e(f"s_and_b32 s{S_T0}, s{S_T0}, 0xffff")
        e(f"s_add_u32 s{S_T0}, s{S_T0}, s{S_KVOFF}")
        for half in range(2):
            e(f"s_add_u32 m0, s{S_RING}, {slot*8192 + half*4096}")
            if half:
                e(f"s_add_u32 s{S_T0}, s{S_T0}, 4096")
            else:
                e("s_nop 0")
            for q in range(4):
                tok = e.vmem(f"buffer_load_dwordx4 v{V_KVD+q}, s[{srd_}:{srd_+3}], s{S_T0} offen offset:{q*1024}{nt_kv} lds")
        kv_tok[n] = tok
        if fta:
            e(f"s_sub_u32 s{S_T0}, s{S_T0}, 4096")
            e.vmem(f"buffer_load_dword v1, v{V_TKV}, s[{srd_}:{srd_+3}], s{S_T0} offen")

    def touch_kva():
        e(f"s_add_u32 s{S_T0}, s{S_KROT}, s{S_KVOFF}")
        for srd_ in (SRD_K, SRD_V):
            if FTKV == 1:
                e.vmem(f"buffer_load_dword v{V_TD}, v{V_TKV}, s[{srd_}:{srd_+3}], s{S_T0} offen nt")
            e.vmem(f"buffer_load_dword v{V_TD}, v{V_TKV}, s[{srd_}:{srd_+3}], s{S_T0} offen")

    def reads(c):
        fb = QF + 32 * (c & 1)
        slot = c % NR
        for ks in range(4):
            off = wq_piece(slot) + ks * 4096
            for z in range(2):
                e.lds(f"ds_read_b64_tr_b16 {vr(fb+8*ks+2*z,2)}, v{V_WQR+2*((off>>16)-1)+z} offset:{off & 0xffff}")
            off = x_piece(slot)
            e.lds(f"ds_read_b128 {vr(fb+8*ks+4,4)}, v{V_XR+4*(off>>16)+ks} offset:{off & 0xffff}")

    def mfmas(c):
        fb = QF + 32 * (c & 1)
        acc = QACC + (16 if c >= 16 else 0)
        for ks in range(4):
            cc = "0" if ((c & 15) == 0 and ks == 0) else vr(acc, 16)
            e(f"v_mfma_f32_32x32x16_bf16 {vr(acc,16)}, {vr(fb+8*ks,4)}, {vr(fb+8*ks+4,4)}, {cc}")

    stamp(e, 0)
    ring_setup(1)
    for c in range(NR - 1):
        issue_chunk(c)
    kv_setup()
    for s in range(32):
        e.comment(f"qproj step {s}")
        e.wait_vm(max(wq_tok[s], x_tok[s]))
        e("s_barrier")
        early = STAG and g == 0
        if early and s + NR - 1 < 32:
            issue_chunk(s + NR - 1)
        reads(s)
        if s > 0:
            mfmas(s - 1)
        if not early and s + NR - 1 < 32:
            issue_chunk(s + NR - 1)
        if g == 1 and s == KPRE_STEP:
            issue_kv(0)
        if g == 1 and s == KPRE1:
            issue_kv(1)
        if g == 0 and FTKV and s == KPRE1:
            touch_kva()
        e("s_waitcnt lgkmcnt(0)")
        if STAMP == 2:
            stamp(e, 1 + s)
    mfmas(31)
    e("s_nop 15")
    e("s_nop 3")
    for k in range(16):
        e(f"v_cvt_pk_bf16_f32 v{V_F+k}, v{QACC+2*k}, v{QACC+2*k+1}")
    for ss in range(2):
        e(f"ds_write_b128 v{V_QXW}, {vr(V_F+4*ss,4)} offset:{16384+ss*1024}")
        e(f"ds_write_b128 v{V_QXW}, {vr(V_F+8+4*ss,4)} offset:{ss*1024}")
    e(f"s_lshr_b32 s{S_T1}, s{S_J}, 1")
    e(f"s_lshl_b32 s{S_T1}, s{S_T1}, 13")
    e(f"s_add_u32 s{S_T1}, s{S_T1}, {XCH + g*16384}")
    e(f"v_add_u32 v{V_T}, s{S_T1}, v{V_L16}")
    e("s_waitcnt lgkmcnt(0)")
    e("s_barrier")
    for s in range(8):
        e(f"ds_read_b128 {vr(V_Q+4*s,4)}, v{V_T} offset:{s*1024}")
    e("s_waitcnt lgkmcnt(0)")
    e("s_barrier")
    for n in range(2 if g == 1 else 0, nslot):
        issue_kv(n)
    stamp(e, 33, V_T + 2)

    VMX = V_T
    VM, VMC, VL, VE, VP = V_Q, V_Q + 1, V_Q + 2, V_Q + 8, V_Q + 16

    def max_tile(t):
        b = V_S + 16 * t
        for ch in range(2):
            bb = b + 8 * ch
            if t == 0:
                e(f"v_max3_f32 v{VMX+ch}, v{bb}, v{bb+1}, v{bb+2}")
                e(f"v_max3_f32 v{VMX+ch}, v{VMX+ch}, v{bb+3}, v{bb+4}")
                e(f"v_max3_f32 v{VMX+ch}, v{VMX+ch}, v{bb+5}, v{bb+6}")
                e(f"v_max_f32 v{VMX+ch}, v{VMX+ch}, v{bb+7}")
            else:
                for k in range(4):
                    e(f"v_max3_f32 v{VMX+ch}, v{VMX+ch}, v{bb+2*k}, v{bb+2*k+1}")

    def exp_tile(t):
        p = VP + 8 * (t & 1)
        for hf in range(2):
            b = V_S + 16 * t + 8 * hf
            for i in range(8):
                e(f"v_fma_f32 v{VE+i}, v{b+i}, s{S_C}, -v{VMC}")
            for i in range(8):
                e(f"v_exp_f32 v{VE+i}, v{VE+i}")
            e("s_nop 0")
            for i in range(8):
                e(f"v_add_f32 v{VL+(i&3)}, v{VL+(i&3)}, v{VE+i}")
            for k in range(4):
                e(f"v_cvt_pk_bf16_f32 v{p+4*hf+k}, v{VE+2*k}, v{VE+2*k+1}")

    for t in range(8):
        e.comment(f"K tile {t}")
        if PACE == 2 and t > 0:
            e("s_barrier")
        e.wait_vm(kv_tok[t])
        if PACE == 1 and t > 0:
            e("s_barrier")
        toks = []
        for s in range(8):
            toks.append(e.lds(f"ds_read_b128 {vr(V_F+4*s,4)}, v{V_KR+s} offset:{(t%nslot)*8192}"))
        if t > 0:
            max_tile(t - 1)
        for s in range(8):
            e.wait_lds(toks[s])
            c = "0" if s == 0 else vr(V_S + 16 * t, 16)
            e(f"v_mfma_f32_32x32x16_bf16 {vr(V_S+16*t,16)}, {vr(V_F+4*s,4)}, {vr(V_Q+4*s,4)}, {c}")
        issue_kv(t + nslot)
        if STAMP == 2:
            stamp(e, 34 + t, V_T + 2)
    e("s_nop 7")
    max_tile(7)
    e(f"v_max_f32 v{VMX}, v{VMX}, v{VMX+1}")
    e(f"v_mov_b32 v{VMX+1}, v{VMX}")
    e("s_nop 1")
    e(f"v_permlane32_swap_b32 v{VMX}, v{VMX+1}")
    e("s_nop 1")
    e(f"v_max_f32 v{VM}, v{VMX}, v{VMX+1}")
    e(f"v_mul_f32 v{VMC}, s{S_C}, v{VM}")
    for i in range(4):
        e(f"v_mov_b32 v{VL+i}, 0")
    exp_tile(0)
    exp_tile(1)
    OA = [V_S, V_S + 16, V_G, V_G + 16]
    for t in range(8):
        n = 8 + t
        if PACE == 2:
            e("s_barrier")
        e.wait_vm(kv_tok[n])
        if PACE == 1:
            e("s_barrier")
        toks = []
        for u in range(2):
            for dt in range(4):
                for z in range(2):
                    toks.append(e.lds(f"ds_read_b64_tr_b16 {vr(V_F+16*u+4*dt+2*z,2)}, v{V_VR+2*dt+z} offset:{(n%nslot)*8192+u*4096}"))
        p = VP + 8 * (t & 1)
        for u in range(2):
            for dt in range(4):
                e.wait_lds(toks[8 * u + 2 * dt + 1])
                c = "0" if (t == 0 and u == 0) else vr(OA[dt], 16)
                e(f"v_mfma_f32_32x32x16_bf16 {vr(OA[dt],16)}, {vr(V_F+16*u+4*dt,4)}, {vr(p+4*u,4)}, {c}")
        if n + nslot < 16:
            issue_kv(n + nslot)
        if t + 2 < 8:
            exp_tile(t + 2)
        if STAMP == 2:
            stamp(e, 42 + t, V_T + 2)
    stamp(e, 60, V_T + 2)
    e(f"v_add_f32 v{VL}, v{VL}, v{VL+1}")
    e(f"v_add_f32 v{VL+2}, v{VL+2}, v{VL+3}")
    e(f"v_add_f32 v{VL}, v{VL}, v{VL+2}")
    e(f"v_mov_b32 v{VL+1}, v{VL}")
    e("s_nop 1")
    e(f"v_permlane32_swap_b32 v{VL}, v{VL+1}")
    e("s_nop 1")
    e(f"v_add_f32 v{VM+1}, v{VL}, v{VL+1}")
    e("s_nop 15")
    lab = f"L_k1_g{g}"
    e(f"v_add_u32 v{V_T+1}, s{S_RING}, v{V_L16}")
    e(f"s_xor_b32 s{S_T1}, s{S_J}, 1")
    e(f"s_mul_i32 s{S_T1}, s{S_T1}, {wstride}")
    if rbase:
        e(f"s_add_u32 s{S_T1}, s{S_T1}, {rbase}")
    e(f"v_add_u32 v{V_T+2}, s{S_T1}, v{V_L16}")
    e(f"v_lshlrev_b32 v{V_T+3}, 3, v0")
    e(f"v_add_u32 v1, s{S_T1}, v{V_T+3}")
    e(f"v_add_u32 v{V_T+3}, s{S_RING}, v{V_T+3}")
    e(f"ds_write_b64 v{V_T+3}, {vr(VM,2)} offset:8192")
    e(f"s_and_b32 s{S_T2}, s{S_J}, 1")
    e(f"s_cmp_eq_u32 s{S_T2}, 1")
    e(f"s_cbranch_scc1 {lab}_j1")
    for k in range(8):
        e(f"ds_write_b128 v{V_T+1}, {vr(V_G+4*k,4)} offset:{k*1024}")
    e(f"s_branch {lab}_jd")
    e.label(f"{lab}_j1")
    for k in range(8):
        e(f"ds_write_b128 v{V_T+1}, {vr(V_S+4*k,4)} offset:{k*1024}")
    e("s_waitcnt lgkmcnt(0)")
    for k in range(32):
        e(f"v_mov_b32 v{V_S+k}, v{V_G+k}")
    e.label(f"{lab}_jd")
    e("s_waitcnt lgkmcnt(0)")
    e("s_barrier")
    PO = V_F
    OACC = V_S
    e(f"ds_read_b64 {vr(VM+2,2)}, v1 offset:8192")
    for k in range(8):
        e(f"ds_read_b128 {vr(PO+4*k,4)}, v{V_T+2} offset:{k*1024}")
    e("s_waitcnt lgkmcnt(8)")
    MT, FA_, FB_, LT = VM + 4, VM + 5, VM + 6, VM + 7
    e(f"v_max_f32 v{MT}, v{VM}, v{VM+2}")
    e(f"v_sub_f32 v{FA_}, v{VM}, v{MT}")
    e(f"v_sub_f32 v{FB_}, v{VM+2}, v{MT}")
    e(f"v_mul_f32 v{FA_}, s{S_C}, v{FA_}")
    e(f"v_mul_f32 v{FB_}, s{S_C}, v{FB_}")
    e(f"v_exp_f32 v{FA_}, v{FA_}")
    e(f"v_exp_f32 v{FB_}, v{FB_}")
    e("s_nop 0")
    e(f"v_mul_f32 v{LT}, v{VM+1}, v{FA_}")
    e(f"v_fma_f32 v{LT}, v{VM+3}, v{FB_}, v{LT}")
    e(f"v_rcp_f32 v{LT}, v{LT}")
    e("s_nop 0")
    e(f"v_mul_f32 v{FA_}, v{FA_}, v{LT}")
    e(f"v_mul_f32 v{FB_}, v{FB_}, v{LT}")
    e(f"s_lshl_b32 s{S_T0}, s{SBP}, 5")
    e(f"s_add_u32 s{S_T0}, s{S_T0}, s{SH}")
    e(f"s_lshl_b32 s{S_T0}, s{S_T0}, 14")
    e(f"s_lshl_b32 s{S_T1}, s{S_J}, 12")
    e(f"s_add_u32 s{S_T0}, s{S_T0}, s{S_T1}")
    e("s_waitcnt lgkmcnt(0)")
    for k in range(32):
        e(f"v_mul_f32 v{OACC+k}, v{OACC+k}, v{FA_}")
        e(f"v_fma_f32 v{OACC+k}, v{PO+k}, v{FB_}, v{OACC+k}")
    for k in range(16):
        e(f"v_cvt_pk_bf16_f32 v{PO+k}, v{OACC+2*k}, v{OACC+2*k+1}")
    for fr in range(4):
        e(f"buffer_store_dwordx4 {vr(PO+4*fr,4)}, v{V_L16}, s[{SRD_O}:{SRD_O+3}], s{S_T0} offen offset:{fr*1024}{NT_OST}")
    if g == 0:
        e("s_branch L_oproj")


def emit_k1(e):
    emit_k1_prologue(e)
    emit_k1_role(e, 0)
    e.label("L_k1_B")
    emit_k1_role(e, 1)
    emit_oproj(e)
    e.label("L_k1_end")
    e("s_endpgm")


PRE_SS = int(OPT.get("pre_ss", "2"))


def emit_oproj(e):
    NSS = 5
    e.label("L_oproj")
    e.vm_issued = 0
    e.lg_issued = 0
    S_BR, S_NT, S_MT, S_KQ, S_MP = 9, 10, 11, 12, 13
    SRD_A, SRD_W, SRD_OUT, SRD_D = 44, 48, 52, 56
    S_OOFF, S_WOFF, S_W2K, S_T0k, S_T1k, S_CHW, S_CHO, S_CNT = 72, 73, 74, 77, 78, 80, 81, 82
    V_WD = 6
    V_WR = 8
    T0, T1, T2, T3, T4, T5 = range(20, 26)
    V_RW, V_RR, V_OA, V_DB = 26, 27, 28, 29
    FA = 128
    FO = 192
    ACC = 96
    e(f"s_lshr_b32 s{S_BR}, s{S_XCD}, 2")
    e(f"s_and_b32 s{S_T0k}, s{S_XCD}, 3")
    e(f"s_and_b32 s{S_T1k}, s{S_CI}, 3")
    e(f"s_lshl_b32 s{S_NT}, s{S_T0k}, 2")
    e(f"s_add_u32 s{S_NT}, s{S_NT}, s{S_T1k}")
    e(f"s_lshr_b32 s{S_MT}, s{S_CI}, 2")
    e(f"s_lshl_b32 s{S_CHW}, s{S_MT}, 1")
    e(f"s_lshl_b32 s{S_T1k}, s{S_T1k}, 2")
    e(f"s_add_u32 s{S_CHW}, s{S_CHW}, s{S_T1k}")
    e(f"s_and_b32 s{S_CHW}, s{S_CHW}, 15")
    e(f"s_mov_b32 s{S_CHO}, s{S_CHW}")
    e(f"s_lshl_b32 s{S_W2K}, s{S_W}, 11")
    e(f"s_lshr_b32 s{S_KQ}, s{S_W}, 1")
    e(f"s_and_b32 s{S_MP}, s{S_W}, 1")
    e(f"s_cmp_eq_u32 s{S_BR}, 1")
    e(f"s_cselect_b32 s{SRD_W}, s34, s24")
    e(f"s_cselect_b32 s{SRD_W+1}, s35, s25")
    e(f"s_and_b32 s{SRD_W+1}, s{SRD_W+1}, 0xffff")
    e(f"s_mov_b32 s{SRD_W+2}, {8<<20:#x}")
    e(f"s_mov_b32 s{SRD_W+3}, 0x20000")
    srd(e, SRD_A, 40, 41, 8 << 20)
    srd(e, SRD_OUT, 36, 37, 2 << 20)
    srd(e, SRD_D, 38, 39, 256)
    e(f"s_lshl_b32 s{S_OOFF}, s{S_BR}, 22")
    e(f"s_lshl_b32 s{S_T0k}, s{S_MT}, 19")
    e(f"s_add_u32 s{S_OOFF}, s{S_OOFF}, s{S_T0k}")
    e(f"s_lshl_b32 s{S_T0k}, s{S_MP}, 13")
    e(f"s_add_u32 s{S_OOFF}, s{S_OOFF}, s{S_T0k}")
    e(f"s_lshl_b32 s{S_T0k}, s{S_KQ}, 11")
    e(f"s_add_u32 s{S_OOFF}, s{S_OOFF}, s{S_T0k}")
    e(f"s_lshl_b32 s{S_WOFF}, s{S_W}, 15")
    e(f"s_lshl_b32 s{S_T0k}, s{S_NT}, 7")
    e(f"s_add_u32 s{S_WOFF}, s{S_WOFF}, s{S_T0k}")
    e(f"v_lshrrev_b32 v{T0}, 4, v0")
    e(f"v_lshrrev_b32 v{T2}, 3, v0")
    e(f"v_lshlrev_b32 v{T2}, 11, v{T2}")
    e(f"v_lshrrev_b32 v{T3}, 2, v0")
    e(f"v_and_b32 v{T3}, 4, v{T3}")
    e(f"v_and_b32 v{T4}, 7, v0")
    e(f"v_xor_b32 v{T3}, v{T3}, v{T4}")
    e(f"v_lshlrev_b32 v{T3}, 4, v{T3}")
    e(f"v_add_u32 v{V_WD}, v{T2}, v{T3}")
    e(f"v_add_u32 v{V_WD+1}, {8*2048-1024}, v{V_WD}")
    e(f"v_lshrrev_b32 v{T3}, 5, v0")
    e(f"v_and_b32 v{T1}, 1, v{T0}")
    e(f"v_lshrrev_b32 v{T2}, 2, v0")
    e(f"v_and_b32 v{T2}, 3, v{T2}")
    e(f"v_and_b32 v{T4}, 1, v0")
    e(f"v_lshlrev_b32 v{T4}, 1, v{T4}")
    e(f"v_or_b32 v{T4}, v{T4}, v{T1}")
    e(f"v_lshrrev_b32 v{T5}, 1, v{T2}")
    e(f"v_lshlrev_b32 v{T5}, 2, v{T5}")
    e(f"v_or_b32 v{T4}, v{T4}, v{T5}")
    e(f"v_lshlrev_b32 v{T4}, 4, v{T4}")
    e(f"v_lshrrev_b32 v{T5}, 1, v0")
    e(f"v_and_b32 v{T5}, 1, v{T5}")
    e(f"v_lshlrev_b32 v{T5}, 3, v{T5}")
    e(f"v_add_u32 v{T4}, v{T4}, v{T5}")
    e(f"v_lshlrev_b32 v{T5}, 4, v{T3}")
    e(f"v_add_u32 v{T5}, v{T5}, v{T2}")
    e(f"v_lshlrev_b32 v{T5}, 7, v{T5}")
    e(f"v_add_u32 v{T4}, v{T4}, v{T5}")
    e(f"s_lshl_b32 s{S_T1k}, s{S_KQ}, 12")
    e(f"v_add_u32 v{V_WR}, s{S_T1k}, v{T4}")
    e(f"v_add_u32 v{V_WR+1}, 512, v{V_WR}")
    e(f"v_xor_b32 v{V_WR+2}, 64, v{V_WR}")
    e(f"v_xor_b32 v{V_WR+3}, 64, v{V_WR+1}")
    for p in (1, 2):
        for i in range(4):
            e(f"v_add_u32 v{V_WR+4*p+i}, {65536*p}, v{V_WR+i}")
    e(f"s_lshl_b32 s{S_T0k}, s{S_W}, 13")
    e(f"v_add_u32 v{V_RW}, s{S_T0k}, v{V_L16}")
    e(f"s_lshl_b32 s{S_T0k}, s{S_MP}, 13")
    e(f"s_lshl_b32 s{S_T1k}, s{S_KQ}, 11")
    e(f"s_add_u32 s{S_T0k}, s{S_T0k}, s{S_T1k}")
    e(f"v_add_u32 v{V_RR}, s{S_T0k}, v{V_L16}")
    e(f"v_and_b32 v{V_OA}, 31, v0")
    e(f"v_lshlrev_b32 v{V_OA}, 12, v{V_OA}")
    e(f"v_lshlrev_b32 v{T4}, 5, v{T3}")
    e(f"v_add_u32 v{V_OA}, v{V_OA}, v{T4}")
    e(f"v_lshlrev_b32 v{V_DB}, 2, v0")
    e(f"v_mov_b32 v{T0}, 1")
    e(f"s_lshr_b32 s{S_T1k}, s2, 2")
    e(f"s_lshl_b32 s{S_T1k}, s{S_T1k}, 2")
    e(f"v_mov_b32 v{T1}, s{S_T1k}")
    if STAMP == 3:
        e("s_memrealtime s[96:97]")
    e("s_waitcnt vmcnt(0)")
    if STAMP == 3:
        e("s_memrealtime s[98:99]")
        e("s_waitcnt lgkmcnt(0)")
        e(f"v_mov_b32 v30, s96")
        e(f"v_mov_b32 v31, s98")
        e(f"v_mov_b32 v32, 0")
        e.vmem(f"buffer_store_dwordx2 v[30:31], v32, s[{SRD_ST}:{SRD_ST+3}], s92 offen offset:{58*4}")
    e("s_barrier")
    e(f"s_cmp_lg_u32 s{S_W}, 0")
    e("s_cbranch_scc1 L_op_noadd")
    e(f"v_mov_b32 v{T1}, 0")
    e("s_mov_b64 exec, 1")
    e(f"buffer_atomic_add v{T0}, v{T1}, s[{SRD_D}:{SRD_D+3}], 0 offen sc0")
    e("s_waitcnt vmcnt(0)")
    e(f"v_readfirstlane_b32 s{S_CNT}, v{T0}")
    e("s_mov_b64 exec, -1")
    e("s_nop 3")
    e(f"s_cmp_lg_u32 s{S_CNT}, 255")
    e("s_cbranch_scc1 L_op_noadd")
    e(f"v_mov_b32 v{T0}, 1")
    e(f"v_lshlrev_b32 v{T1}, 8, v0")
    for k in range(4):
        e(f"s_mov_b32 s{S_CNT}, {k*16384}")
        e(f"buffer_store_dword v{T0}, v{T1}, s[64:67], s{S_CNT} offen sc1")
    e.label("L_op_noadd")
    stamp(e, 61, 30)

    wtok, otok = {}, {}

    def issue_w(s):
        for hh in range(2):
            c = 2 * s + hh
            slot = (s % NSS) * 32768 + hh * 16384
            e(f"s_add_u32 m0, s{S_W2K}, {slot}")
            e(f"s_lshl_b32 s{S_T0k}, s{S_CHW}, 18")
            e(f"s_add_u32 s{S_T0k}, s{S_T0k}, s{S_WOFF}")
            e.vmem(f"buffer_load_dwordx4 v{V_WD}, s[{SRD_W}:{SRD_W+3}], s{S_T0k} offen{NT_WO} lds")
            wtok[s] = e.vmem(f"buffer_load_dwordx4 v{V_WD+1}, s[{SRD_W}:{SRD_W+3}], s{S_T0k} offen offset:1024{NT_WO} lds")
            e(f"s_add_u32 s{S_CHW}, s{S_CHW}, 1")
            e(f"s_and_b32 s{S_CHW}, s{S_CHW}, 15")
            if (c + 1) >> 4:
                e(f"s_or_b32 s{S_CHW}, s{S_CHW}, 16")

    def issue_o(s):
        fo = FO + 16 * (s & 3)
        for hh in range(2):
            c = 2 * s + hh
            e(f"s_lshl_b32 s{S_T0k}, s{S_CHO}, 14")
            e(f"s_add_u32 s{S_T0k}, s{S_T0k}, s{S_OOFF}")
            for ee in range(2):
                otok[s] = e.vmem(f"buffer_load_dwordx4 {vr(fo+8*hh+4*ee,4)}, v{V_L16}, s[{SRD_A}:{SRD_A+3}], s{S_T0k} offen offset:{ee*1024}{NT_OLD}")
            e(f"s_add_u32 s{S_CHO}, s{S_CHO}, 1")
            e(f"s_and_b32 s{S_CHO}, s{S_CHO}, 15")
            if (c + 1) >> 4:
                e(f"s_or_b32 s{S_CHO}, s{S_CHO}, 16")

    def reads(s):
        fb = FA + 32 * (s & 1)
        for hh in range(2):
            for ee in range(2):
                off = (s % NSS) * 32768 + hh * 16384 + ee * 1024
                for ntp in range(2):
                    for z in range(2):
                        e.lds(f"ds_read_b64_tr_b16 {vr(fb+16*hh+8*ee+4*ntp+2*z,2)}, v{V_WR+4*(off>>16)+2*ntp+z} offset:{off&0xffff}")

    def mfmas(s):
        fb = FA + 32 * (s & 1)
        fo = FO + 16 * (s & 3)
        for hh in range(2):
            for ee in range(2):
                for ntp in range(2):
                    c = "0" if (s == 0 and hh == 0 and ee == 0) else vr(ACC + 16 * ntp, 16)
                    e(f"v_mfma_f32_32x32x16_bf16 {vr(ACC+16*ntp,16)}, {vr(fb+16*hh+8*ee+4*ntp,4)}, {vr(fo+8*hh+4*ee,4)}, {c}")

    for s in range(PRE_SS):
        issue_w(s)
    e(f"s_cmp_lg_u32 s{S_W}, 0")
    e("s_cbranch_scc1 L_op_nopoll")
    e(f"s_mov_b32 s{S_CNT}, 0x40000")
    e(f"v_mov_b32 v{T1}, 0")
    e.label("L_op_poll")
    e(f"buffer_load_dword v{T2}, v{T1}, s[64:67], s68 offen sc1")
    e("s_waitcnt vmcnt(0)")
    e(f"v_readfirstlane_b32 s{S_T1k}, v{T2}")
    e(f"s_sub_u32 s{S_CNT}, s{S_CNT}, 1")
    e(f"s_cmp_eq_u32 s{S_CNT}, 0")
    e("s_cbranch_scc1 L_op_nopoll")
    e(f"s_cmp_eq_u32 s{S_T1k}, 1")
    e("s_cbranch_scc1 L_op_nopoll")
    e(f"s_sleep {OPT.get('sleep','4')}")
    e("s_branch L_op_poll")
    e.label("L_op_nopoll")
    if OPT.get("inv"):
        e("buffer_inv sc1")
        e("s_waitcnt vmcnt(0)")
    e("s_barrier")
    stamp(e, 62, 30)
    issue_o(0)
    issue_o(1)
    for s in range(PRE_SS, NSS - 1):
        issue_w(s)
    def loop(early):
        for s in range(16):
            e.comment(f"oproj step {s}")
            t = wtok[s]
            if s > 0:
                t = max(t, otok[s - 1])
            e.wait_vm(t)
            e("s_barrier")

            def issues():
                if s + 2 < 16:
                    issue_o(s + 2)
                if s + NSS - 1 < 16:
                    issue_w(s + NSS - 1)
            if early:
                if s > 0:
                    mfmas(s - 1)
                issues()
                reads(s)
            else:
                reads(s)
                if s > 0:
                    mfmas(s - 1)
                issues()
            e("s_waitcnt lgkmcnt(0)")
            if STAMP == 3:
                stamp(e, 1 + s, 30)
        e.wait_vm(otok[15])
        mfmas(15)

    if STAG:
        save = (e.vm_issued, dict(wtok), dict(otok))
        e(f"s_cmp_ge_u32 s{S_W}, 4")
        e("s_cbranch_scc1 L_op_late")
        loop(True)
        e("s_branch L_op_done")
        e.label("L_op_late")
        e.vm_issued = save[0]
        wtok.clear(); wtok.update(save[1]); otok.clear(); otok.update(save[2])
        loop(False)
        e.label("L_op_done")
    else:
        loop(False)
    e("s_nop 15")
    e("s_nop 3")
    e("s_barrier")
    for k in range(8):
        e(f"ds_write_b128 v{V_RW}, {vr(ACC+4*k,4)} offset:{k*1024}")
    e(f"s_lshl_b32 s{S_T0k}, s{S_MT}, 18")
    e(f"s_lshl_b32 s{S_T1k}, s{S_MP}, 17")
    e(f"s_add_u32 s{S_T0k}, s{S_T0k}, s{S_T1k}")
    e(f"s_lshl_b32 s{S_T1k}, s{S_BR}, 11")
    e(f"s_add_u32 s{S_T0k}, s{S_T0k}, s{S_T1k}")
    e(f"s_lshl_b32 s{S_T1k}, s{S_NT}, 7")
    e(f"s_add_u32 s{S_T0k}, s{S_T0k}, s{S_T1k}")
    e(f"s_lshr_b32 s{S_T1k}, s{S_KQ}, 1")
    e(f"s_lshl_b32 s{S_T1k}, s{S_T1k}, 6")
    e(f"s_add_u32 s{S_T0k}, s{S_T0k}, s{S_T1k}")
    e(f"s_and_b32 s{S_T1k}, s{S_KQ}, 1")
    e(f"s_lshl_b32 s{S_T1k}, s{S_T1k}, 4")
    e(f"s_add_u32 s{S_T0k}, s{S_T0k}, s{S_T1k}")
    e("s_waitcnt lgkmcnt(0)")
    e("s_barrier")
    for k in range(4):
        for q in range(2):
            e(f"ds_read_b128 {vr(FA+8*k+4*q,4)}, v{V_RR} offset:{k*16384+q*1024}")
    e("s_waitcnt lgkmcnt(0)")
    for r in range(8):
        e(f"v_add_f32 v{FA+r}, v{FA+r}, v{FA+8+r}")
        e(f"v_add_f32 v{FA+16+r}, v{FA+16+r}, v{FA+24+r}")
    for r in range(8):
        e(f"v_add_f32 v{FA+r}, v{FA+r}, v{FA+16+r}")
    for k in range(4):
        e(f"v_cvt_pk_bf16_f32 v{FA+32+k}, v{FA+2*k}, v{FA+2*k+1}")
    e(f"buffer_store_dwordx4 {vr(FA+32,4)}, v{V_OA}, s[{SRD_OUT}:{SRD_OUT+3}], s{S_T0k} offen")
    if STAMP:
        e("s_waitcnt vmcnt(0)")
    stamp(e, 63, 30)


e = Em()
emit_k1(e)
txt = HEADER + e.text() + '.section .rodata,"a"\n.p2align 6\n' + kernel_desc("concat_heads__gqa_block_cached__mha_block_cached__near_ridge_kernel")
open(OUT, "w").write(txt)
print("wrote", OUT, len(txt), "bytes")
```

```python
import sys, math, struct
sys.path.insert(0, "tools")
from asmlib import Em, vr, sr, kernel_desc

OUT = sys.argv[1] if len(sys.argv) > 1 else "concat_heads__gqa_block_cached__mha_block_cached__near_ridge.s"
OPT = dict(a.split("=") for a in sys.argv[2:])


def pol(name, dflt):
    v = OPT.get(name, dflt).strip()
    return "" if v in ("", "0") else " " + v.replace("+", " ")


NT_KVB = pol("nt_kvb", "nt")
NT_KVA = pol("nt_kva", "0")
NT_W = pol("nt_w", "0")
NT_X = pol("nt_x", "0")
NT_WO = pol("nt_wo", "0")
NT_OST = pol("nt_ost", "sc1")
NT_OLD = pol("nt_old", "sc1")
STAMP = int(OPT.get("stamp", "0"))
ONLY = OPT.get("only", "")
GRPBIT = int(OPT.get("grpbit", "4"))
FT = int(OPT.get("ft", "0"))
FT2 = int(OPT.get("ft2", "0"))
FT2O = int(OPT.get("ft2o", "0"))
KPRE_STEP = int(OPT.get("kpre_step", "2"))
SRD_ST = 88


def srd(e, dst, lo, hi, size, add=0):
    if add:
        e(f"s_add_u32 s{dst}, s{lo}, {add:#x}")
        e(f"s_addc_u32 s{dst+1}, s{hi}, 0")
        e(f"s_and_b32 s{dst+1}, s{dst+1}, 0xffff")
    else:
        e(f"s_mov_b32 s{dst}, s{lo}")
        e(f"s_and_b32 s{dst+1}, s{hi}, 0xffff")
    e(f"s_mov_b32 s{dst+2}, {size:#x}")
    e(f"s_mov_b32 s{dst+3}, 0x20000")


def stamp_init(e, wsreg, wavereg, base):
    if not STAMP: return
    if STAMP == 9:
        srd(e, SRD_ST, 38, 39, 256)
        e(f"s_cmp_eq_u32 s2, 101")
        e(f"s_cselect_b32 s92, 32, 0")
        e(f"s_cselect_b32 s93, 0, s2")
        e(f"s_add_u32 s93, s93, s{wavereg}")
        e(f"s_cmp_eq_u32 s93, 0")
        e(f"s_cselect_b32 s{SRD_ST+2}, 256, 0")
        return
    srd(e, SRD_ST, wsreg, wsreg + 1, 1 << 20, add=base)
    e(f"s_lshl_b32 s92, s2, 3")
    e(f"s_add_u32 s92, s92, s{wavereg}")
    e(f"s_lshl_b32 s92, s92, 8")


def stamp(e, idx, vt=250):
    if not STAMP: return
    if STAMP == 9:
        idx = {0: 1, 33: 2, 60: 3, 61: 4, 62: 5, 63: 6}[idx]
    e("s_memrealtime s[94:95]")
    e("s_waitcnt lgkmcnt(0)")
    e(f"v_mov_b32 v{vt}, s94")
    e(f"v_mov_b32 v{vt+1}, 0")
    e.vmem(f"buffer_store_dword v{vt}, v{vt+1}, s[{SRD_ST}:{SRD_ST+3}], s92 offen offset:{idx*4}")


def f32bits(x):
    return struct.unpack("<I", struct.pack("<f", x))[0]


CSCALE = (128 ** -0.5) * math.log2(math.e)

HEADER = """; Kernarg layout (104 bytes, ptrs only, base s[0:1]):
; @launch grid=(256,1,1) block=(512,1,1) lds=163840
.amdgcn_target "amdgcn-amd-amdhsa--gfx950"
.text
"""

S_W, S_J, S_I, S_XCD, S_CI = 3, 4, 5, 7, 8
S_HA, S_BPA, S_HB, S_BPB = 9, 10, 11, 12
SRD_X, SRD_WQ, SRD_K, SRD_V, SRD_O = 44, 48, 52, 56, 60
S_WQOFF, S_XOFF, S_KVOFF, S_RING, S_C, S_T0, S_T1, S_T2 = 72, 73, 74, 75, 76, 77, 78, 79
S_WQK, S_XK, S_KROT, S_WQM, S_XM = 80, 81, 82, 83, 84
V_WQD = 2
V_XD = 4
V_L16 = 5
V_KVD = 6
V_KR = 10
V_VR = 18
V_T = 26
V_Q = 32
V_F = 64
V_G = 96
V_S = 128
V_WQR = 96
V_XR = 100
V_QXW = 108
V_QB = 112
V_TWQ, V_TX, V_TD = 120, 121, 122
V_TKV = 31
QF = 128
QACC = 192

NR = 4
KPRE1 = int(OPT.get("kpre1", "6"))
FTKV = int(OPT.get("ftkv", "0"))
PACE = int(OPT.get("pace", "1"))
AROT = int(OPT.get("arot", "1"))
FTA = int(OPT.get("fta", "0"))
STAG = int(OPT.get("stag", "1"))
FLAG_OFF = 8 << 20


def wq_piece(slot):
    return 98304 + 16384 * slot


def x_piece(slot):
    return 16384 + 24576 * slot


XCH = 98304


def emit_k1_prologue(e):
    e.raw(".globl concat_heads__gqa_block_cached__mha_block_cached__near_ridge_kernel")
    e.raw(".p2align 8")
    e.raw(".type concat_heads__gqa_block_cached__mha_block_cached__near_ridge_kernel,@function")
    e.label("concat_heads__gqa_block_cached__mha_block_cached__near_ridge_kernel")
    e("s_cmp_ge_u32 s2, 256")
    e("s_cbranch_scc1 L_k1_end")
    e("s_load_dwordx16 s[16:31], s[0:1], 0")
    e("s_load_dwordx8 s[32:39], s[0:1], 64")
    e("s_load_dwordx2 s[40:41], s[0:1], 96")
    e("v_lshrrev_b32 v1, 6, v0")
    e("v_and_b32 v0, 63, v0")
    e("s_nop 0")
    e(f"v_readfirstlane_b32 s{S_W}, v1")
    e(f"s_and_b32 s{S_XCD}, s2, 7")
    e(f"s_lshr_b32 s{S_CI}, s2, 3")
    e(f"s_and_b32 s{S_J}, s{S_W}, 3")
    e(f"s_lshr_b32 s{S_I}, s{S_W}, 2")
    e(f"s_mov_b32 s{S_C}, {f32bits(CSCALE):#x}")
    e(f"s_lshl_b32 s{S_WQM}, s{S_W}, 11")
    e(f"s_lshl_b32 s{S_XM}, s{S_W}, 10")
    e(f"s_lshr_b32 s{S_HA}, s{S_XCD}, 1")
    e(f"s_lshl_b32 s{S_HA}, s{S_HA}, 3")
    e(f"s_and_b32 s{S_T0}, s{S_CI}, 7")
    e(f"s_add_u32 s{S_HA}, s{S_HA}, s{S_T0}")
    e(f"s_and_b32 s{S_BPA}, s{S_XCD}, 1")
    e(f"s_lshl_b32 s{S_BPA}, s{S_BPA}, 2")
    e(f"s_lshr_b32 s{S_T0}, s{S_CI}, 3")
    e(f"s_add_u32 s{S_BPA}, s{S_BPA}, s{S_T0}")
    e(f"s_lshl_b32 s{S_HB}, s{S_XCD}, 2")
    e(f"s_and_b32 s{S_T0}, s{S_CI}, 3")
    e(f"s_add_u32 s{S_HB}, s{S_HB}, s{S_T0}")
    e(f"s_lshr_b32 s{S_BPB}, s{S_CI}, 2")
    T0, T1, T2, T3, T4, T5 = 64, 65, 66, 67, 68, 69
    e(f"v_lshlrev_b32 v{V_L16}, 4, v0")
    e(f"v_lshrrev_b32 v{T0}, 4, v0")
    e(f"v_and_b32 v{T1}, 15, v0")
    e(f"v_lshlrev_b32 v{T2}, 2, v{T0}")
    e(f"v_xor_b32 v{T1}, v{T1}, v{T2}")
    e(f"v_lshlrev_b32 v{T1}, 4, v{T1}")
    e(f"v_lshlrev_b32 v{T2}, 8, v{T0}")
    e(f"v_add_u32 v{V_KVD}, v{T1}, v{T2}")
    for n in range(1, 4):
        e(f"v_xor_b32 v{V_KVD+n}, {16*n}, v{V_KVD}")
    e(f"v_lshlrev_b32 v{T2}, 13, v{T0}")
    e(f"v_add_u32 v{T2}, v{T1}, v{T2}")
    e(f"s_lshl_b32 s{S_T0}, s{S_W}, 1")
    e(f"s_and_b32 s{S_T0}, s{S_T0}, 3")
    e(f"s_lshl_b32 s{S_T0}, s{S_T0}, 4")
    e(f"v_xor_b32 v{V_WQD}, s{S_T0}, v{T2}")
    e(f"v_xor_b32 v{V_WQD+1}, 16, v{V_WQD}")
    e(f"v_add_u32 v{V_WQD+1}, {32768-1024}, v{V_WQD+1}")
    e(f"v_lshrrev_b32 v{T2}, 3, v0")
    e(f"v_lshlrev_b32 v{T2}, 11, v{T2}")
    e(f"v_and_b32 v{T3}, 7, v0")
    e(f"v_xor_b32 v{T3}, v{T3}, v{T0}")
    e(f"v_lshlrev_b32 v{T3}, 4, v{T3}")
    e(f"v_add_u32 v{T2}, v{T2}, v{T3}")
    e(f"s_and_b32 s{S_T0}, s{S_W}, 1")
    e(f"s_lshl_b32 s{S_T0}, s{S_T0}, 6")
    e(f"v_xor_b32 v{V_XD}, s{S_T0}, v{T2}")
    e(f"v_and_b32 v{T2}, 31, v0")
    e(f"v_lshrrev_b32 v{T3}, 5, v0")
    e(f"v_lshrrev_b32 v{T4}, 1, v{T2}")
    e(f"v_and_b32 v{T4}, 7, v{T4}")
    e(f"v_xor_b32 v{T4}, v{T4}, v{T3}")
    e(f"v_lshlrev_b32 v{T4}, 4, v{T4}")
    e(f"v_lshlrev_b32 v{T5}, 7, v{T2}")
    e(f"v_add_u32 v{T4}, v{T4}, v{T5}")
    e(f"s_lshl_b32 s{S_T0}, s{S_I}, 12")
    e(f"v_add_u32 v{V_XR}, s{S_T0}, v{T4}")
    for s in range(1, 4):
        e(f"v_xor_b32 v{V_XR+s}, {32*s}, v{V_XR}")
    for s in range(4):
        e(f"v_add_u32 v{V_XR+4+s}, 65536, v{V_XR+s}")
    e(f"v_and_b32 v{T4}, 3, v{T2}")
    e(f"v_lshlrev_b32 v{T4}, 2, v{T4}")
    e(f"v_lshrrev_b32 v{T5}, 2, v{T2}")
    e(f"v_and_b32 v{T5}, 3, v{T5}")
    e(f"v_or_b32 v{T4}, v{T4}, v{T5}")
    e(f"v_xor_b32 v{T4}, v{T4}, v{T3}")
    e(f"v_lshlrev_b32 v{T4}, 4, v{T4}")
    e(f"v_lshlrev_b32 v{T5}, 8, v{T2}")
    e(f"v_add_u32 v{V_KR}, v{T4}, v{T5}")
    for s in range(1, 8):
        e(f"v_xor_b32 v{V_KR+s}, {32*s}, v{V_KR}")
    e(f"v_and_b32 v{T1}, 1, v{T0}")
    e(f"v_lshrrev_b32 v{T2}, 2, v0")
    e(f"v_and_b32 v{T2}, 3, v{T2}")
    e(f"v_and_b32 v{T4}, 1, v0")
    e(f"v_lshrrev_b32 v{T5}, 1, v0")
    e(f"v_and_b32 v{T5}, 1, v{T5}")
    e(f"v_lshlrev_b32 v{T5}, 3, v{T5}")
    e(f"v_lshlrev_b32 v{V_VR+2}, 6, v{T2}")
    e(f"v_add_u32 v{T5}, v{T5}, v{V_VR+2}")
    e(f"v_lshlrev_b32 v1, 1, v{T4}")
    e(f"v_or_b32 v1, v1, v{T1}")
    e(f"v_xor_b32 v1, v1, v{T3}")
    e(f"v_lshlrev_b32 v1, 4, v1")
    e(f"v_add_u32 v1, v1, v{T5}")
    e(f"v_lshlrev_b32 v{V_VR+1}, 2, v{T3}")
    e(f"v_add_u32 v{V_VR+1}, v{V_VR+1}, v{T2}")
    e(f"v_lshlrev_b32 v{V_VR+1}, 8, v{V_VR+1}")
    e(f"v_add_u32 v{V_VR}, v1, v{V_VR+1}")
    for dt in range(4):
        for z in range(2):
            if dt == 0 and z == 0:
                continue
            e(f"v_xor_b32 v{V_VR+2*dt+z}, {64*dt + 32*z + 2048*z}, v{V_VR}")
    e(f"v_lshlrev_b32 v1, 1, v{T1}")
    e(f"v_or_b32 v1, v1, v{T4}")
    e(f"v_lshlrev_b32 v{V_WQR+1}, 1, v{T3}")
    e(f"v_xor_b32 v1, v1, v{V_WQR+1}")
    e(f"v_lshlrev_b32 v1, 4, v1")
    e(f"v_add_u32 v1, v1, v{T5}")
    e(f"v_lshlrev_b32 v{V_WQR+1}, 3, v{T3}")
    e(f"v_add_u32 v{V_WQR+1}, v{V_WQR+1}, v{T2}")
    e(f"v_lshlrev_b32 v{V_WQR+1}, 8, v{V_WQR+1}")
    e(f"v_add_u32 v1, v1, v{V_WQR+1}")
    e(f"s_lshl_b32 s{S_T0}, s{S_J}, 6")
    e(f"v_xor_b32 v1, s{S_T0}, v1")
    e(f"v_add_u32 v{V_WQR}, 65536, v1")
    e(f"v_xor_b32 v{V_WQR+1}, {16+1024}, v{V_WQR}")
    e(f"v_add_u32 v{V_WQR+2}, 65536, v{V_WQR}")
    e(f"v_add_u32 v{V_WQR+3}, 65536, v{V_WQR+1}")
    e(f"s_add_u32 s{S_T0}, s{S_WQM}, {XCH}")
    e(f"v_add_u32 v{V_QXW}, s{S_T0}, v{V_L16}")
    e(f"v_and_b32 v1, 15, v0")
    e(f"v_lshrrev_b32 v{V_TWQ}, 1, v1")
    e(f"v_lshlrev_b32 v{V_TWQ}, 13, v{V_TWQ}")
    e(f"v_and_b32 v1, 1, v1")
    e(f"v_lshlrev_b32 v1, 7, v1")
    e(f"v_add_u32 v{V_TWQ}, v{V_TWQ}, v1")
    e(f"v_and_b32 v{V_TX}, 7, v0")
    e(f"v_lshlrev_b32 v{V_TX}, 11, v{V_TX}")
    e(f"v_lshlrev_b32 v{V_TKV}, 7, v0")
    e("s_waitcnt lgkmcnt(0)")
    stamp_init(e, 40, S_W, 16 << 20)
    srd(e, 64, 40, 41, 65536, add=FLAG_OFF)
    e(f"s_cmp_lg_u32 s{S_W}, 0")
    e("s_cbranch_scc1 L_k1_noflag")
    e("s_lshl_b32 s68, s2, 8")
    e("v_mov_b32 v1, 0")
    e("s_mov_b64 exec, 1")
    e("buffer_store_dword v1, v1, s[64:67], s68 offen sc1")
    e("s_mov_b64 exec, -1")
    e.label("L_k1_noflag")
    e(f"s_cmp_ge_u32 s{S_W}, 4")
    e("s_cbranch_scc1 L_k1_B")


def emit_k1_role(e, g):
    e.vm_issued = 0
    e.lg_issued = 0
    nslot = 3 if g == 1 else 2
    wstride = 24576 if g == 1 else 16384
    rbase = 0 if g == 1 else 98304
    SH, SBP = (S_HA, S_BPA) if g == 0 else (S_HB, S_BPB)
    kv_tok, wq_tok, x_tok = {}, {}, {}

    def ring_setup(br):
        sh, sbp = (S_HA, S_BPA) if br == 0 else (S_HB, S_BPB)
        px, pw = (16, 22) if br == 0 else (26, 32)
        srd(e, SRD_X, px, px + 1, 1 << 20)
        srd(e, SRD_WQ, pw, pw + 1, 8 << 20)
        e(f"s_lshl_b32 s{S_XOFF}, s{sbp}, 17")
        e(f"s_lshl_b32 s{S_T0}, s{S_W}, 14")
        e(f"s_add_u32 s{S_XOFF}, s{S_XOFF}, s{S_T0}")
        e(f"s_lshl_b32 s{S_WQOFF}, s{sh}, 8")
        e(f"s_lshl_b32 s{S_T0}, s{S_W}, 16")
        e(f"s_add_u32 s{S_WQOFF}, s{S_WQOFF}, s{S_T0}")
        if br == 1:
            e(f"s_lshl_b32 s{S_T0}, s{sbp}, 1")
            e(f"s_and_b32 s{S_T1}, s{S_CI}, 3")
            e(f"s_lshl_b32 s{S_T1}, s{S_T1}, 2")
        else:
            e(f"s_lshr_b32 s{S_T0}, s{S_CI}, 3")
            e(f"s_lshl_b32 s{S_T0}, s{S_T0}, 2")
            e(f"s_and_b32 s{S_T1}, s{S_CI}, 7")
            e(f"s_lshl_b32 s{S_T1}, s{S_T1}, 1")
        e(f"s_add_u32 s{S_T0}, s{S_T0}, s{S_T1}")
        e(f"s_and_b32 s{S_T0}, s{S_T0}, 15")
        e(f"s_lshl_b32 s{S_WQK}, s{S_T0}, 19")
        e(f"s_lshl_b32 s{S_XK}, s{S_T0}, 7")

    def issue_chunk(c):
        br = 1 if c < 16 else 0
        if c == 16:
            ring_setup(0)
        cc = c & 15
        ftx = FT and cc < (4 if br == 1 else 2)
        ftw = FT and cc < (2 if br == 1 else 4)
        e(f"s_add_u32 m0, s{S_XM}, {x_piece(c % NR)}")
        e(f"s_add_u32 s{S_T0}, s{S_XOFF}, s{S_XK}")
        x_tok[c] = e.vmem(f"buffer_load_dwordx4 v{V_XD}, s[{SRD_X}:{SRD_X+3}], s{S_T0} offen{' nt' if ftx else NT_X} lds")
        if ftx:
            e.vmem(f"buffer_load_dword v{V_TD}, v{V_TX}, s[{SRD_X}:{SRD_X+3}], s{S_T0} offen")
        e(f"s_add_u32 m0, s{S_WQM}, {wq_piece(c % NR)}")
        e(f"s_add_u32 s{S_T0}, s{S_WQOFF}, s{S_WQK}")
        pw = " nt" if ftw else NT_W
        e.vmem(f"buffer_load_dwordx4 v{V_WQD}, s[{SRD_WQ}:{SRD_WQ+3}], s{S_T0} offen{pw} lds")
        wq_tok[c] = e.vmem(f"buffer_load_dwordx4 v{V_WQD+1}, s[{SRD_WQ}:{SRD_WQ+3}], s{S_T0} offen offset:1024{pw} lds")
        if ftw:
            e.vmem(f"buffer_load_dword v{V_TD}, v{V_TWQ}, s[{SRD_WQ}:{SRD_WQ+3}], s{S_T0} offen")
        e(f"s_add_u32 s{S_XK}, s{S_XK}, 128")
        e(f"s_and_b32 s{S_XK}, s{S_XK}, 2047")
        e(f"s_add_u32 s{S_WQK}, s{S_WQK}, 0x80000")
        e(f"s_and_b32 s{S_WQK}, s{S_WQK}, 0x7fffff")

    def kv_setup():
        pk, pv = (18, 20) if g == 0 else (28, 30)
        kvsize = (8 << 20) if g == 0 else (64 << 20)
        srd(e, SRD_K, pk, pk + 1, kvsize)
        srd(e, SRD_V, pv, pv + 1, kvsize)
        srd(e, SRD_O, 40, 41, 4 << 20, add=g * (4 << 20))
        e(f"s_lshl_b32 s{S_T0}, s{SBP}, 1")
        e(f"s_lshr_b32 s{S_T1}, s{S_J}, 1")
        e(f"s_add_u32 s{S_T0}, s{S_T0}, s{S_T1}")
        if g == 0:
            e(f"s_lshl_b32 s{S_T1}, s{S_T0}, 2")
            e(f"s_lshr_b32 s{S_T2}, s{SH}, 3")
        else:
            e(f"s_lshl_b32 s{S_T1}, s{S_T0}, 5")
            e(f"s_mov_b32 s{S_T2}, s{SH}")
        e(f"s_add_u32 s{S_T1}, s{S_T1}, s{S_T2}")
        e(f"s_lshl_b32 s{S_KVOFF}, s{S_T1}, 17")
        e(f"s_and_b32 s{S_T1}, s{S_J}, 1")
        e(f"s_lshl_b32 s{S_T1}, s{S_T1}, 16")
        e(f"s_add_u32 s{S_KVOFF}, s{S_KVOFF}, s{S_T1}")
        if g == 1:
            e(f"s_add_u32 s{S_KROT}, s{SH}, s{S_T0}")
        elif AROT:
            e(f"s_mov_b32 s{S_KROT}, s{SH}")
        else:
            e(f"s_mov_b32 s{S_KROT}, s{S_T0}")
        e(f"s_and_b32 s{S_KROT}, s{S_KROT}, 7")
        e(f"s_lshl_b32 s{S_KROT}, s{S_KROT}, 13")
        e(f"s_mul_i32 s{S_RING}, s{S_J}, {wstride}")
        if rbase:
            e(f"s_add_u32 s{S_RING}, s{S_RING}, {rbase}")
        for i in range(8):
            e(f"v_add_u32 v{V_KR+i}, s{S_RING}, v{V_KR+i}")
            e(f"v_add_u32 v{V_VR+i}, s{S_RING}, v{V_VR+i}")

    def issue_kv(n):
        nt_kv = NT_KVB if g == 1 else NT_KVA
        srd_ = SRD_K if n < 8 else SRD_V
        t = n & 7
        slot = n % nslot
        fta = FTA and g == 0 and t == 0
        if fta:
            nt_kv = " nt"
        e(f"s_add_u32 s{S_T0}, s{S_KROT}, {t*8192}")
        e(f"s_and_b32 s{S_T0}, s{S_T0}, 0xffff")
        e(f"s_add_u32 s{S_T0}, s{S_T0}, s{S_KVOFF}")
        for half in range(2):
            e(f"s_add_u32 m0, s{S_RING}, {slot*8192 + half*4096}")
            if half:
                e(f"s_add_u32 s{S_T0}, s{S_T0}, 4096")
            else:
                e("s_nop 0")
            for q in range(4):
                tok = e.vmem(f"buffer_load_dwordx4 v{V_KVD+q}, s[{srd_}:{srd_+3}], s{S_T0} offen offset:{q*1024}{nt_kv} lds")
        kv_tok[n] = tok
        if fta:
            e(f"s_sub_u32 s{S_T0}, s{S_T0}, 4096")
            e.vmem(f"buffer_load_dword v1, v{V_TKV}, s[{srd_}:{srd_+3}], s{S_T0} offen")

    def touch_kva():
        e(f"s_add_u32 s{S_T0}, s{S_KROT}, s{S_KVOFF}")
        for srd_ in (SRD_K, SRD_V):
            if FTKV == 1:
                e.vmem(f"buffer_load_dword v{V_TD}, v{V_TKV}, s[{srd_}:{srd_+3}], s{S_T0} offen nt")
            e.vmem(f"buffer_load_dword v{V_TD}, v{V_TKV}, s[{srd_}:{srd_+3}], s{S_T0} offen")

    def reads(c):
        fb = QF + 32 * (c & 1)
        slot = c % NR
        for ks in range(4):
            off = wq_piece(slot) + ks * 4096
            for z in range(2):
                e.lds(f"ds_read_b64_tr_b16 {vr(fb+8*ks+2*z,2)}, v{V_WQR+2*((off>>16)-1)+z} offset:{off & 0xffff}")
            off = x_piece(slot)
            e.lds(f"ds_read_b128 {vr(fb+8*ks+4,4)}, v{V_XR+4*(off>>16)+ks} offset:{off & 0xffff}")

    def mfmas(c):
        fb = QF + 32 * (c & 1)
        acc = QACC + (16 if c >= 16 else 0)
        for ks in range(4):
            cc = "0" if ((c & 15) == 0 and ks == 0) else vr(acc, 16)
            e(f"v_mfma_f32_32x32x16_bf16 {vr(acc,16)}, {vr(fb+8*ks,4)}, {vr(fb+8*ks+4,4)}, {cc}")

    stamp(e, 0)
    ring_setup(1)
    for c in range(NR - 1):
        issue_chunk(c)
    kv_setup()
    for s in range(32):
        e.comment(f"qproj step {s}")
        e.wait_vm(max(wq_tok[s], x_tok[s]))
        e("s_barrier")
        early = STAG and g == 0
        if early and s + NR - 1 < 32:
            issue_chunk(s + NR - 1)
        reads(s)
        if s > 0:
            mfmas(s - 1)
        if not early and s + NR - 1 < 32:
            issue_chunk(s + NR - 1)
        if g == 1 and s == KPRE_STEP:
            issue_kv(0)
        if g == 1 and s == KPRE1:
            issue_kv(1)
        if g == 0 and FTKV and s == KPRE1:
            touch_kva()
        e("s_waitcnt lgkmcnt(0)")
        if STAMP == 2:
            stamp(e, 1 + s)
    mfmas(31)
    e("s_nop 15")
    e("s_nop 3")
    for k in range(16):
        e(f"v_cvt_pk_bf16_f32 v{V_F+k}, v{QACC+2*k}, v{QACC+2*k+1}")
    for ss in range(2):
        e(f"ds_write_b128 v{V_QXW}, {vr(V_F+4*ss,4)} offset:{16384+ss*1024}")
        e(f"ds_write_b128 v{V_QXW}, {vr(V_F+8+4*ss,4)} offset:{ss*1024}")
    e(f"s_lshr_b32 s{S_T1}, s{S_J}, 1")
    e(f"s_lshl_b32 s{S_T1}, s{S_T1}, 13")
    e(f"s_add_u32 s{S_T1}, s{S_T1}, {XCH + g*16384}")
    e(f"v_add_u32 v{V_T}, s{S_T1}, v{V_L16}")
    e("s_waitcnt lgkmcnt(0)")
    e("s_barrier")
    for s in range(8):
        e(f"ds_read_b128 {vr(V_Q+4*s,4)}, v{V_T} offset:{s*1024}")
    e("s_waitcnt lgkmcnt(0)")
    e("s_barrier")
    for n in range(2 if g == 1 else 0, nslot):
        issue_kv(n)
    stamp(e, 33, V_T + 2)

    VMX = V_T
    VM, VMC, VL, VE, VP = V_Q, V_Q + 1, V_Q + 2, V_Q + 8, V_Q + 16

    def max_tile(t):
        b = V_S + 16 * t
        for ch in range(2):
            bb = b + 8 * ch
            if t == 0:
                e(f"v_max3_f32 v{VMX+ch}, v{bb}, v{bb+1}, v{bb+2}")
                e(f"v_max3_f32 v{VMX+ch}, v{VMX+ch}, v{bb+3}, v{bb+4}")
                e(f"v_max3_f32 v{VMX+ch}, v{VMX+ch}, v{bb+5}, v{bb+6}")
                e(f"v_max_f32 v{VMX+ch}, v{VMX+ch}, v{bb+7}")
            else:
                for k in range(4):
                    e(f"v_max3_f32 v{VMX+ch}, v{VMX+ch}, v{bb+2*k}, v{bb+2*k+1}")

    def exp_tile(t):
        p = VP + 8 * (t & 1)
        for hf in range(2):
            b = V_S + 16 * t + 8 * hf
            for i in range(8):
                e(f"v_fma_f32 v{VE+i}, v{b+i}, s{S_C}, -v{VMC}")
            for i in range(8):
                e(f"v_exp_f32 v{VE+i}, v{VE+i}")
            e("s_nop 0")
            for i in range(8):
                e(f"v_add_f32 v{VL+(i&3)}, v{VL+(i&3)}, v{VE+i}")
            for k in range(4):
                e(f"v_cvt_pk_bf16_f32 v{p+4*hf+k}, v{VE+2*k}, v{VE+2*k+1}")

    for t in range(8):
        e.comment(f"K tile {t}")
        if PACE == 2 and t > 0:
            e("s_barrier")
        e.wait_vm(kv_tok[t])
        if PACE == 1 and t > 0:
            e("s_barrier")
        toks = []
        for s in range(8):
            toks.append(e.lds(f"ds_read_b128 {vr(V_F+4*s,4)}, v{V_KR+s} offset:{(t%nslot)*8192}"))
        if t > 0:
            max_tile(t - 1)
        for s in range(8):
            e.wait_lds(toks[s])
            c = "0" if s == 0 else vr(V_S + 16 * t, 16)
            e(f"v_mfma_f32_32x32x16_bf16 {vr(V_S+16*t,16)}, {vr(V_F+4*s,4)}, {vr(V_Q+4*s,4)}, {c}")
        issue_kv(t + nslot)
        if STAMP == 2:
            stamp(e, 34 + t, V_T + 2)
    e("s_nop 7")
    max_tile(7)
    e(f"v_max_f32 v{VMX}, v{VMX}, v{VMX+1}")
    e(f"v_mov_b32 v{VMX+1}, v{VMX}")
    e("s_nop 1")
    e(f"v_permlane32_swap_b32 v{VMX}, v{VMX+1}")
    e("s_nop 1")
    e(f"v_max_f32 v{VM}, v{VMX}, v{VMX+1}")
    e(f"v_mul_f32 v{VMC}, s{S_C}, v{VM}")
    for i in range(4):
        e(f"v_mov_b32 v{VL+i}, 0")
    exp_tile(0)
    exp_tile(1)
    OA = [V_S, V_S + 16, V_G, V_G + 16]
    for t in range(8):
        n = 8 + t
        if PACE == 2:
            e("s_barrier")
        e.wait_vm(kv_tok[n])
        if PACE == 1:
            e("s_barrier")
        toks = []
        for u in range(2):
            for dt in range(4):
                for z in range(2):
                    toks.append(e.lds(f"ds_read_b64_tr_b16 {vr(V_F+16*u+4*dt+2*z,2)}, v{V_VR+2*dt+z} offset:{(n%nslot)*8192+u*4096}"))
        p = VP + 8 * (t & 1)
        for u in range(2):
            for dt in range(4):
                e.wait_lds(toks[8 * u + 2 * dt + 1])
                c = "0" if (t == 0 and u == 0) else vr(OA[dt], 16)
                e(f"v_mfma_f32_32x32x16_bf16 {vr(OA[dt],16)}, {vr(V_F+16*u+4*dt,4)}, {vr(p+4*u,4)}, {c}")
        if n + nslot < 16:
            issue_kv(n + nslot)
        if t + 2 < 8:
            exp_tile(t + 2)
        if STAMP == 2:
            stamp(e, 42 + t, V_T + 2)
    stamp(e, 60, V_T + 2)
    e(f"v_add_f32 v{VL}, v{VL}, v{VL+1}")
    e(f"v_add_f32 v{VL+2}, v{VL+2}, v{VL+3}")
    e(f"v_add_f32 v{VL}, v{VL}, v{VL+2}")
    e(f"v_mov_b32 v{VL+1}, v{VL}")
    e("s_nop 1")
    e(f"v_permlane32_swap_b32 v{VL}, v{VL+1}")
    e("s_nop 1")
    e(f"v_add_f32 v{VM+1}, v{VL}, v{VL+1}")
    e("s_nop 15")
    lab = f"L_k1_g{g}"
    e(f"v_add_u32 v{V_T+1}, s{S_RING}, v{V_L16}")
    e(f"s_xor_b32 s{S_T1}, s{S_J}, 1")
    e(f"s_mul_i32 s{S_T1}, s{S_T1}, {wstride}")
    if rbase:
        e(f"s_add_u32 s{S_T1}, s{S_T1}, {rbase}")
    e(f"v_add_u32 v{V_T+2}, s{S_T1}, v{V_L16}")
    e(f"v_lshlrev_b32 v{V_T+3}, 3, v0")
    e(f"v_add_u32 v1, s{S_T1}, v{V_T+3}")
    e(f"v_add_u32 v{V_T+3}, s{S_RING}, v{V_T+3}")
    e(f"ds_write_b64 v{V_T+3}, {vr(VM,2)} offset:8192")
    e(f"s_and_b32 s{S_T2}, s{S_J}, 1")
    e(f"s_cmp_eq_u32 s{S_T2}, 1")
    e(f"s_cbranch_scc1 {lab}_j1")
    for k in range(8):
        e(f"ds_write_b128 v{V_T+1}, {vr(V_G+4*k,4)} offset:{k*1024}")
    e(f"s_branch {lab}_jd")
    e.label(f"{lab}_j1")
    for k in range(8):
        e(f"ds_write_b128 v{V_T+1}, {vr(V_S+4*k,4)} offset:{k*1024}")
    e("s_waitcnt lgkmcnt(0)")
    for k in range(32):
        e(f"v_mov_b32 v{V_S+k}, v{V_G+k}")
    e.label(f"{lab}_jd")
    e("s_waitcnt lgkmcnt(0)")
    e("s_barrier")
    PO = V_F
    OACC = V_S
    e(f"ds_read_b64 {vr(VM+2,2)}, v1 offset:8192")
    for k in range(8):
        e(f"ds_read_b128 {vr(PO+4*k,4)}, v{V_T+2} offset:{k*1024}")
    e("s_waitcnt lgkmcnt(8)")
    MT, FA_, FB_, LT = VM + 4, VM + 5, VM + 6, VM + 7
    e(f"v_max_f32 v{MT}, v{VM}, v{VM+2}")
    e(f"v_sub_f32 v{FA_}, v{VM}, v{MT}")
    e(f"v_sub_f32 v{FB_}, v{VM+2}, v{MT}")
    e(f"v_mul_f32 v{FA_}, s{S_C}, v{FA_}")
    e(f"v_mul_f32 v{FB_}, s{S_C}, v{FB_}")
    e(f"v_exp_f32 v{FA_}, v{FA_}")
    e(f"v_exp_f32 v{FB_}, v{FB_}")
    e("s_nop 0")
    e(f"v_mul_f32 v{LT}, v{VM+1}, v{FA_}")
    e(f"v_fma_f32 v{LT}, v{VM+3}, v{FB_}, v{LT}")
    e(f"v_rcp_f32 v{LT}, v{LT}")
    e("s_nop 0")
    e(f"v_mul_f32 v{FA_}, v{FA_}, v{LT}")
    e(f"v_mul_f32 v{FB_}, v{FB_}, v{LT}")
    e(f"s_lshl_b32 s{S_T0}, s{SBP}, 5")
    e(f"s_add_u32 s{S_T0}, s{S_T0}, s{SH}")
    e(f"s_lshl_b32 s{S_T0}, s{S_T0}, 14")
    e(f"s_lshl_b32 s{S_T1}, s{S_J}, 12")
    e(f"s_add_u32 s{S_T0}, s{S_T0}, s{S_T1}")
    e("s_waitcnt lgkmcnt(0)")
    for k in range(32):
        e(f"v_mul_f32 v{OACC+k}, v{OACC+k}, v{FA_}")
        e(f"v_fma_f32 v{OACC+k}, v{PO+k}, v{FB_}, v{OACC+k}")
    for k in range(16):
        e(f"v_cvt_pk_bf16_f32 v{PO+k}, v{OACC+2*k}, v{OACC+2*k+1}")
    for fr in range(4):
        e(f"buffer_store_dwordx4 {vr(PO+4*fr,4)}, v{V_L16}, s[{SRD_O}:{SRD_O+3}], s{S_T0} offen offset:{fr*1024}{NT_OST}")
    if g == 0:
        e("s_branch L_oproj")


def emit_k1(e):
    emit_k1_prologue(e)
    emit_k1_role(e, 0)
    e.label("L_k1_B")
    emit_k1_role(e, 1)
    emit_oproj(e)
    e.label("L_k1_end")
    e("s_endpgm")


PRE_SS = int(OPT.get("pre_ss", "2"))


def emit_oproj(e):
    NSS = 5
    e.label("L_oproj")
    e.vm_issued = 0
    e.lg_issued = 0
    S_BR, S_NT, S_MT, S_KQ, S_MP = 9, 10, 11, 12, 13
    SRD_A, SRD_W, SRD_OUT, SRD_D = 44, 48, 52, 56
    S_OOFF, S_WOFF, S_W2K, S_T0k, S_T1k, S_CHW, S_CHO, S_CNT = 72, 73, 74, 77, 78, 80, 81, 82
    V_WD = 6
    V_WR = 8
    T0, T1, T2, T3, T4, T5 = range(20, 26)
    V_RW, V_RR, V_OA, V_DB = 26, 27, 28, 29
    FA = 128
    FO = 192
    ACC = 96
    e(f"s_lshr_b32 s{S_BR}, s{S_XCD}, 2")
    e(f"s_and_b32 s{S_T0k}, s{S_XCD}, 3")
    e(f"s_and_b32 s{S_T1k}, s{S_CI}, 3")
    e(f"s_lshl_b32 s{S_NT}, s{S_T0k}, 2")
    e(f"s_add_u32 s{S_NT}, s{S_NT}, s{S_T1k}")
    e(f"s_lshr_b32 s{S_MT}, s{S_CI}, 2")
    e(f"s_lshl_b32 s{S_CHW}, s{S_MT}, 1")
    e(f"s_lshl_b32 s{S_T1k}, s{S_T1k}, 2")
    e(f"s_add_u32 s{S_CHW}, s{S_CHW}, s{S_T1k}")
    e(f"s_and_b32 s{S_CHW}, s{S_CHW}, 15")
    e(f"s_mov_b32 s{S_CHO}, s{S_CHW}")
    e(f"s_lshl_b32 s{S_W2K}, s{S_W}, 11")
    e(f"s_lshr_b32 s{S_KQ}, s{S_W}, 1")
    e(f"s_and_b32 s{S_MP}, s{S_W}, 1")
    e(f"s_cmp_eq_u32 s{S_BR}, 1")
    e(f"s_cselect_b32 s{SRD_W}, s34, s24")
    e(f"s_cselect_b32 s{SRD_W+1}, s35, s25")
    e(f"s_and_b32 s{SRD_W+1}, s{SRD_W+1}, 0xffff")
    e(f"s_mov_b32 s{SRD_W+2}, {8<<20:#x}")
    e(f"s_mov_b32 s{SRD_W+3}, 0x20000")
    srd(e, SRD_A, 40, 41, 8 << 20)
    srd(e, SRD_OUT, 36, 37, 2 << 20)
    srd(e, SRD_D, 38, 39, 256)
    e(f"s_lshl_b32 s{S_OOFF}, s{S_BR}, 22")
    e(f"s_lshl_b32 s{S_T0k}, s{S_MT}, 19")
    e(f"s_add_u32 s{S_OOFF}, s{S_OOFF}, s{S_T0k}")
    e(f"s_lshl_b32 s{S_T0k}, s{S_MP}, 13")
    e(f"s_add_u32 s{S_OOFF}, s{S_OOFF}, s{S_T0k}")
    e(f"s_lshl_b32 s{S_T0k}, s{S_KQ}, 11")
    e(f"s_add_u32 s{S_OOFF}, s{S_OOFF}, s{S_T0k}")
    e(f"s_lshl_b32 s{S_WOFF}, s{S_W}, 15")
    e(f"s_lshl_b32 s{S_T0k}, s{S_NT}, 7")
    e(f"s_add_u32 s{S_WOFF}, s{S_WOFF}, s{S_T0k}")
    e(f"v_lshrrev_b32 v{T0}, 4, v0")
    e(f"v_lshrrev_b32 v{T2}, 3, v0")
    e(f"v_lshlrev_b32 v{T2}, 11, v{T2}")
    e(f"v_lshrrev_b32 v{T3}, 2, v0")
    e(f"v_and_b32 v{T3}, 4, v{T3}")
    e(f"v_and_b32 v{T4}, 7, v0")
    e(f"v_xor_b32 v{T3}, v{T3}, v{T4}")
    e(f"v_lshlrev_b32 v{T3}, 4, v{T3}")
    e(f"v_add_u32 v{V_WD}, v{T2}, v{T3}")
    e(f"v_add_u32 v{V_WD+1}, {8*2048-1024}, v{V_WD}")
    e(f"v_lshrrev_b32 v{T3}, 5, v0")
    e(f"v_and_b32 v{T1}, 1, v{T0}")
    e(f"v_lshrrev_b32 v{T2}, 2, v0")
    e(f"v_and_b32 v{T2}, 3, v{T2}")
    e(f"v_and_b32 v{T4}, 1, v0")
    e(f"v_lshlrev_b32 v{T4}, 1, v{T4}")
    e(f"v_or_b32 v{T4}, v{T4}, v{T1}")
    e(f"v_lshrrev_b32 v{T5}, 1, v{T2}")
    e(f"v_lshlrev_b32 v{T5}, 2, v{T5}")
    e(f"v_or_b32 v{T4}, v{T4}, v{T5}")
    e(f"v_lshlrev_b32 v{T4}, 4, v{T4}")
    e(f"v_lshrrev_b32 v{T5}, 1, v0")
    e(f"v_and_b32 v{T5}, 1, v{T5}")
    e(f"v_lshlrev_b32 v{T5}, 3, v{T5}")
    e(f"v_add_u32 v{T4}, v{T4}, v{T5}")
    e(f"v_lshlrev_b32 v{T5}, 4, v{T3}")
    e(f"v_add_u32 v{T5}, v{T5}, v{T2}")
    e(f"v_lshlrev_b32 v{T5}, 7, v{T5}")
    e(f"v_add_u32 v{T4}, v{T4}, v{T5}")
    e(f"s_lshl_b32 s{S_T1k}, s{S_KQ}, 12")
    e(f"v_add_u32 v{V_WR}, s{S_T1k}, v{T4}")
    e(f"v_add_u32 v{V_WR+1}, 512, v{V_WR}")
    e(f"v_xor_b32 v{V_WR+2}, 64, v{V_WR}")
    e(f"v_xor_b32 v{V_WR+3}, 64, v{V_WR+1}")
    for p in (1, 2):
        for i in range(4):
            e(f"v_add_u32 v{V_WR+4*p+i}, {65536*p}, v{V_WR+i}")
    e(f"s_lshl_b32 s{S_T0k}, s{S_W}, 13")
    e(f"v_add_u32 v{V_RW}, s{S_T0k}, v{V_L16}")
    e(f"s_lshl_b32 s{S_T0k}, s{S_MP}, 13")
    e(f"s_lshl_b32 s{S_T1k}, s{S_KQ}, 11")
    e(f"s_add_u32 s{S_T0k}, s{S_T0k}, s{S_T1k}")
    e(f"v_add_u32 v{V_RR}, s{S_T0k}, v{V_L16}")
    e(f"v_and_b32 v{V_OA}, 31, v0")
    e(f"v_lshlrev_b32 v{V_OA}, 12, v{V_OA}")
    e(f"v_lshlrev_b32 v{T4}, 5, v{T3}")
    e(f"v_add_u32 v{V_OA}, v{V_OA}, v{T4}")
    e(f"v_lshlrev_b32 v{V_DB}, 2, v0")
    e(f"v_mov_b32 v{T0}, 1")
    e(f"s_lshr_b32 s{S_T1k}, s2, 2")
    e(f"s_lshl_b32 s{S_T1k}, s{S_T1k}, 2")
    e(f"v_mov_b32 v{T1}, s{S_T1k}")
    if STAMP == 3:
        e("s_memrealtime s[96:97]")
    e("s_waitcnt vmcnt(0)")
    if STAMP == 3:
        e("s_memrealtime s[98:99]")
        e("s_waitcnt lgkmcnt(0)")
        e(f"v_mov_b32 v30, s96")
        e(f"v_mov_b32 v31, s98")
        e(f"v_mov_b32 v32, 0")
        e.vmem(f"buffer_store_dwordx2 v[30:31], v32, s[{SRD_ST}:{SRD_ST+3}], s92 offen offset:{58*4}")
    e("s_barrier")
    e(f"s_cmp_lg_u32 s{S_W}, 0")
    e("s_cbranch_scc1 L_op_noadd")
    e(f"v_mov_b32 v{T1}, 0")
    e("s_mov_b64 exec, 1")
    e(f"buffer_atomic_add v{T0}, v{T1}, s[{SRD_D}:{SRD_D+3}], 0 offen sc0")
    e("s_waitcnt vmcnt(0)")
    e(f"v_readfirstlane_b32 s{S_CNT}, v{T0}")
    e("s_mov_b64 exec, -1")
    e("s_nop 3")
    e(f"s_and_b32 s{S_CNT}, s{S_CNT}, 255")
    e(f"s_cmp_lg_u32 s{S_CNT}, 255")
    e("s_cbranch_scc1 L_op_noadd")
    e(f"v_mov_b32 v{T0}, 1")
    e(f"v_lshlrev_b32 v{T1}, 8, v0")
    for k in range(4):
        e(f"s_mov_b32 s{S_CNT}, {k*16384}")
        e(f"buffer_store_dword v{T0}, v{T1}, s[64:67], s{S_CNT} offen sc1")
    e.label("L_op_noadd")
    stamp(e, 61, 30)

    wtok, otok = {}, {}

    def issue_w(s):
        for hh in range(2):
            c = 2 * s + hh
            slot = (s % NSS) * 32768 + hh * 16384
            e(f"s_add_u32 m0, s{S_W2K}, {slot}")
            e(f"s_lshl_b32 s{S_T0k}, s{S_CHW}, 18")
            e(f"s_add_u32 s{S_T0k}, s{S_T0k}, s{S_WOFF}")
            e.vmem(f"buffer_load_dwordx4 v{V_WD}, s[{SRD_W}:{SRD_W+3}], s{S_T0k} offen{NT_WO} lds")
            wtok[s] = e.vmem(f"buffer_load_dwordx4 v{V_WD+1}, s[{SRD_W}:{SRD_W+3}], s{S_T0k} offen offset:1024{NT_WO} lds")
            e(f"s_add_u32 s{S_CHW}, s{S_CHW}, 1")
            e(f"s_and_b32 s{S_CHW}, s{S_CHW}, 15")
            if (c + 1) >> 4:
                e(f"s_or_b32 s{S_CHW}, s{S_CHW}, 16")

    def issue_o(s):
        fo = FO + 16 * (s & 3)
        for hh in range(2):
            c = 2 * s + hh
            e(f"s_lshl_b32 s{S_T0k}, s{S_CHO}, 14")
            e(f"s_add_u32 s{S_T0k}, s{S_T0k}, s{S_OOFF}")
            for ee in range(2):
                otok[s] = e.vmem(f"buffer_load_dwordx4 {vr(fo+8*hh+4*ee,4)}, v{V_L16}, s[{SRD_A}:{SRD_A+3}], s{S_T0k} offen offset:{ee*1024}{NT_OLD}")
            e(f"s_add_u32 s{S_CHO}, s{S_CHO}, 1")
            e(f"s_and_b32 s{S_CHO}, s{S_CHO}, 15")
            if (c + 1) >> 4:
                e(f"s_or_b32 s{S_CHO}, s{S_CHO}, 16")

    def reads(s):
        fb = FA + 32 * (s & 1)
        for hh in range(2):
            for ee in range(2):
                off = (s % NSS) * 32768 + hh * 16384 + ee * 1024
                for ntp in range(2):
                    for z in range(2):
                        e.lds(f"ds_read_b64_tr_b16 {vr(fb+16*hh+8*ee+4*ntp+2*z,2)}, v{V_WR+4*(off>>16)+2*ntp+z} offset:{off&0xffff}")

    def mfmas(s):
        fb = FA + 32 * (s & 1)
        fo = FO + 16 * (s & 3)
        for hh in range(2):
            for ee in range(2):
                for ntp in range(2):
                    c = "0" if (s == 0 and hh == 0 and ee == 0) else vr(ACC + 16 * ntp, 16)
                    e(f"v_mfma_f32_32x32x16_bf16 {vr(ACC+16*ntp,16)}, {vr(fb+16*hh+8*ee+4*ntp,4)}, {vr(fo+8*hh+4*ee,4)}, {c}")

    for s in range(PRE_SS):
        issue_w(s)
    e(f"s_cmp_lg_u32 s{S_W}, 0")
    e("s_cbranch_scc1 L_op_nopoll")
    e(f"s_mov_b32 s{S_CNT}, 0x40000")
    e(f"v_mov_b32 v{T1}, 0")
    e.label("L_op_poll")
    e(f"buffer_load_dword v{T2}, v{T1}, s[64:67], s68 offen sc1")
    e("s_waitcnt vmcnt(0)")
    e(f"v_readfirstlane_b32 s{S_T1k}, v{T2}")
    e(f"s_sub_u32 s{S_CNT}, s{S_CNT}, 1")
    e(f"s_cmp_eq_u32 s{S_CNT}, 0")
    e("s_cbranch_scc1 L_op_nopoll")
    e(f"s_cmp_eq_u32 s{S_T1k}, 1")
    e("s_cbranch_scc1 L_op_nopoll")
    e(f"s_sleep {OPT.get('sleep','4')}")
    e("s_branch L_op_poll")
    e.label("L_op_nopoll")
    if OPT.get("inv"):
        e("buffer_inv sc1")
        e("s_waitcnt vmcnt(0)")
    e("s_barrier")
    stamp(e, 62, 30)
    issue_o(0)
    issue_o(1)
    for s in range(PRE_SS, NSS - 1):
        issue_w(s)
    def loop(early):
        for s in range(16):
            e.comment(f"oproj step {s}")
            t = wtok[s]
            if s > 0:
                t = max(t, otok[s - 1])
            e.wait_vm(t)
            e("s_barrier")

            def issues():
                if s + 2 < 16:
                    issue_o(s + 2)
                if s + NSS - 1 < 16:
                    issue_w(s + NSS - 1)
            if early:
                if s > 0:
                    mfmas(s - 1)
                issues()
                reads(s)
            else:
                reads(s)
                if s > 0:
                    mfmas(s - 1)
                issues()
            e("s_waitcnt lgkmcnt(0)")
            if STAMP == 3:
                stamp(e, 1 + s, 30)
        e.wait_vm(otok[15])
        mfmas(15)

    if STAG:
        save = (e.vm_issued, dict(wtok), dict(otok))
        e(f"s_cmp_ge_u32 s{S_W}, 4")
        e("s_cbranch_scc1 L_op_late")
        loop(True)
        e("s_branch L_op_done")
        e.label("L_op_late")
        e.vm_issued = save[0]
        wtok.clear(); wtok.update(save[1]); otok.clear(); otok.update(save[2])
        loop(False)
        e.label("L_op_done")
    else:
        loop(False)
    e("s_nop 15")
    e("s_nop 3")
    e("s_barrier")
    for k in range(8):
        e(f"ds_write_b128 v{V_RW}, {vr(ACC+4*k,4)} offset:{k*1024}")
    e(f"s_lshl_b32 s{S_T0k}, s{S_MT}, 18")
    e(f"s_lshl_b32 s{S_T1k}, s{S_MP}, 17")
    e(f"s_add_u32 s{S_T0k}, s{S_T0k}, s{S_T1k}")
    e(f"s_lshl_b32 s{S_T1k}, s{S_BR}, 11")
    e(f"s_add_u32 s{S_T0k}, s{S_T0k}, s{S_T1k}")
    e(f"s_lshl_b32 s{S_T1k}, s{S_NT}, 7")
    e(f"s_add_u32 s{S_T0k}, s{S_T0k}, s{S_T1k}")
    e(f"s_lshr_b32 s{S_T1k}, s{S_KQ}, 1")
    e(f"s_lshl_b32 s{S_T1k}, s{S_T1k}, 6")
    e(f"s_add_u32 s{S_T0k}, s{S_T0k}, s{S_T1k}")
    e(f"s_and_b32 s{S_T1k}, s{S_KQ}, 1")
    e(f"s_lshl_b32 s{S_T1k}, s{S_T1k}, 4")
    e(f"s_add_u32 s{S_T0k}, s{S_T0k}, s{S_T1k}")
    e("s_waitcnt lgkmcnt(0)")
    e("s_barrier")
    for k in range(4):
        for q in range(2):
            e(f"ds_read_b128 {vr(FA+8*k+4*q,4)}, v{V_RR} offset:{k*16384+q*1024}")
    e("s_waitcnt lgkmcnt(0)")
    for r in range(8):
        e(f"v_add_f32 v{FA+r}, v{FA+r}, v{FA+8+r}")
        e(f"v_add_f32 v{FA+16+r}, v{FA+16+r}, v{FA+24+r}")
    for r in range(8):
        e(f"v_add_f32 v{FA+r}, v{FA+r}, v{FA+16+r}")
    for k in range(4):
        e(f"v_cvt_pk_bf16_f32 v{FA+32+k}, v{FA+2*k}, v{FA+2*k+1}")
    e(f"buffer_store_dwordx4 {vr(FA+32,4)}, v{V_OA}, s[{SRD_OUT}:{SRD_OUT+3}], s{S_T0k} offen")
    if STAMP:
        e("s_waitcnt vmcnt(0)")
    stamp(e, 63, 30)


e = Em()
emit_k1(e)
txt = HEADER + e.text() + '.section .rodata,"a"\n.p2align 6\n' + kernel_desc("concat_heads__gqa_block_cached__mha_block_cached__near_ridge_kernel")
open(OUT, "w").write(txt)
print("wrote", OUT, len(txt), "bytes")
```

```python
import sys, math, struct
sys.path.insert(0, "tools")
from asmlib import Em, vr, sr, kernel_desc

OUT = sys.argv[1] if len(sys.argv) > 1 else "concat_heads__gqa_block_cached__mha_block_cached__near_ridge.s"
OPT = dict(a.split("=") for a in sys.argv[2:])


def pol(name, dflt):
    v = OPT.get(name, dflt).strip()
    return "" if v in ("", "0") else " " + v.replace("+", " ")


NT_KVB = pol("nt_kvb", "nt")
NT_KVA = pol("nt_kva", "0")
NT_W = pol("nt_w", "0")
NT_X = pol("nt_x", "0")
NT_WO = pol("nt_wo", "0")
NT_OST = pol("nt_ost", "sc1")
NT_OLD = pol("nt_old", "sc1")
STAMP = int(OPT.get("stamp", "0"))
ONLY = OPT.get("only", "")
GRPBIT = int(OPT.get("grpbit", "4"))
FT = int(OPT.get("ft", "0"))
FT2 = int(OPT.get("ft2", "0"))
FT2O = int(OPT.get("ft2o", "0"))
KPRE_STEP = int(OPT.get("kpre_step", "2"))
SRD_ST = 88


def srd(e, dst, lo, hi, size, add=0):
    if add:
        e(f"s_add_u32 s{dst}, s{lo}, {add:#x}")
        e(f"s_addc_u32 s{dst+1}, s{hi}, 0")
        e(f"s_and_b32 s{dst+1}, s{dst+1}, 0xffff")
    else:
        e(f"s_mov_b32 s{dst}, s{lo}")
        e(f"s_and_b32 s{dst+1}, s{hi}, 0xffff")
    e(f"s_mov_b32 s{dst+2}, {size:#x}")
    e(f"s_mov_b32 s{dst+3}, 0x20000")


def stamp_init(e, wsreg, wavereg, base):
    if not STAMP: return
    if STAMP == 9:
        srd(e, SRD_ST, 38, 39, 256)
        e(f"s_cmp_eq_u32 s2, 101")
        e(f"s_cselect_b32 s92, 32, 0")
        e(f"s_cselect_b32 s93, 0, s2")
        e(f"s_add_u32 s93, s93, s{wavereg}")
        e(f"s_cmp_eq_u32 s93, 0")
        e(f"s_cselect_b32 s{SRD_ST+2}, 256, 0")
        return
    srd(e, SRD_ST, wsreg, wsreg + 1, 1 << 20, add=base)
    e(f"s_lshl_b32 s92, s2, 3")
    e(f"s_add_u32 s92, s92, s{wavereg}")
    e(f"s_lshl_b32 s92, s92, 8")


def stamp(e, idx, vt=250):
    if not STAMP: return
    if STAMP == 9:
        idx = {0: 1, 33: 2, 60: 3, 61: 4, 62: 5, 63: 6}[idx]
    e("s_memrealtime s[94:95]")
    e("s_waitcnt lgkmcnt(0)")
    e(f"v_mov_b32 v{vt}, s94")
    e(f"v_mov_b32 v{vt+1}, 0")
    e.vmem(f"buffer_store_dword v{vt}, v{vt+1}, s[{SRD_ST}:{SRD_ST+3}], s92 offen offset:{idx*4}")


def f32bits(x):
    return struct.unpack("<I", struct.pack("<f", x))[0]


CSCALE = (128 ** -0.5) * math.log2(math.e)

HEADER = """; Kernarg layout (104 bytes, ptrs only, base s[0:1]):
; @launch grid=(256,1,1) block=(512,1,1) lds=163840
.amdgcn_target "amdgcn-amd-amdhsa--gfx950"
.text
"""

S_W, S_J, S_I, S_XCD, S_CI = 3, 4, 5, 7, 8
S_HA, S_BPA, S_HB, S_BPB = 9, 10, 11, 12
SRD_X, SRD_WQ, SRD_K, SRD_V, SRD_O = 44, 48, 52, 56, 60
S_WQOFF, S_XOFF, S_KVOFF, S_RING, S_C, S_T0, S_T1, S_T2 = 72, 73, 74, 75, 76, 77, 78, 79
S_WQK, S_XK, S_KROT, S_WQM, S_XM = 80, 81, 82, 83, 84
V_L16 = 5
V_KVD = 6
V_KR = 10
V_VR = 18
V_T = 26
V_Q = 32
V_F = 64
V_G = 96
V_S = 128
V_WQR = 96
V_XR = 100
V_QXW = 108
V_WQD = 112
V_XD = 116
V_TWQ, V_TX, V_TD = 120, 121, 122
V_TKV = 31
QF = 128
QACC = 224

NR = 4
KPRE1 = int(OPT.get("kpre1", "6"))
FTKV = int(OPT.get("ftkv", "0"))
PACE = int(OPT.get("pace", "1"))
AROT = int(OPT.get("arot", "1"))
FTA = int(OPT.get("fta", "0"))
STAG = int(OPT.get("stag", "1"))
FLAG_OFF = 8 << 20


def wq_piece(slot):
    return 98304 + 16384 * slot


def x_piece(slot):
    return 16384 + 24576 * slot


XCH = 98304


def emit_k1_prologue(e):
    e.raw(".globl concat_heads__gqa_block_cached__mha_block_cached__near_ridge_kernel")
    e.raw(".p2align 8")
    e.raw(".type concat_heads__gqa_block_cached__mha_block_cached__near_ridge_kernel,@function")
    e.label("concat_heads__gqa_block_cached__mha_block_cached__near_ridge_kernel")
    e("s_cmp_ge_u32 s2, 256")
    e("s_cbranch_scc1 L_k1_end")
    e("s_load_dwordx16 s[16:31], s[0:1], 0")
    e("s_load_dwordx8 s[32:39], s[0:1], 64")
    e("s_load_dwordx2 s[40:41], s[0:1], 96")
    e("v_lshrrev_b32 v1, 6, v0")
    e("v_and_b32 v0, 63, v0")
    e("s_nop 0")
    e(f"v_readfirstlane_b32 s{S_W}, v1")
    e(f"s_and_b32 s{S_XCD}, s2, 7")
    e(f"s_lshr_b32 s{S_CI}, s2, 3")
    e(f"s_and_b32 s{S_J}, s{S_W}, 3")
    e(f"s_lshr_b32 s{S_I}, s{S_W}, 2")
    e(f"s_mov_b32 s{S_C}, {f32bits(CSCALE):#x}")
    e(f"s_lshl_b32 s{S_WQM}, s{S_J}, 12")
    e(f"s_lshl_b32 s{S_XM}, s{S_J}, 11")
    e(f"s_lshr_b32 s{S_HA}, s{S_XCD}, 1")
    e(f"s_lshl_b32 s{S_HA}, s{S_HA}, 3")
    e(f"s_and_b32 s{S_T0}, s{S_CI}, 7")
    e(f"s_add_u32 s{S_HA}, s{S_HA}, s{S_T0}")
    e(f"s_and_b32 s{S_BPA}, s{S_XCD}, 1")
    e(f"s_lshl_b32 s{S_BPA}, s{S_BPA}, 2")
    e(f"s_lshr_b32 s{S_T0}, s{S_CI}, 3")
    e(f"s_add_u32 s{S_BPA}, s{S_BPA}, s{S_T0}")
    e(f"s_lshl_b32 s{S_HB}, s{S_XCD}, 2")
    e(f"s_and_b32 s{S_T0}, s{S_CI}, 3")
    e(f"s_add_u32 s{S_HB}, s{S_HB}, s{S_T0}")
    e(f"s_lshr_b32 s{S_BPB}, s{S_CI}, 2")
    T0, T1, T2, T3, T4, T5 = 64, 65, 66, 67, 68, 69
    e(f"v_lshlrev_b32 v{V_L16}, 4, v0")
    e(f"v_lshrrev_b32 v{T0}, 4, v0")
    e(f"v_and_b32 v{T1}, 15, v0")
    e(f"v_lshlrev_b32 v{T2}, 2, v{T0}")
    e(f"v_xor_b32 v{T1}, v{T1}, v{T2}")
    e(f"v_lshlrev_b32 v{T1}, 4, v{T1}")
    e(f"v_lshlrev_b32 v{T2}, 8, v{T0}")
    e(f"v_add_u32 v{V_KVD}, v{T1}, v{T2}")
    for n in range(1, 4):
        e(f"v_xor_b32 v{V_KVD+n}, {16*n}, v{V_KVD}")
    e(f"v_lshlrev_b32 v{T2}, 13, v{T0}")
    e(f"v_add_u32 v{V_WQD}, v{T1}, v{T2}")
    for q in range(1, 4):
        e(f"v_xor_b32 v{V_WQD+q}, {16*q}, v{V_WQD}")
        e(f"v_add_u32 v{V_WQD+q}, {q*(32768-1024)}, v{V_WQD+q}")
    e(f"v_lshrrev_b32 v{T2}, 3, v0")
    e(f"v_lshlrev_b32 v{T2}, 11, v{T2}")
    e(f"v_and_b32 v{T3}, 7, v0")
    e(f"v_xor_b32 v{T3}, v{T3}, v{T0}")
    e(f"v_lshlrev_b32 v{T3}, 4, v{T3}")
    e(f"v_add_u32 v{V_XD}, v{T2}, v{T3}")
    e(f"v_xor_b32 v{V_XD+1}, 64, v{V_XD}")
    e(f"v_add_u32 v{V_XD+1}, {8*2048-1024}, v{V_XD+1}")
    e(f"v_and_b32 v{T2}, 31, v0")
    e(f"v_lshrrev_b32 v{T3}, 5, v0")
    e(f"v_lshrrev_b32 v{T4}, 1, v{T2}")
    e(f"v_and_b32 v{T4}, 7, v{T4}")
    e(f"v_xor_b32 v{T4}, v{T4}, v{T3}")
    e(f"v_lshlrev_b32 v{T4}, 4, v{T4}")
    e(f"v_lshlrev_b32 v{T5}, 7, v{T2}")
    e(f"v_add_u32 v{T4}, v{T4}, v{T5}")
    e(f"v_mov_b32 v{V_XR}, v{T4}")
    for s in range(1, 4):
        e(f"v_xor_b32 v{V_XR+s}, {32*s}, v{V_XR}")
    for s in range(4):
        e(f"v_add_u32 v{V_XR+4+s}, 65536, v{V_XR+s}")
    e(f"v_and_b32 v{T4}, 3, v{T2}")
    e(f"v_lshlrev_b32 v{T4}, 2, v{T4}")
    e(f"v_lshrrev_b32 v{T5}, 2, v{T2}")
    e(f"v_and_b32 v{T5}, 3, v{T5}")
    e(f"v_or_b32 v{T4}, v{T4}, v{T5}")
    e(f"v_xor_b32 v{T4}, v{T4}, v{T3}")
    e(f"v_lshlrev_b32 v{T4}, 4, v{T4}")
    e(f"v_lshlrev_b32 v{T5}, 8, v{T2}")
    e(f"v_add_u32 v{V_KR}, v{T4}, v{T5}")
    for s in range(1, 8):
        e(f"v_xor_b32 v{V_KR+s}, {32*s}, v{V_KR}")
    e(f"v_and_b32 v{T1}, 1, v{T0}")
    e(f"v_lshrrev_b32 v{T2}, 2, v0")
    e(f"v_and_b32 v{T2}, 3, v{T2}")
    e(f"v_and_b32 v{T4}, 1, v0")
    e(f"v_lshrrev_b32 v{T5}, 1, v0")
    e(f"v_and_b32 v{T5}, 1, v{T5}")
    e(f"v_lshlrev_b32 v{T5}, 3, v{T5}")
    e(f"v_lshlrev_b32 v{V_VR+2}, 6, v{T2}")
    e(f"v_add_u32 v{T5}, v{T5}, v{V_VR+2}")
    e(f"v_lshlrev_b32 v1, 1, v{T4}")
    e(f"v_or_b32 v1, v1, v{T1}")
    e(f"v_xor_b32 v1, v1, v{T3}")
    e(f"v_lshlrev_b32 v1, 4, v1")
    e(f"v_add_u32 v1, v1, v{T5}")
    e(f"v_lshlrev_b32 v{V_VR+1}, 2, v{T3}")
    e(f"v_add_u32 v{V_VR+1}, v{V_VR+1}, v{T2}")
    e(f"v_lshlrev_b32 v{V_VR+1}, 8, v{V_VR+1}")
    e(f"v_add_u32 v{V_VR}, v1, v{V_VR+1}")
    for dt in range(4):
        for z in range(2):
            if dt == 0 and z == 0:
                continue
            e(f"v_xor_b32 v{V_VR+2*dt+z}, {64*dt + 32*z + 2048*z}, v{V_VR}")
    e(f"v_lshlrev_b32 v1, 1, v{T1}")
    e(f"v_or_b32 v1, v1, v{T4}")
    e(f"v_lshlrev_b32 v{V_WQR+1}, 1, v{T3}")
    e(f"v_xor_b32 v1, v1, v{V_WQR+1}")
    e(f"v_lshlrev_b32 v1, 4, v1")
    e(f"v_add_u32 v1, v1, v{T5}")
    e(f"v_lshlrev_b32 v{V_WQR+1}, 3, v{T3}")
    e(f"v_add_u32 v{V_WQR+1}, v{V_WQR+1}, v{T2}")
    e(f"v_lshlrev_b32 v{V_WQR+1}, 8, v{V_WQR+1}")
    e(f"v_add_u32 v1, v1, v{V_WQR+1}")
    e(f"s_lshl_b32 s{S_T0}, s{S_J}, 6")
    e(f"v_xor_b32 v1, s{S_T0}, v1")
    e(f"v_add_u32 v{V_WQR}, 65536, v1")
    e(f"v_xor_b32 v{V_WQR+1}, {16+1024}, v{V_WQR}")
    e(f"v_add_u32 v{V_WQR+2}, 65536, v{V_WQR}")
    e(f"v_add_u32 v{V_WQR+3}, 65536, v{V_WQR+1}")
    e(f"s_lshl_b32 s{S_T0}, s{S_I}, 14")
    e(f"s_add_u32 s{S_T0}, s{S_T0}, s{S_XM}")
    e(f"s_add_u32 s{S_T0}, s{S_T0}, {XCH}")
    e(f"v_add_u32 v{V_QXW}, s{S_T0}, v{V_L16}")
    e(f"v_and_b32 v1, 15, v0")
    e(f"v_lshrrev_b32 v{V_TWQ}, 1, v1")
    e(f"v_lshlrev_b32 v{V_TWQ}, 13, v{V_TWQ}")
    e(f"v_and_b32 v1, 1, v1")
    e(f"v_lshlrev_b32 v1, 7, v1")
    e(f"v_add_u32 v{V_TWQ}, v{V_TWQ}, v1")
    e(f"v_and_b32 v{V_TX}, 7, v0")
    e(f"v_lshlrev_b32 v{V_TX}, 11, v{V_TX}")
    e(f"v_lshlrev_b32 v{V_TKV}, 7, v0")
    e("s_waitcnt lgkmcnt(0)")
    stamp_init(e, 40, S_W, 16 << 20)
    srd(e, 64, 40, 41, 65536, add=FLAG_OFF)
    e(f"s_cmp_lg_u32 s{S_W}, 0")
    e("s_cbranch_scc1 L_k1_noflag")
    e("s_lshl_b32 s68, s2, 8")
    e("v_mov_b32 v1, 0")
    e("s_mov_b64 exec, 1")
    e("buffer_store_dword v1, v1, s[64:67], s68 offen sc1")
    e("s_mov_b64 exec, -1")
    e.label("L_k1_noflag")
    e(f"s_cmp_ge_u32 s{S_W}, 4")
    e("s_cbranch_scc1 L_k1_B")


def emit_k1_role(e, g):
    e.vm_issued = 0
    e.lg_issued = 0
    nslot = 3 if g == 1 else 2
    wstride = 24576 if g == 1 else 16384
    rbase = 0 if g == 1 else 98304
    SH, SBP = (S_HA, S_BPA) if g == 0 else (S_HB, S_BPB)
    kv_tok, wq_tok, x_tok = {}, {}, {}

    def ring_setup(br, adv=0):
        sh, sbp = (S_HA, S_BPA) if br == 0 else (S_HB, S_BPB)
        px, pw = (16, 22) if br == 0 else (26, 32)
        srd(e, SRD_X, px, px + 1, 1 << 20)
        srd(e, SRD_WQ, pw, pw + 1, 8 << 20)
        e(f"s_lshl_b32 s{S_XOFF}, s{sbp}, 17")
        e(f"s_lshl_b32 s{S_T0}, s{S_J}, 15")
        e(f"s_add_u32 s{S_XOFF}, s{S_XOFF}, s{S_T0}")
        e(f"s_lshl_b32 s{S_WQOFF}, s{sh}, 8")
        e(f"s_lshl_b32 s{S_T0}, s{S_J}, 17")
        e(f"s_add_u32 s{S_WQOFF}, s{S_WQOFF}, s{S_T0}")
        if br == 1:
            e(f"s_lshl_b32 s{S_T0}, s{sbp}, 1")
            e(f"s_and_b32 s{S_T1}, s{S_CI}, 3")
            e(f"s_lshl_b32 s{S_T1}, s{S_T1}, 2")
        else:
            e(f"s_lshr_b32 s{S_T0}, s{S_CI}, 3")
            e(f"s_lshl_b32 s{S_T0}, s{S_T0}, 2")
            e(f"s_and_b32 s{S_T1}, s{S_CI}, 7")
            e(f"s_lshl_b32 s{S_T1}, s{S_T1}, 1")
        e(f"s_add_u32 s{S_T0}, s{S_T0}, s{S_T1}")
        if adv:
            e(f"s_add_u32 s{S_T0}, s{S_T0}, {adv}")
        e(f"s_and_b32 s{S_T0}, s{S_T0}, 15")
        e(f"s_lshl_b32 s{S_WQK}, s{S_T0}, 19")
        e(f"s_lshl_b32 s{S_XK}, s{S_T0}, 7")

    def issue_chunk(c):
        if c == 16:
            ring_setup(0)
        e(f"s_add_u32 m0, s{S_XM}, {x_piece(c % NR)}")
        e(f"s_add_u32 s{S_T0}, s{S_XOFF}, s{S_XK}")
        e.vmem(f"buffer_load_dwordx4 v{V_XD}, s[{SRD_X}:{SRD_X+3}], s{S_T0} offen{NT_X} lds")
        e.vmem(f"buffer_load_dwordx4 v{V_XD+1}, s[{SRD_X}:{SRD_X+3}], s{S_T0} offen offset:1024{NT_X} lds")
        e(f"s_add_u32 m0, s{S_WQM}, {wq_piece(c % NR)}")
        e(f"s_add_u32 s{S_T0}, s{S_WQOFF}, s{S_WQK}")
        for q in range(4):
            wq_tok[c] = e.vmem(f"buffer_load_dwordx4 v{V_WQD+q}, s[{SRD_WQ}:{SRD_WQ+3}], s{S_T0} offen offset:{q*1024}{NT_W} lds")
        e(f"s_add_u32 s{S_XK}, s{S_XK}, 128")
        e(f"s_and_b32 s{S_XK}, s{S_XK}, 2047")
        e(f"s_add_u32 s{S_WQK}, s{S_WQK}, 0x80000")
        e(f"s_and_b32 s{S_WQK}, s{S_WQK}, 0x7fffff")

    def kv_setup():
        pk, pv = (18, 20) if g == 0 else (28, 30)
        kvsize = (8 << 20) if g == 0 else (64 << 20)
        srd(e, SRD_K, pk, pk + 1, kvsize)
        srd(e, SRD_V, pv, pv + 1, kvsize)
        srd(e, SRD_O, 40, 41, 4 << 20, add=g * (4 << 20))
        e(f"s_lshl_b32 s{S_T0}, s{SBP}, 1")
        e(f"s_lshr_b32 s{S_T1}, s{S_J}, 1")
        e(f"s_add_u32 s{S_T0}, s{S_T0}, s{S_T1}")
        if g == 0:
            e(f"s_lshl_b32 s{S_T1}, s{S_T0}, 2")
            e(f"s_lshr_b32 s{S_T2}, s{SH}, 3")
        else:
            e(f"s_lshl_b32 s{S_T1}, s{S_T0}, 5")
            e(f"s_mov_b32 s{S_T2}, s{SH}")
        e(f"s_add_u32 s{S_T1}, s{S_T1}, s{S_T2}")
        e(f"s_lshl_b32 s{S_KVOFF}, s{S_T1}, 17")
        e(f"s_and_b32 s{S_T1}, s{S_J}, 1")
        e(f"s_lshl_b32 s{S_T1}, s{S_T1}, 16")
        e(f"s_add_u32 s{S_KVOFF}, s{S_KVOFF}, s{S_T1}")
        if g == 1:
            e(f"s_add_u32 s{S_KROT}, s{SH}, s{S_T0}")
        elif AROT:
            e(f"s_mov_b32 s{S_KROT}, s{SH}")
        else:
            e(f"s_mov_b32 s{S_KROT}, s{S_T0}")
        e(f"s_and_b32 s{S_KROT}, s{S_KROT}, 7")
        e(f"s_lshl_b32 s{S_KROT}, s{S_KROT}, 13")
        e(f"s_mul_i32 s{S_RING}, s{S_J}, {wstride}")
        if rbase:
            e(f"s_add_u32 s{S_RING}, s{S_RING}, {rbase}")
        for i in range(8):
            e(f"v_add_u32 v{V_KR+i}, s{S_RING}, v{V_KR+i}")
            e(f"v_add_u32 v{V_VR+i}, s{S_RING}, v{V_VR+i}")

    def issue_kv(n):
        nt_kv = NT_KVB if g == 1 else NT_KVA
        srd_ = SRD_K if n < 8 else SRD_V
        t = n & 7
        slot = n % nslot
        fta = FTA and g == 0 and t == 0
        if fta:
            nt_kv = " nt"
        e(f"s_add_u32 s{S_T0}, s{S_KROT}, {t*8192}")
        e(f"s_and_b32 s{S_T0}, s{S_T0}, 0xffff")
        e(f"s_add_u32 s{S_T0}, s{S_T0}, s{S_KVOFF}")
        for half in range(2):
            e(f"s_add_u32 m0, s{S_RING}, {slot*8192 + half*4096}")
            if half:
                e(f"s_add_u32 s{S_T0}, s{S_T0}, 4096")
            else:
                e("s_nop 0")
            for q in range(4):
                tok = e.vmem(f"buffer_load_dwordx4 v{V_KVD+q}, s[{srd_}:{srd_+3}], s{S_T0} offen offset:{q*1024}{nt_kv} lds")
        kv_tok[n] = tok
        if fta:
            e(f"s_sub_u32 s{S_T0}, s{S_T0}, 4096")
            e.vmem(f"buffer_load_dword v1, v{V_TKV}, s[{srd_}:{srd_+3}], s{S_T0} offen")

    def touch_kva():
        e(f"s_add_u32 s{S_T0}, s{S_KROT}, s{S_KVOFF}")
        for srd_ in (SRD_K, SRD_V):
            if FTKV == 1:
                e.vmem(f"buffer_load_dword v{V_TD}, v{V_TKV}, s[{srd_}:{srd_+3}], s{S_T0} offen nt")
            e.vmem(f"buffer_load_dword v{V_TD}, v{V_TKV}, s[{srd_}:{srd_+3}], s{S_T0} offen")

    def reads_ks(c, ks):
        fb = QF + 48 * (c & 1) + 12 * ks
        slot = c % NR
        off = wq_piece(slot) + ks * 4096
        for z in range(2):
            e.lds(f"ds_read_b64_tr_b16 {vr(fb+2*z,2)}, v{V_WQR+2*((off>>16)-1)+z} offset:{off & 0xffff}")
        for it in range(2):
            off = x_piece(slot) + it * 4096
            e.lds(f"ds_read_b128 {vr(fb+4+4*it,4)}, v{V_XR+4*(off>>16)+ks} offset:{off & 0xffff}")

    def mfma_ks(c, ks):
        fb = QF + 48 * (c & 1) + 12 * ks
        for it in range(2):
            acc = QACC + 16 * it
            cc = "0" if ((c & 15) == 0 and ks == 0) else vr(acc, 16)
            e(f"v_mfma_f32_32x32x16_bf16 {vr(acc,16)}, {vr(fb,4)}, {vr(fb+4+4*it,4)}, {cc}")

    def mine(c):
        return 0 <= c < 32 and ((c < 16) == (g == 1))

    def loads(c):
        return c < 32 and ((c <= 18) == (g == 0))

    stamp(e, 0, 124)
    if g == 0:
        ring_setup(1)
        for c in range(NR - 1):
            issue_chunk(c)
    else:
        ring_setup(0, adv=3)
    kv_setup()
    for s in range(32):
        e.comment(f"qproj step {s}")
        if loads(s):
            e.wait_vm(wq_tok[s])
        e("s_barrier")
        for ks in range(4):
            if mine(s - 1):
                mfma_ks(s - 1, ks)
            if mine(s):
                reads_ks(s, ks)
        if loads(s + NR - 1):
            issue_chunk(s + NR - 1)
        if s == 8 and OPT.get("qonly"):
            stamp(e, 60, 124)
        if s == 15 and OPT.get("qonly"):
            stamp(e, 61, 124)
        if s == 22 and OPT.get("qonly"):
            stamp(e, 62, 124)
        if s == 31 and OPT.get("qonly"):
            stamp(e, 63, 124)
            stamp(e, 33, 124)
            e("s_endpgm")
        if g == 1 and s == KPRE_STEP and not OPT.get("qonly"):
            issue_kv(0)
        if g == 1 and s == KPRE1 and not OPT.get("qonly"):
            issue_kv(1)
        if mine(s):
            e("s_waitcnt lgkmcnt(0)")
        if STAMP == 2:
            stamp(e, 1 + s, 124)
    if mine(31):
        for ks in range(4):
            mfma_ks(31, ks)
    e("s_nop 15")
    e("s_nop 3")
    for k in range(16):
        e(f"v_cvt_pk_bf16_f32 v{V_F+k}, v{QACC+2*k}, v{QACC+2*k+1}")
    for it in range(2):
        for ss in range(2):
            e(f"ds_write_b128 v{V_QXW}, {vr(V_F+8*it+4*ss,4)} offset:{it*8192+ss*1024}")
    e(f"s_lshr_b32 s{S_T1}, s{S_J}, 1")
    e(f"s_lshl_b32 s{S_T1}, s{S_T1}, 13")
    e(f"s_add_u32 s{S_T1}, s{S_T1}, {XCH + g*16384}")
    e(f"v_add_u32 v{V_T}, s{S_T1}, v{V_L16}")
    e("s_waitcnt lgkmcnt(0)")
    e("s_barrier")
    for s in range(8):
        e(f"ds_read_b128 {vr(V_Q+4*s,4)}, v{V_T} offset:{s*1024}")
    e("s_waitcnt lgkmcnt(0)")
    e("s_barrier")
    for n in range(2 if (g == 1 and not OPT.get("qonly")) else 0, nslot):
        issue_kv(n)
    stamp(e, 33, V_T + 2)

    VMX = V_T
    VM, VMC, VL, VE, VP = V_Q, V_Q + 1, V_Q + 2, V_Q + 8, V_Q + 16

    def max_tile(t):
        b = V_S + 16 * t
        for ch in range(2):
            bb = b + 8 * ch
            if t == 0:
                e(f"v_max3_f32 v{VMX+ch}, v{bb}, v{bb+1}, v{bb+2}")
                e(f"v_max3_f32 v{VMX+ch}, v{VMX+ch}, v{bb+3}, v{bb+4}")
                e(f"v_max3_f32 v{VMX+ch}, v{VMX+ch}, v{bb+5}, v{bb+6}")
                e(f"v_max_f32 v{VMX+ch}, v{VMX+ch}, v{bb+7}")
            else:
                for k in range(4):
                    e(f"v_max3_f32 v{VMX+ch}, v{VMX+ch}, v{bb+2*k}, v{bb+2*k+1}")

    def exp_tile(t):
        p = VP + 8 * (t & 1)
        for hf in range(2):
            b = V_S + 16 * t + 8 * hf
            for i in range(8):
                e(f"v_fma_f32 v{VE+i}, v{b+i}, s{S_C}, -v{VMC}")
            for i in range(8):
                e(f"v_exp_f32 v{VE+i}, v{VE+i}")
            e("s_nop 0")
            for i in range(8):
                e(f"v_add_f32 v{VL+(i&3)}, v{VL+(i&3)}, v{VE+i}")
            for k in range(4):
                e(f"v_cvt_pk_bf16_f32 v{p+4*hf+k}, v{VE+2*k}, v{VE+2*k+1}")

    for t in range(8):
        e.comment(f"K tile {t}")
        if PACE == 2 and t > 0:
            e("s_barrier")
        e.wait_vm(kv_tok[t])
        if PACE == 1 and t > 0:
            e("s_barrier")
        toks = []
        for s in range(8):
            toks.append(e.lds(f"ds_read_b128 {vr(V_F+4*s,4)}, v{V_KR+s} offset:{(t%nslot)*8192}"))
        if t > 0:
            max_tile(t - 1)
        for s in range(8):
            e.wait_lds(toks[s])
            c = "0" if s == 0 else vr(V_S + 16 * t, 16)
            e(f"v_mfma_f32_32x32x16_bf16 {vr(V_S+16*t,16)}, {vr(V_F+4*s,4)}, {vr(V_Q+4*s,4)}, {c}")
        issue_kv(t + nslot)
        if STAMP == 2:
            stamp(e, 34 + t, V_T + 2)
    e("s_nop 7")
    max_tile(7)
    e(f"v_max_f32 v{VMX}, v{VMX}, v{VMX+1}")
    e(f"v_mov_b32 v{VMX+1}, v{VMX}")
    e("s_nop 1")
    e(f"v_permlane32_swap_b32 v{VMX}, v{VMX+1}")
    e("s_nop 1")
    e(f"v_max_f32 v{VM}, v{VMX}, v{VMX+1}")
    e(f"v_mul_f32 v{VMC}, s{S_C}, v{VM}")
    for i in range(4):
        e(f"v_mov_b32 v{VL+i}, 0")
    exp_tile(0)
    exp_tile(1)
    OA = [V_S, V_S + 16, V_G, V_G + 16]
    for t in range(8):
        n = 8 + t
        if PACE == 2:
            e("s_barrier")
        e.wait_vm(kv_tok[n])
        if PACE == 1:
            e("s_barrier")
        toks = []
        for u in range(2):
            for dt in range(4):
                for z in range(2):
                    toks.append(e.lds(f"ds_read_b64_tr_b16 {vr(V_F+16*u+4*dt+2*z,2)}, v{V_VR+2*dt+z} offset:{(n%nslot)*8192+u*4096}"))
        p = VP + 8 * (t & 1)
        for u in range(2):
            for dt in range(4):
                e.wait_lds(toks[8 * u + 2 * dt + 1])
                c = "0" if (t == 0 and u == 0) else vr(OA[dt], 16)
                e(f"v_mfma_f32_32x32x16_bf16 {vr(OA[dt],16)}, {vr(V_F+16*u+4*dt,4)}, {vr(p+4*u,4)}, {c}")
        if n + nslot < 16:
            issue_kv(n + nslot)
        if t + 2 < 8:
            exp_tile(t + 2)
        if STAMP == 2:
            stamp(e, 42 + t, V_T + 2)
    stamp(e, 60, V_T + 2)
    e(f"v_add_f32 v{VL}, v{VL}, v{VL+1}")
    e(f"v_add_f32 v{VL+2}, v{VL+2}, v{VL+3}")
    e(f"v_add_f32 v{VL}, v{VL}, v{VL+2}")
    e(f"v_mov_b32 v{VL+1}, v{VL}")
    e("s_nop 1")
    e(f"v_permlane32_swap_b32 v{VL}, v{VL+1}")
    e("s_nop 1")
    e(f"v_add_f32 v{VM+1}, v{VL}, v{VL+1}")
    e("s_nop 15")
    lab = f"L_k1_g{g}"
    e(f"v_add_u32 v{V_T+1}, s{S_RING}, v{V_L16}")
    e(f"s_xor_b32 s{S_T1}, s{S_J}, 1")
    e(f"s_mul_i32 s{S_T1}, s{S_T1}, {wstride}")
    if rbase:
        e(f"s_add_u32 s{S_T1}, s{S_T1}, {rbase}")
    e(f"v_add_u32 v{V_T+2}, s{S_T1}, v{V_L16}")
    e(f"v_lshlrev_b32 v{V_T+3}, 3, v0")
    e(f"v_add_u32 v1, s{S_T1}, v{V_T+3}")
    e(f"v_add_u32 v{V_T+3}, s{S_RING}, v{V_T+3}")
    e(f"ds_write_b64 v{V_T+3}, {vr(VM,2)} offset:8192")
    e(f"s_and_b32 s{S_T2}, s{S_J}, 1")
    e(f"s_cmp_eq_u32 s{S_T2}, 1")
    e(f"s_cbranch_scc1 {lab}_j1")
    for k in range(8):
        e(f"ds_write_b128 v{V_T+1}, {vr(V_G+4*k,4)} offset:{k*1024}")
    e(f"s_branch {lab}_jd")
    e.label(f"{lab}_j1")
    for k in range(8):
        e(f"ds_write_b128 v{V_T+1}, {vr(V_S+4*k,4)} offset:{k*1024}")
    e("s_waitcnt lgkmcnt(0)")
    for k in range(32):
        e(f"v_mov_b32 v{V_S+k}, v{V_G+k}")
    e.label(f"{lab}_jd")
    e("s_waitcnt lgkmcnt(0)")
    e("s_barrier")
    PO = V_F
    OACC = V_S
    e(f"ds_read_b64 {vr(VM+2,2)}, v1 offset:8192")
    for k in range(8):
        e(f"ds_read_b128 {vr(PO+4*k,4)}, v{V_T+2} offset:{k*1024}")
    e("s_waitcnt lgkmcnt(8)")
    MT, FA_, FB_, LT = VM + 4, VM + 5, VM + 6, VM + 7
    e(f"v_max_f32 v{MT}, v{VM}, v{VM+2}")
    e(f"v_sub_f32 v{FA_}, v{VM}, v{MT}")
    e(f"v_sub_f32 v{FB_}, v{VM+2}, v{MT}")
    e(f"v_mul_f32 v{FA_}, s{S_C}, v{FA_}")
    e(f"v_mul_f32 v{FB_}, s{S_C}, v{FB_}")
    e(f"v_exp_f32 v{FA_}, v{FA_}")
    e(f"v_exp_f32 v{FB_}, v{FB_}")
    e("s_nop 0")
    e(f"v_mul_f32 v{LT}, v{VM+1}, v{FA_}")
    e(f"v_fma_f32 v{LT}, v{VM+3}, v{FB_}, v{LT}")
    e(f"v_rcp_f32 v{LT}, v{LT}")
    e("s_nop 0")
    e(f"v_mul_f32 v{FA_}, v{FA_}, v{LT}")
    e(f"v_mul_f32 v{FB_}, v{FB_}, v{LT}")
    e(f"s_lshl_b32 s{S_T0}, s{SBP}, 5")
    e(f"s_add_u32 s{S_T0}, s{S_T0}, s{SH}")
    e(f"s_lshl_b32 s{S_T0}, s{S_T0}, 14")
    e(f"s_lshl_b32 s{S_T1}, s{S_J}, 12")
    e(f"s_add_u32 s{S_T0}, s{S_T0}, s{S_T1}")
    e("s_waitcnt lgkmcnt(0)")
    for k in range(32):
        e(f"v_mul_f32 v{OACC+k}, v{OACC+k}, v{FA_}")
        e(f"v_fma_f32 v{OACC+k}, v{PO+k}, v{FB_}, v{OACC+k}")
    for k in range(16):
        e(f"v_cvt_pk_bf16_f32 v{PO+k}, v{OACC+2*k}, v{OACC+2*k+1}")
    for fr in range(4):
        e(f"buffer_store_dwordx4 {vr(PO+4*fr,4)}, v{V_L16}, s[{SRD_O}:{SRD_O+3}], s{S_T0} offen offset:{fr*1024}{NT_OST}")
    if g == 0:
        e("s_branch L_oproj")


def emit_k1(e):
    emit_k1_prologue(e)
    emit_k1_role(e, 0)
    e.label("L_k1_B")
    emit_k1_role(e, 1)
    emit_oproj(e)
    e.label("L_k1_end")
    e("s_endpgm")


PRE_SS = int(OPT.get("pre_ss", "2"))


def emit_oproj(e):
    NSS = 5
    e.label("L_oproj")
    e.vm_issued = 0
    e.lg_issued = 0
    S_BR, S_NT, S_MT, S_KQ, S_MP = 9, 10, 11, 12, 13
    SRD_A, SRD_W, SRD_OUT, SRD_D = 44, 48, 52, 56
    S_OOFF, S_WOFF, S_W2K, S_T0k, S_T1k, S_CHW, S_CHO, S_CNT = 72, 73, 74, 77, 78, 80, 81, 82
    V_WD = 6
    V_WR = 8
    T0, T1, T2, T3, T4, T5 = range(20, 26)
    V_RW, V_RR, V_OA, V_DB = 26, 27, 28, 29
    FA = 128
    FO = 192
    ACC = 96
    e(f"s_lshr_b32 s{S_BR}, s{S_XCD}, 2")
    e(f"s_and_b32 s{S_T0k}, s{S_XCD}, 3")
    e(f"s_and_b32 s{S_T1k}, s{S_CI}, 3")
    e(f"s_lshl_b32 s{S_NT}, s{S_T0k}, 2")
    e(f"s_add_u32 s{S_NT}, s{S_NT}, s{S_T1k}")
    e(f"s_lshr_b32 s{S_MT}, s{S_CI}, 2")
    e(f"s_lshl_b32 s{S_CHW}, s{S_MT}, 1")
    e(f"s_lshl_b32 s{S_T1k}, s{S_T1k}, 2")
    e(f"s_add_u32 s{S_CHW}, s{S_CHW}, s{S_T1k}")
    e(f"s_and_b32 s{S_CHW}, s{S_CHW}, 15")
    e(f"s_mov_b32 s{S_CHO}, s{S_CHW}")
    e(f"s_lshl_b32 s{S_W2K}, s{S_W}, 11")
    e(f"s_lshr_b32 s{S_KQ}, s{S_W}, 1")
    e(f"s_and_b32 s{S_MP}, s{S_W}, 1")
    e(f"s_cmp_eq_u32 s{S_BR}, 1")
    e(f"s_cselect_b32 s{SRD_W}, s34, s24")
    e(f"s_cselect_b32 s{SRD_W+1}, s35, s25")
    e(f"s_and_b32 s{SRD_W+1}, s{SRD_W+1}, 0xffff")
    e(f"s_mov_b32 s{SRD_W+2}, {8<<20:#x}")
    e(f"s_mov_b32 s{SRD_W+3}, 0x20000")
    srd(e, SRD_A, 40, 41, 8 << 20)
    srd(e, SRD_OUT, 36, 37, 2 << 20)
    srd(e, SRD_D, 38, 39, 256)
    e(f"s_lshl_b32 s{S_OOFF}, s{S_BR}, 22")
    e(f"s_lshl_b32 s{S_T0k}, s{S_MT}, 19")
    e(f"s_add_u32 s{S_OOFF}, s{S_OOFF}, s{S_T0k}")
    e(f"s_lshl_b32 s{S_T0k}, s{S_MP}, 13")
    e(f"s_add_u32 s{S_OOFF}, s{S_OOFF}, s{S_T0k}")
    e(f"s_lshl_b32 s{S_T0k}, s{S_KQ}, 11")
    e(f"s_add_u32 s{S_OOFF}, s{S_OOFF}, s{S_T0k}")
    e(f"s_lshl_b32 s{S_WOFF}, s{S_W}, 15")
    e(f"s_lshl_b32 s{S_T0k}, s{S_NT}, 7")
    e(f"s_add_u32 s{S_WOFF}, s{S_WOFF}, s{S_T0k}")
    e(f"v_lshrrev_b32 v{T0}, 4, v0")
    e(f"v_lshrrev_b32 v{T2}, 3, v0")
    e(f"v_lshlrev_b32 v{T2}, 11, v{T2}")
    e(f"v_lshrrev_b32 v{T3}, 2, v0")
    e(f"v_and_b32 v{T3}, 4, v{T3}")
    e(f"v_and_b32 v{T4}, 7, v0")
    e(f"v_xor_b32 v{T3}, v{T3}, v{T4}")
    e(f"v_lshlrev_b32 v{T3}, 4, v{T3}")
    e(f"v_add_u32 v{V_WD}, v{T2}, v{T3}")
    e(f"v_add_u32 v{V_WD+1}, {8*2048-1024}, v{V_WD}")
    e(f"v_lshrrev_b32 v{T3}, 5, v0")
    e(f"v_and_b32 v{T1}, 1, v{T0}")
    e(f"v_lshrrev_b32 v{T2}, 2, v0")
    e(f"v_and_b32 v{T2}, 3, v{T2}")
    e(f"v_and_b32 v{T4}, 1, v0")
    e(f"v_lshlrev_b32 v{T4}, 1, v{T4}")
    e(f"v_or_b32 v{T4}, v{T4}, v{T1}")
    e(f"v_lshrrev_b32 v{T5}, 1, v{T2}")
    e(f"v_lshlrev_b32 v{T5}, 2, v{T5}")
    e(f"v_or_b32 v{T4}, v{T4}, v{T5}")
    e(f"v_lshlrev_b32 v{T4}, 4, v{T4}")
    e(f"v_lshrrev_b32 v{T5}, 1, v0")
    e(f"v_and_b32 v{T5}, 1, v{T5}")
    e(f"v_lshlrev_b32 v{T5}, 3, v{T5}")
    e(f"v_add_u32 v{T4}, v{T4}, v{T5}")
    e(f"v_lshlrev_b32 v{T5}, 4, v{T3}")
    e(f"v_add_u32 v{T5}, v{T5}, v{T2}")
    e(f"v_lshlrev_b32 v{T5}, 7, v{T5}")
    e(f"v_add_u32 v{T4}, v{T4}, v{T5}")
    e(f"s_lshl_b32 s{S_T1k}, s{S_KQ}, 12")
    e(f"v_add_u32 v{V_WR}, s{S_T1k}, v{T4}")
    e(f"v_add_u32 v{V_WR+1}, 512, v{V_WR}")
    e(f"v_xor_b32 v{V_WR+2}, 64, v{V_WR}")
    e(f"v_xor_b32 v{V_WR+3}, 64, v{V_WR+1}")
    for p in (1, 2):
        for i in range(4):
            e(f"v_add_u32 v{V_WR+4*p+i}, {65536*p}, v{V_WR+i}")
    e(f"s_lshl_b32 s{S_T0k}, s{S_W}, 13")
    e(f"v_add_u32 v{V_RW}, s{S_T0k}, v{V_L16}")
    e(f"s_lshl_b32 s{S_T0k}, s{S_MP}, 13")
    e(f"s_lshl_b32 s{S_T1k}, s{S_KQ}, 11")
    e(f"s_add_u32 s{S_T0k}, s{S_T0k}, s{S_T1k}")
    e(f"v_add_u32 v{V_RR}, s{S_T0k}, v{V_L16}")
    e(f"v_and_b32 v{V_OA}, 31, v0")
    e(f"v_lshlrev_b32 v{V_OA}, 12, v{V_OA}")
    e(f"v_lshlrev_b32 v{T4}, 5, v{T3}")
    e(f"v_add_u32 v{V_OA}, v{V_OA}, v{T4}")
    e(f"v_lshlrev_b32 v{V_DB}, 2, v0")
    e(f"v_mov_b32 v{T0}, 1")
    e(f"s_lshr_b32 s{S_T1k}, s2, 2")
    e(f"s_lshl_b32 s{S_T1k}, s{S_T1k}, 2")
    e(f"v_mov_b32 v{T1}, s{S_T1k}")
    if STAMP == 3:
        e("s_memrealtime s[96:97]")
    e("s_waitcnt vmcnt(0)")
    if STAMP == 3:
        e("s_memrealtime s[98:99]")
        e("s_waitcnt lgkmcnt(0)")
        e(f"v_mov_b32 v30, s96")
        e(f"v_mov_b32 v31, s98")
        e(f"v_mov_b32 v32, 0")
        e.vmem(f"buffer_store_dwordx2 v[30:31], v32, s[{SRD_ST}:{SRD_ST+3}], s92 offen offset:{58*4}")
    e("s_barrier")
    e(f"s_cmp_lg_u32 s{S_W}, 0")
    e("s_cbranch_scc1 L_op_noadd")
    e(f"v_mov_b32 v{T1}, 0")
    e("s_mov_b64 exec, 1")
    e(f"buffer_atomic_add v{T0}, v{T1}, s[{SRD_D}:{SRD_D+3}], 0 offen sc0")
    e("s_waitcnt vmcnt(0)")
    e(f"v_readfirstlane_b32 s{S_CNT}, v{T0}")
    e("s_mov_b64 exec, -1")
    e("s_nop 3")
    e(f"s_and_b32 s{S_CNT}, s{S_CNT}, 255")
    e(f"s_cmp_lg_u32 s{S_CNT}, 255")
    e("s_cbranch_scc1 L_op_noadd")
    e(f"v_mov_b32 v{T0}, 1")
    e(f"v_lshlrev_b32 v{T1}, 8, v0")
    for k in range(4):
        e(f"s_mov_b32 s{S_CNT}, {k*16384}")
        e(f"buffer_store_dword v{T0}, v{T1}, s[64:67], s{S_CNT} offen sc1")
    e.label("L_op_noadd")
    stamp(e, 61, 30)

    wtok, otok = {}, {}

    def w_pieces(s):
        out = []
        for hh in range(2):
            c = 2 * s + hh
            slot = (s % NSS) * 32768 + hh * 16384

            def p0(slot=slot):
                e(f"s_add_u32 m0, s{S_W2K}, {slot}")
                e(f"s_lshl_b32 s{S_T1k}, s{S_CHW}, 18")
                e(f"s_add_u32 s{S_T1k}, s{S_T1k}, s{S_WOFF}")
                e.vmem(f"buffer_load_dwordx4 v{V_WD}, s[{SRD_W}:{SRD_W+3}], s{S_T1k} offen{NT_WO} lds")

            def p1(c=c):
                wtok[s] = e.vmem(f"buffer_load_dwordx4 v{V_WD+1}, s[{SRD_W}:{SRD_W+3}], s{S_T1k} offen offset:1024{NT_WO} lds")
                e(f"s_add_u32 s{S_CHW}, s{S_CHW}, 1")
                e(f"s_and_b32 s{S_CHW}, s{S_CHW}, 15")
                if (c + 1) >> 4:
                    e(f"s_or_b32 s{S_CHW}, s{S_CHW}, 16")
            out += [p0, p1]
        return out

    def o_pieces(s):
        out = []
        fo = FO + 16 * (s & 3)
        for hh in range(2):
            c = 2 * s + hh

            def p0(hh=hh):
                e(f"s_lshl_b32 s{S_T0k}, s{S_CHO}, 14")
                e(f"s_add_u32 s{S_T0k}, s{S_T0k}, s{S_OOFF}")
                e.vmem(f"buffer_load_dwordx4 {vr(fo+8*hh,4)}, v{V_L16}, s[{SRD_A}:{SRD_A+3}], s{S_T0k} offen{NT_OLD}")

            def p1(hh=hh, c=c):
                otok[s] = e.vmem(f"buffer_load_dwordx4 {vr(fo+8*hh+4,4)}, v{V_L16}, s[{SRD_A}:{SRD_A+3}], s{S_T0k} offen offset:1024{NT_OLD}")
                e(f"s_add_u32 s{S_CHO}, s{S_CHO}, 1")
                e(f"s_and_b32 s{S_CHO}, s{S_CHO}, 15")
                if (c + 1) >> 4:
                    e(f"s_or_b32 s{S_CHO}, s{S_CHO}, 16")
            out += [p0, p1]
        return out

    def issue_w(s):
        for p_ in w_pieces(s):
            p_()

    def issue_o(s):
        for p_ in o_pieces(s):
            p_()

    def read_i(s, i):
        hh, ee, ntp = i >> 2, (i >> 1) & 1, i & 1
        fb = FA + 32 * (s & 1)
        off = (s % NSS) * 32768 + hh * 16384 + ee * 1024
        for z in range(2):
            e.lds(f"ds_read_b64_tr_b16 {vr(fb+16*hh+8*ee+4*ntp+2*z,2)}, v{V_WR+4*(off>>16)+2*ntp+z} offset:{off&0xffff}")

    def mfma_i(s, i):
        hh, ee, ntp = i >> 2, (i >> 1) & 1, i & 1
        fb = FA + 32 * (s & 1)
        fo = FO + 16 * (s & 3)
        c = "0" if (s == 0 and hh == 0 and ee == 0) else vr(ACC + 16 * ntp, 16)
        e(f"v_mfma_f32_32x32x16_bf16 {vr(ACC+16*ntp,16)}, {vr(fb+16*hh+8*ee+4*ntp,4)}, {vr(fo+8*hh+4*ee,4)}, {c}")

    def mfmas(s):
        for i in range(8):
            mfma_i(s, i)

    for s in range(PRE_SS):
        issue_w(s)
    e(f"s_cmp_lg_u32 s{S_W}, 0")
    e("s_cbranch_scc1 L_op_nopoll")
    e(f"s_mov_b32 s{S_CNT}, 0x40000")
    e(f"v_mov_b32 v{T1}, 0")
    e.label("L_op_poll")
    e(f"buffer_load_dword v{T2}, v{T1}, s[64:67], s68 offen sc1")
    e("s_waitcnt vmcnt(0)")
    e(f"v_readfirstlane_b32 s{S_T1k}, v{T2}")
    e(f"s_sub_u32 s{S_CNT}, s{S_CNT}, 1")
    e(f"s_cmp_eq_u32 s{S_CNT}, 0")
    e("s_cbranch_scc1 L_op_nopoll")
    e(f"s_cmp_eq_u32 s{S_T1k}, 1")
    e("s_cbranch_scc1 L_op_nopoll")
    e(f"s_sleep {OPT.get('sleep','4')}")
    e("s_branch L_op_poll")
    e.label("L_op_nopoll")
    if OPT.get("inv"):
        e("buffer_inv sc1")
        e("s_waitcnt vmcnt(0)")
    e("s_barrier")
    stamp(e, 62, 30)
    issue_o(0)
    issue_o(1)
    for s in range(PRE_SS, NSS - 1):
        issue_w(s)
    def loop(early):
        for s in range(16):
            e.comment(f"oproj step {s}")
            t = wtok[s]
            if s > 0:
                t = max(t, otok[s - 1])
            e.wait_vm(t)
            e("s_barrier")

            pcs = (o_pieces(s + 2) if s + 2 < 16 else []) + (w_pieces(s + NSS - 1) if s + NSS - 1 < 16 else [])
            pcs += [lambda: None] * (8 - len(pcs))
            for i in range(8):
                if s > 0:
                    mfma_i(s - 1, i)
                if early:
                    pcs[i]()
                    read_i(s, i)
                else:
                    read_i(s, i)
                    pcs[i]()
            e("s_waitcnt lgkmcnt(0)")
            if STAMP == 3:
                stamp(e, 1 + s, 30)
        e.wait_vm(otok[15])
        mfmas(15)

    if STAG:
        save = (e.vm_issued, dict(wtok), dict(otok))
        e(f"s_cmp_ge_u32 s{S_W}, 4")
        e("s_cbranch_scc1 L_op_late")
        loop(True)
        e("s_branch L_op_done")
        e.label("L_op_late")
        e.vm_issued = save[0]
        wtok.clear(); wtok.update(save[1]); otok.clear(); otok.update(save[2])
        loop(False)
        e.label("L_op_done")
    else:
        loop(False)
    e("s_nop 15")
    e("s_nop 3")
    e("s_barrier")
    for k in range(8):
        e(f"ds_write_b128 v{V_RW}, {vr(ACC+4*k,4)} offset:{k*1024}")
    e(f"s_lshl_b32 s{S_T0k}, s{S_MT}, 18")
    e(f"s_lshl_b32 s{S_T1k}, s{S_MP}, 17")
    e(f"s_add_u32 s{S_T0k}, s{S_T0k}, s{S_T1k}")
    e(f"s_lshl_b32 s{S_T1k}, s{S_BR}, 11")
    e(f"s_add_u32 s{S_T0k}, s{S_T0k}, s{S_T1k}")
    e(f"s_lshl_b32 s{S_T1k}, s{S_NT}, 7")
    e(f"s_add_u32 s{S_T0k}, s{S_T0k}, s{S_T1k}")
    e(f"s_lshr_b32 s{S_T1k}, s{S_KQ}, 1")
    e(f"s_lshl_b32 s{S_T1k}, s{S_T1k}, 6")
    e(f"s_add_u32 s{S_T0k}, s{S_T0k}, s{S_T1k}")
    e(f"s_and_b32 s{S_T1k}, s{S_KQ}, 1")
    e(f"s_lshl_b32 s{S_T1k}, s{S_T1k}, 4")
    e(f"s_add_u32 s{S_T0k}, s{S_T0k}, s{S_T1k}")
    e("s_waitcnt lgkmcnt(0)")
    e("s_barrier")
    for k in range(4):
        for q in range(2):
            e(f"ds_read_b128 {vr(FA+8*k+4*q,4)}, v{V_RR} offset:{k*16384+q*1024}")
    e("s_waitcnt lgkmcnt(0)")
    for r in range(8):
        e(f"v_add_f32 v{FA+r}, v{FA+r}, v{FA+8+r}")
        e(f"v_add_f32 v{FA+16+r}, v{FA+16+r}, v{FA+24+r}")
    for r in range(8):
        e(f"v_add_f32 v{FA+r}, v{FA+r}, v{FA+16+r}")
    for k in range(4):
        e(f"v_cvt_pk_bf16_f32 v{FA+32+k}, v{FA+2*k}, v{FA+2*k+1}")
    e(f"buffer_store_dwordx4 {vr(FA+32,4)}, v{V_OA}, s[{SRD_OUT}:{SRD_OUT+3}], s{S_T0k} offen")
    if STAMP:
        e("s_waitcnt vmcnt(0)")
    stamp(e, 63, 30)


e = Em()
emit_k1(e)
txt = HEADER + e.text() + '.section .rodata,"a"\n.p2align 6\n' + kernel_desc("concat_heads__gqa_block_cached__mha_block_cached__near_ridge_kernel")
open(OUT, "w").write(txt)
print("wrote", OUT, len(txt), "bytes")
```

```python
import sys, math, struct
sys.path.insert(0, "tools")
from asmlib import Em, vr, sr, kernel_desc

OUT = sys.argv[1] if len(sys.argv) > 1 else "concat_heads__gqa_block_cached__mha_block_cached__near_ridge.s"
OPT = dict(a.split("=") for a in sys.argv[2:])


def pol(name, dflt):
    v = OPT.get(name, dflt).strip()
    return "" if v in ("", "0") else " " + v.replace("+", " ")


NT_KVB = pol("nt_kvb", "nt")
NT_KVA = pol("nt_kva", "0")
NT_W = pol("nt_w", "0")
NT_X = pol("nt_x", "0")
NT_WO = pol("nt_wo", "0")
NT_OST = pol("nt_ost", "sc1")
NT_OLD = pol("nt_old", "sc1")
STAMP = int(OPT.get("stamp", "0"))
ONLY = OPT.get("only", "")
GRPBIT = int(OPT.get("grpbit", "4"))
FT = int(OPT.get("ft", "0"))
FT2 = int(OPT.get("ft2", "0"))
FT2O = int(OPT.get("ft2o", "0"))
KPRE_STEP = int(OPT.get("kpre_step", "2"))
SRD_ST = 88


def srd(e, dst, lo, hi, size, add=0):
    if add:
        e(f"s_add_u32 s{dst}, s{lo}, {add:#x}")
        e(f"s_addc_u32 s{dst+1}, s{hi}, 0")
        e(f"s_and_b32 s{dst+1}, s{dst+1}, 0xffff")
    else:
        e(f"s_mov_b32 s{dst}, s{lo}")
        e(f"s_and_b32 s{dst+1}, s{hi}, 0xffff")
    e(f"s_mov_b32 s{dst+2}, {size:#x}")
    e(f"s_mov_b32 s{dst+3}, 0x20000")


def stamp_init(e, wsreg, wavereg, base):
    if not STAMP: return
    if STAMP == 9:
        srd(e, SRD_ST, 38, 39, 256)
        e(f"s_cmp_eq_u32 s2, 101")
        e(f"s_cselect_b32 s92, 32, 0")
        e(f"s_cselect_b32 s93, 0, s2")
        e(f"s_add_u32 s93, s93, s{wavereg}")
        e(f"s_cmp_eq_u32 s93, 0")
        e(f"s_cselect_b32 s{SRD_ST+2}, 256, 0")
        return
    srd(e, SRD_ST, wsreg, wsreg + 1, 1 << 20, add=base)
    e(f"s_lshl_b32 s92, s2, 3")
    e(f"s_add_u32 s92, s92, s{wavereg}")
    e(f"s_lshl_b32 s92, s92, 8")


def stamp(e, idx, vt=250):
    if not STAMP: return
    if STAMP == 9:
        idx = {0: 1, 33: 2, 60: 3, 61: 4, 62: 5, 63: 6}[idx]
    e("s_memrealtime s[94:95]")
    e("s_waitcnt lgkmcnt(0)")
    e(f"v_mov_b32 v{vt}, s94")
    e(f"v_mov_b32 v{vt+1}, 0")
    e.vmem(f"buffer_store_dword v{vt}, v{vt+1}, s[{SRD_ST}:{SRD_ST+3}], s92 offen offset:{idx*4}")


def f32bits(x):
    return struct.unpack("<I", struct.pack("<f", x))[0]


CSCALE = (128 ** -0.5) * math.log2(math.e)

HEADER = """; Kernarg layout (104 bytes, ptrs only, base s[0:1]):
; @launch grid=(256,1,1) block=(512,1,1) lds=163840
.amdgcn_target "amdgcn-amd-amdhsa--gfx950"
.text
"""

S_W, S_J, S_I, S_XCD, S_CI = 3, 4, 5, 7, 8
S_HA, S_BPA, S_HB, S_BPB = 9, 10, 11, 12
SRD_X, SRD_WQ, SRD_K, SRD_V, SRD_O = 44, 48, 52, 56, 60
S_WQOFF, S_XOFF, S_KVOFF, S_RING, S_C, S_T0, S_T1, S_T2 = 72, 73, 74, 75, 76, 77, 78, 79
S_WQK, S_XK, S_KROT, S_WQM, S_XM = 80, 81, 82, 83, 84
V_L16 = 5
V_KVD = 6
V_KR = 10
V_VR = 18
V_T = 26
V_Q = 32
V_F = 64
V_G = 96
V_S = 128
V_WQR = 96
V_XR = 100
V_QXW = 108
V_WQD = 112
V_XD = 116
V_TWQ, V_TX, V_TD = 120, 121, 122
V_TKV = 31
QF = 128
QACC = 224

NR = 4
KPRE1 = int(OPT.get("kpre1", "6"))
FTKV = int(OPT.get("ftkv", "0"))
PACE = int(OPT.get("pace", "1"))
AROT = int(OPT.get("arot", "1"))
FTA = int(OPT.get("fta", "0"))
STAG = int(OPT.get("stag", "1"))
TLBW = int(OPT.get("tlbw", "1"))
FLAG_OFF = 8 << 20


def wq_piece(slot):
    return 98304 + 16384 * slot


def x_piece(slot):
    return 16384 + 24576 * slot


XCH = 98304


def emit_k1_prologue(e):
    e.raw(".globl concat_heads__gqa_block_cached__mha_block_cached__near_ridge_kernel")
    e.raw(".p2align 8")
    e.raw(".type concat_heads__gqa_block_cached__mha_block_cached__near_ridge_kernel,@function")
    e.label("concat_heads__gqa_block_cached__mha_block_cached__near_ridge_kernel")
    e("s_cmp_ge_u32 s2, 256")
    e("s_cbranch_scc1 L_k1_end")
    e("s_load_dwordx16 s[16:31], s[0:1], 0")
    e("s_load_dwordx8 s[32:39], s[0:1], 64")
    e("s_load_dwordx2 s[40:41], s[0:1], 96")
    e("v_lshrrev_b32 v1, 6, v0")
    e("v_and_b32 v0, 63, v0")
    e("s_nop 0")
    e(f"v_readfirstlane_b32 s{S_W}, v1")
    e(f"s_and_b32 s{S_XCD}, s2, 7")
    e(f"s_lshr_b32 s{S_CI}, s2, 3")
    e(f"s_and_b32 s{S_J}, s{S_W}, 3")
    e(f"s_lshr_b32 s{S_I}, s{S_W}, 2")
    e(f"s_mov_b32 s{S_C}, {f32bits(CSCALE):#x}")
    e(f"s_lshl_b32 s{S_WQM}, s{S_J}, 12")
    e(f"s_lshl_b32 s{S_XM}, s{S_J}, 11")
    e(f"s_lshr_b32 s{S_HA}, s{S_XCD}, 1")
    e(f"s_lshl_b32 s{S_HA}, s{S_HA}, 3")
    e(f"s_and_b32 s{S_T0}, s{S_CI}, 7")
    e(f"s_add_u32 s{S_HA}, s{S_HA}, s{S_T0}")
    e(f"s_and_b32 s{S_BPA}, s{S_XCD}, 1")
    e(f"s_lshl_b32 s{S_BPA}, s{S_BPA}, 2")
    e(f"s_lshr_b32 s{S_T0}, s{S_CI}, 3")
    e(f"s_add_u32 s{S_BPA}, s{S_BPA}, s{S_T0}")
    e(f"s_lshl_b32 s{S_HB}, s{S_XCD}, 2")
    e(f"s_and_b32 s{S_T0}, s{S_CI}, 3")
    e(f"s_add_u32 s{S_HB}, s{S_HB}, s{S_T0}")
    e(f"s_lshr_b32 s{S_BPB}, s{S_CI}, 2")
    T0, T1, T2, T3, T4, T5 = 64, 65, 66, 67, 68, 69
    e(f"v_lshlrev_b32 v{V_L16}, 4, v0")
    e(f"v_lshrrev_b32 v{T0}, 4, v0")
    e(f"v_and_b32 v{T1}, 15, v0")
    e(f"v_lshlrev_b32 v{T2}, 2, v{T0}")
    e(f"v_xor_b32 v{T1}, v{T1}, v{T2}")
    e(f"v_lshlrev_b32 v{T1}, 4, v{T1}")
    e(f"v_lshlrev_b32 v{T2}, 8, v{T0}")
    e(f"v_add_u32 v{V_KVD}, v{T1}, v{T2}")
    for n in range(1, 4):
        e(f"v_xor_b32 v{V_KVD+n}, {16*n}, v{V_KVD}")
    e(f"v_lshlrev_b32 v{T2}, 13, v{T0}")
    e(f"v_add_u32 v{V_WQD}, v{T1}, v{T2}")
    for q in range(1, 4):
        e(f"v_xor_b32 v{V_WQD+q}, {16*q}, v{V_WQD}")
        e(f"v_add_u32 v{V_WQD+q}, {q*(32768-1024)}, v{V_WQD+q}")
    e(f"v_lshrrev_b32 v{T2}, 3, v0")
    e(f"v_lshlrev_b32 v{T2}, 11, v{T2}")
    e(f"v_and_b32 v{T3}, 7, v0")
    e(f"v_xor_b32 v{T3}, v{T3}, v{T0}")
    e(f"v_lshlrev_b32 v{T3}, 4, v{T3}")
    e(f"v_add_u32 v{V_XD}, v{T2}, v{T3}")
    e(f"v_xor_b32 v{V_XD+1}, 64, v{V_XD}")
    e(f"v_add_u32 v{V_XD+1}, {8*2048-1024}, v{V_XD+1}")
    e(f"v_and_b32 v{T2}, 31, v0")
    e(f"v_lshrrev_b32 v{T3}, 5, v0")
    e(f"v_lshrrev_b32 v{T4}, 1, v{T2}")
    e(f"v_and_b32 v{T4}, 7, v{T4}")
    e(f"v_xor_b32 v{T4}, v{T4}, v{T3}")
    e(f"v_lshlrev_b32 v{T4}, 4, v{T4}")
    e(f"v_lshlrev_b32 v{T5}, 7, v{T2}")
    e(f"v_add_u32 v{T4}, v{T4}, v{T5}")
    e(f"v_mov_b32 v{V_XR}, v{T4}")
    for s in range(1, 4):
        e(f"v_xor_b32 v{V_XR+s}, {32*s}, v{V_XR}")
    for s in range(4):
        e(f"v_add_u32 v{V_XR+4+s}, 65536, v{V_XR+s}")
    e(f"v_and_b32 v{T4}, 3, v{T2}")
    e(f"v_lshlrev_b32 v{T4}, 2, v{T4}")
    e(f"v_lshrrev_b32 v{T5}, 2, v{T2}")
    e(f"v_and_b32 v{T5}, 3, v{T5}")
    e(f"v_or_b32 v{T4}, v{T4}, v{T5}")
    e(f"v_xor_b32 v{T4}, v{T4}, v{T3}")
    e(f"v_lshlrev_b32 v{T4}, 4, v{T4}")
    e(f"v_lshlrev_b32 v{T5}, 8, v{T2}")
    e(f"v_add_u32 v{V_KR}, v{T4}, v{T5}")
    for s in range(1, 8):
        e(f"v_xor_b32 v{V_KR+s}, {32*s}, v{V_KR}")
    e(f"v_and_b32 v{T1}, 1, v{T0}")
    e(f"v_lshrrev_b32 v{T2}, 2, v0")
    e(f"v_and_b32 v{T2}, 3, v{T2}")
    e(f"v_and_b32 v{T4}, 1, v0")
    e(f"v_lshrrev_b32 v{T5}, 1, v0")
    e(f"v_and_b32 v{T5}, 1, v{T5}")
    e(f"v_lshlrev_b32 v{T5}, 3, v{T5}")
    e(f"v_lshlrev_b32 v{V_VR+2}, 6, v{T2}")
    e(f"v_add_u32 v{T5}, v{T5}, v{V_VR+2}")
    e(f"v_lshlrev_b32 v1, 1, v{T4}")
    e(f"v_or_b32 v1, v1, v{T1}")
    e(f"v_xor_b32 v1, v1, v{T3}")
    e(f"v_lshlrev_b32 v1, 4, v1")
    e(f"v_add_u32 v1, v1, v{T5}")
    e(f"v_lshlrev_b32 v{V_VR+1}, 2, v{T3}")
    e(f"v_add_u32 v{V_VR+1}, v{V_VR+1}, v{T2}")
    e(f"v_lshlrev_b32 v{V_VR+1}, 8, v{V_VR+1}")
    e(f"v_add_u32 v{V_VR}, v1, v{V_VR+1}")
    for dt in range(4):
        for z in range(2):
            if dt == 0 and z == 0:
                continue
            e(f"v_xor_b32 v{V_VR+2*dt+z}, {64*dt + 32*z + 2048*z}, v{V_VR}")
    e(f"v_lshlrev_b32 v1, 1, v{T1}")
    e(f"v_or_b32 v1, v1, v{T4}")
    e(f"v_lshlrev_b32 v{V_WQR+1}, 1, v{T3}")
    e(f"v_xor_b32 v1, v1, v{V_WQR+1}")
    e(f"v_lshlrev_b32 v1, 4, v1")
    e(f"v_add_u32 v1, v1, v{T5}")
    e(f"v_lshlrev_b32 v{V_WQR+1}, 3, v{T3}")
    e(f"v_add_u32 v{V_WQR+1}, v{V_WQR+1}, v{T2}")
    e(f"v_lshlrev_b32 v{V_WQR+1}, 8, v{V_WQR+1}")
    e(f"v_add_u32 v1, v1, v{V_WQR+1}")
    e(f"s_lshl_b32 s{S_T0}, s{S_J}, 6")
    e(f"v_xor_b32 v1, s{S_T0}, v1")
    e(f"v_add_u32 v{V_WQR}, 65536, v1")
    e(f"v_xor_b32 v{V_WQR+1}, {16+1024}, v{V_WQR}")
    e(f"v_add_u32 v{V_WQR+2}, 65536, v{V_WQR}")
    e(f"v_add_u32 v{V_WQR+3}, 65536, v{V_WQR+1}")
    e(f"s_lshl_b32 s{S_T0}, s{S_I}, 14")
    e(f"s_add_u32 s{S_T0}, s{S_T0}, s{S_XM}")
    e(f"s_add_u32 s{S_T0}, s{S_T0}, {XCH}")
    e(f"v_add_u32 v{V_QXW}, s{S_T0}, v{V_L16}")
    e(f"v_and_b32 v1, 15, v0")
    e(f"v_lshrrev_b32 v{V_TWQ}, 1, v1")
    e(f"v_lshlrev_b32 v{V_TWQ}, 13, v{V_TWQ}")
    e(f"v_and_b32 v1, 1, v1")
    e(f"v_lshlrev_b32 v1, 7, v1")
    e(f"v_add_u32 v{V_TWQ}, v{V_TWQ}, v1")
    e(f"v_and_b32 v{V_TX}, 7, v0")
    e(f"v_lshlrev_b32 v{V_TX}, 11, v{V_TX}")
    e(f"v_lshlrev_b32 v{V_TKV}, 7, v0")
    e("s_waitcnt lgkmcnt(0)")
    stamp_init(e, 40, S_W, 16 << 20)
    srd(e, 64, 40, 41, 65536, add=FLAG_OFF)
    e(f"s_cmp_lg_u32 s{S_W}, 0")
    e("s_cbranch_scc1 L_k1_noflag")
    e("s_lshl_b32 s68, s2, 8")
    e("v_mov_b32 v1, 0")
    e("s_mov_b64 exec, 1")
    e("buffer_store_dword v1, v1, s[64:67], s68 offen sc1")
    e("s_mov_b64 exec, -1")
    e.label("L_k1_noflag")
    e(f"s_cmp_ge_u32 s{S_W}, 4")
    e("s_cbranch_scc1 L_k1_B")


def emit_k1_role(e, g):
    e.vm_issued = 0
    e.lg_issued = 0
    nslot = 3 if g == 1 else 2
    wstride = 24576 if g == 1 else 16384
    rbase = 0 if g == 1 else 98304
    SH, SBP = (S_HA, S_BPA) if g == 0 else (S_HB, S_BPB)
    kv_tok, wq_tok, x_tok = {}, {}, {}

    def ring_setup(br, adv=0):
        sh, sbp = (S_HA, S_BPA) if br == 0 else (S_HB, S_BPB)
        px, pw = (16, 22) if br == 0 else (26, 32)
        srd(e, SRD_X, px, px + 1, 1 << 20)
        srd(e, SRD_WQ, pw, pw + 1, 8 << 20)
        e(f"s_lshl_b32 s{S_XOFF}, s{sbp}, 17")
        e(f"s_lshl_b32 s{S_T0}, s{S_J}, 15")
        e(f"s_add_u32 s{S_XOFF}, s{S_XOFF}, s{S_T0}")
        e(f"s_lshl_b32 s{S_WQOFF}, s{sh}, 8")
        e(f"s_lshl_b32 s{S_T0}, s{S_J}, 17")
        e(f"s_add_u32 s{S_WQOFF}, s{S_WQOFF}, s{S_T0}")
        if br == 1:
            e(f"s_lshl_b32 s{S_T0}, s{sbp}, 1")
            e(f"s_and_b32 s{S_T1}, s{S_CI}, 3")
            e(f"s_lshl_b32 s{S_T1}, s{S_T1}, 2")
        else:
            e(f"s_lshr_b32 s{S_T0}, s{S_CI}, 3")
            e(f"s_lshl_b32 s{S_T0}, s{S_T0}, 2")
            e(f"s_and_b32 s{S_T1}, s{S_CI}, 7")
            e(f"s_lshl_b32 s{S_T1}, s{S_T1}, 1")
        e(f"s_add_u32 s{S_T0}, s{S_T0}, s{S_T1}")
        if adv:
            e(f"s_add_u32 s{S_T0}, s{S_T0}, {adv}")
        e(f"s_and_b32 s{S_T0}, s{S_T0}, 15")
        e(f"s_lshl_b32 s{S_WQK}, s{S_T0}, 19")
        e(f"s_lshl_b32 s{S_XK}, s{S_T0}, 7")

    def issue_chunk(c):
        if c == 16:
            ring_setup(0)
        e(f"s_add_u32 m0, s{S_XM}, {x_piece(c % NR)}")
        e(f"s_add_u32 s{S_T0}, s{S_XOFF}, s{S_XK}")
        e.vmem(f"buffer_load_dwordx4 v{V_XD}, s[{SRD_X}:{SRD_X+3}], s{S_T0} offen{NT_X} lds")
        e.vmem(f"buffer_load_dwordx4 v{V_XD+1}, s[{SRD_X}:{SRD_X+3}], s{S_T0} offen offset:1024{NT_X} lds")
        e(f"s_add_u32 m0, s{S_WQM}, {wq_piece(c % NR)}")
        e(f"s_add_u32 s{S_T0}, s{S_WQOFF}, s{S_WQK}")
        for q in range(4):
            wq_tok[c] = e.vmem(f"buffer_load_dwordx4 v{V_WQD+q}, s[{SRD_WQ}:{SRD_WQ+3}], s{S_T0} offen offset:{q*1024}{NT_W} lds")
        e(f"s_add_u32 s{S_XK}, s{S_XK}, 128")
        e(f"s_and_b32 s{S_XK}, s{S_XK}, 2047")
        e(f"s_add_u32 s{S_WQK}, s{S_WQK}, 0x80000")
        e(f"s_and_b32 s{S_WQK}, s{S_WQK}, 0x7fffff")

    def kv_setup():
        pk, pv = (18, 20) if g == 0 else (28, 30)
        kvsize = (8 << 20) if g == 0 else (64 << 20)
        srd(e, SRD_K, pk, pk + 1, kvsize)
        srd(e, SRD_V, pv, pv + 1, kvsize)
        srd(e, SRD_O, 40, 41, 4 << 20, add=g * (4 << 20))
        e(f"s_lshl_b32 s{S_T0}, s{SBP}, 1")
        e(f"s_lshr_b32 s{S_T1}, s{S_J}, 1")
        e(f"s_add_u32 s{S_T0}, s{S_T0}, s{S_T1}")
        if g == 0:
            e(f"s_lshl_b32 s{S_T1}, s{S_T0}, 2")
            e(f"s_lshr_b32 s{S_T2}, s{SH}, 3")
        else:
            e(f"s_lshl_b32 s{S_T1}, s{S_T0}, 5")
            e(f"s_mov_b32 s{S_T2}, s{SH}")
        e(f"s_add_u32 s{S_T1}, s{S_T1}, s{S_T2}")
        e(f"s_lshl_b32 s{S_KVOFF}, s{S_T1}, 17")
        e(f"s_and_b32 s{S_T1}, s{S_J}, 1")
        e(f"s_lshl_b32 s{S_T1}, s{S_T1}, 16")
        e(f"s_add_u32 s{S_KVOFF}, s{S_KVOFF}, s{S_T1}")
        if g == 1:
            e(f"s_add_u32 s{S_KROT}, s{SH}, s{S_T0}")
        elif AROT:
            e(f"s_mov_b32 s{S_KROT}, s{SH}")
        else:
            e(f"s_mov_b32 s{S_KROT}, s{S_T0}")
        e(f"s_and_b32 s{S_KROT}, s{S_KROT}, 7")
        e(f"s_lshl_b32 s{S_KROT}, s{S_KROT}, 13")
        e(f"s_mul_i32 s{S_RING}, s{S_J}, {wstride}")
        if rbase:
            e(f"s_add_u32 s{S_RING}, s{S_RING}, {rbase}")
        for i in range(8):
            e(f"v_add_u32 v{V_KR+i}, s{S_RING}, v{V_KR+i}")
            e(f"v_add_u32 v{V_VR+i}, s{S_RING}, v{V_VR+i}")

    def issue_kv(n):
        nt_kv = NT_KVB if g == 1 else NT_KVA
        srd_ = SRD_K if n < 8 else SRD_V
        t = n & 7
        slot = n % nslot
        fta = FTA and g == 0 and t == 0
        if fta:
            nt_kv = " nt"
        e(f"s_add_u32 s{S_T0}, s{S_KROT}, {t*8192}")
        e(f"s_and_b32 s{S_T0}, s{S_T0}, 0xffff")
        e(f"s_add_u32 s{S_T0}, s{S_T0}, s{S_KVOFF}")
        for half in range(2):
            e(f"s_add_u32 m0, s{S_RING}, {slot*8192 + half*4096}")
            if half:
                e(f"s_add_u32 s{S_T0}, s{S_T0}, 4096")
            else:
                e("s_nop 0")
            for q in range(4):
                tok = e.vmem(f"buffer_load_dwordx4 v{V_KVD+q}, s[{srd_}:{srd_+3}], s{S_T0} offen offset:{q*1024}{nt_kv} lds")
        kv_tok[n] = tok
        if fta:
            e(f"s_sub_u32 s{S_T0}, s{S_T0}, 4096")
            e.vmem(f"buffer_load_dword v1, v{V_TKV}, s[{srd_}:{srd_+3}], s{S_T0} offen")

    def touch_kva():
        e(f"s_add_u32 s{S_T0}, s{S_KROT}, s{S_KVOFF}")
        for srd_ in (SRD_K, SRD_V):
            if FTKV == 1:
                e.vmem(f"buffer_load_dword v{V_TD}, v{V_TKV}, s[{srd_}:{srd_+3}], s{S_T0} offen nt")
            e.vmem(f"buffer_load_dword v{V_TD}, v{V_TKV}, s[{srd_}:{srd_+3}], s{S_T0} offen")

    def reads_ks(c, ks):
        fb = QF + 48 * (c & 1) + 12 * ks
        slot = c % NR
        off = wq_piece(slot) + ks * 4096
        for z in range(2):
            e.lds(f"ds_read_b64_tr_b16 {vr(fb+2*z,2)}, v{V_WQR+2*((off>>16)-1)+z} offset:{off & 0xffff}")
        for it in range(2):
            off = x_piece(slot) + it * 4096
            e.lds(f"ds_read_b128 {vr(fb+4+4*it,4)}, v{V_XR+4*(off>>16)+ks} offset:{off & 0xffff}")

    def mfma_ks(c, ks, its=(0, 1)):
        fb = QF + 48 * (c & 1) + 12 * ks
        for it in its:
            acc = QACC + 16 * it
            cc = "0" if ((c & 15) == 0 and ks == 0) else vr(acc, 16)
            e(f"v_mfma_f32_32x32x16_bf16 {vr(acc,16)}, {vr(fb,4)}, {vr(fb+4+4*it,4)}, {cc}")

    def mine(c):
        return 0 <= c < 32 and ((c < 16) == (g == 1))

    def loads(c):
        return c < 32 and ((c <= 18) == (g == 0))

    stamp(e, 0, 124)
    if g == 0:
        ring_setup(1)
        for c in range(NR - 1):
            issue_chunk(c)
    else:
        ring_setup(0, adv=3)
    kv_setup()
    if TLBW and g == 1:
        e("v_mov_b32 v1, 0")
        e.vmem(f"buffer_load_dword v2, v1, s[{SRD_V}:{SRD_V+3}], s{S_KVOFF} offen")
        e.vmem(f"buffer_load_dword v2, v1, s[{SRD_K}:{SRD_K+3}], s{S_KVOFF} offen")
        e.vmem(f"buffer_load_dword v2, v1, s[{SRD_X}:{SRD_X+3}], s{S_XOFF} offen")
        e(f"s_lshl_b32 s{S_T0}, s{S_J}, 21")
        e.vmem(f"buffer_load_dword v2, v1, s[{SRD_WQ}:{SRD_WQ+3}], s{S_T0} offen")
        for (lo, size) in ((18, 8 << 20), (20, 8 << 20), (24, 8 << 20), (34, 8 << 20), (40, 8 << 20)):
            srd(e, 96, lo, lo + 1, size)
            e.vmem(f"buffer_load_dword v2, v1, s[96:99], s{S_T0} offen")
        srd(e, 96, 36, 37, 2 << 20)
        e(f"s_lshl_b32 s{S_T0}, s{S_J}, 19")
        e.vmem(f"buffer_load_dword v2, v1, s[96:99], s{S_T0} offen")
    for s in range(32):
        e.comment(f"qproj step {s}")
        if loads(s):
            e.wait_vm(wq_tok[s])
        e("s_barrier")
        for i in range(8):
            if mine(s - 1):
                mfma_ks(s - 1, i >> 1, (i & 1,))
            if mine(s) and i < 4:
                reads_ks(s, i)
        if loads(s + NR - 1):
            issue_chunk(s + NR - 1)
        if s == 8 and OPT.get("qonly"):
            stamp(e, 60, 124)
        if s == 15 and OPT.get("qonly"):
            stamp(e, 61, 124)
        if s == 22 and OPT.get("qonly"):
            stamp(e, 62, 124)
        if s == 31 and OPT.get("qonly"):
            stamp(e, 63, 124)
            stamp(e, 33, 124)
            e("s_endpgm")
        if g == 1 and s == KPRE_STEP and not OPT.get("qonly"):
            issue_kv(0)
        if g == 1 and s == KPRE1 and not OPT.get("qonly"):
            issue_kv(1)
        if mine(s):
            e("s_waitcnt lgkmcnt(0)")
        if STAMP == 2:
            stamp(e, 1 + s, 124)
    if mine(31):
        for ks in range(4):
            mfma_ks(31, ks)
    e("s_nop 15")
    e("s_nop 3")
    for k in range(16):
        e(f"v_cvt_pk_bf16_f32 v{V_F+k}, v{QACC+2*k}, v{QACC+2*k+1}")
    for it in range(2):
        for ss in range(2):
            e(f"ds_write_b128 v{V_QXW}, {vr(V_F+8*it+4*ss,4)} offset:{it*8192+ss*1024}")
    e(f"s_lshr_b32 s{S_T1}, s{S_J}, 1")
    e(f"s_lshl_b32 s{S_T1}, s{S_T1}, 13")
    e(f"s_add_u32 s{S_T1}, s{S_T1}, {XCH + g*16384}")
    e(f"v_add_u32 v{V_T}, s{S_T1}, v{V_L16}")
    e("s_waitcnt lgkmcnt(0)")
    e("s_barrier")
    for s in range(8):
        e(f"ds_read_b128 {vr(V_Q+4*s,4)}, v{V_T} offset:{s*1024}")
    e("s_waitcnt lgkmcnt(0)")
    e("s_barrier")
    for n in range(2 if (g == 1 and not OPT.get("qonly")) else 0, nslot):
        issue_kv(n)
    stamp(e, 33, V_T + 2)

    VMX = V_T
    VM, VMC, VL, VE, VP = V_Q, V_Q + 1, V_Q + 2, V_Q + 8, V_Q + 16

    def max_tile(t):
        b = V_S + 16 * t
        for ch in range(2):
            bb = b + 8 * ch
            if t == 0:
                e(f"v_max3_f32 v{VMX+ch}, v{bb}, v{bb+1}, v{bb+2}")
                e(f"v_max3_f32 v{VMX+ch}, v{VMX+ch}, v{bb+3}, v{bb+4}")
                e(f"v_max3_f32 v{VMX+ch}, v{VMX+ch}, v{bb+5}, v{bb+6}")
                e(f"v_max_f32 v{VMX+ch}, v{VMX+ch}, v{bb+7}")
            else:
                for k in range(4):
                    e(f"v_max3_f32 v{VMX+ch}, v{VMX+ch}, v{bb+2*k}, v{bb+2*k+1}")

    def exp_tile(t):
        p = VP + 8 * (t & 1)
        for hf in range(2):
            b = V_S + 16 * t + 8 * hf
            for i in range(8):
                e(f"v_fma_f32 v{VE+i}, v{b+i}, s{S_C}, -v{VMC}")
            for i in range(8):
                e(f"v_exp_f32 v{VE+i}, v{VE+i}")
            e("s_nop 0")
            for i in range(8):
                e(f"v_add_f32 v{VL+(i&3)}, v{VL+(i&3)}, v{VE+i}")
            for k in range(4):
                e(f"v_cvt_pk_bf16_f32 v{p+4*hf+k}, v{VE+2*k}, v{VE+2*k+1}")

    for t in range(8):
        e.comment(f"K tile {t}")
        if PACE == 2 and t > 0:
            e("s_barrier")
        e.wait_vm(kv_tok[t])
        if PACE == 1 and t > 0:
            e("s_barrier")
        toks = []
        for s in range(8):
            toks.append(e.lds(f"ds_read_b128 {vr(V_F+4*s,4)}, v{V_KR+s} offset:{(t%nslot)*8192}"))
        if t > 0:
            max_tile(t - 1)
        for s in range(8):
            e.wait_lds(toks[s])
            c = "0" if s == 0 else vr(V_S + 16 * t, 16)
            e(f"v_mfma_f32_32x32x16_bf16 {vr(V_S+16*t,16)}, {vr(V_F+4*s,4)}, {vr(V_Q+4*s,4)}, {c}")
        issue_kv(t + nslot)
        if STAMP == 2:
            stamp(e, 34 + t, V_T + 2)
    e("s_nop 7")
    max_tile(7)
    e(f"v_max_f32 v{VMX}, v{VMX}, v{VMX+1}")
    e(f"v_mov_b32 v{VMX+1}, v{VMX}")
    e("s_nop 1")
    e(f"v_permlane32_swap_b32 v{VMX}, v{VMX+1}")
    e("s_nop 1")
    e(f"v_max_f32 v{VM}, v{VMX}, v{VMX+1}")
    e(f"v_mul_f32 v{VMC}, s{S_C}, v{VM}")
    for i in range(4):
        e(f"v_mov_b32 v{VL+i}, 0")
    exp_tile(0)
    exp_tile(1)
    OA = [V_S, V_S + 16, V_G, V_G + 16]
    for t in range(8):
        n = 8 + t
        if PACE == 2:
            e("s_barrier")
        e.wait_vm(kv_tok[n])
        if PACE == 1:
            e("s_barrier")
        toks = []
        for u in range(2):
            for dt in range(4):
                for z in range(2):
                    toks.append(e.lds(f"ds_read_b64_tr_b16 {vr(V_F+16*u+4*dt+2*z,2)}, v{V_VR+2*dt+z} offset:{(n%nslot)*8192+u*4096}"))
        p = VP + 8 * (t & 1)
        for u in range(2):
            for dt in range(4):
                e.wait_lds(toks[8 * u + 2 * dt + 1])
                c = "0" if (t == 0 and u == 0) else vr(OA[dt], 16)
                e(f"v_mfma_f32_32x32x16_bf16 {vr(OA[dt],16)}, {vr(V_F+16*u+4*dt,4)}, {vr(p+4*u,4)}, {c}")
        if n + nslot < 16:
            issue_kv(n + nslot)
        if t + 2 < 8:
            exp_tile(t + 2)
        if STAMP == 2:
            stamp(e, 42 + t, V_T + 2)
    stamp(e, 60, V_T + 2)
    e(f"v_add_f32 v{VL}, v{VL}, v{VL+1}")
    e(f"v_add_f32 v{VL+2}, v{VL+2}, v{VL+3}")
    e(f"v_add_f32 v{VL}, v{VL}, v{VL+2}")
    e(f"v_mov_b32 v{VL+1}, v{VL}")
    e("s_nop 1")
    e(f"v_permlane32_swap_b32 v{VL}, v{VL+1}")
    e("s_nop 1")
    e(f"v_add_f32 v{VM+1}, v{VL}, v{VL+1}")
    e("s_nop 15")
    lab = f"L_k1_g{g}"
    e(f"v_add_u32 v{V_T+1}, s{S_RING}, v{V_L16}")
    e(f"s_xor_b32 s{S_T1}, s{S_J}, 1")
    e(f"s_mul_i32 s{S_T1}, s{S_T1}, {wstride}")
    if rbase:
        e(f"s_add_u32 s{S_T1}, s{S_T1}, {rbase}")
    e(f"v_add_u32 v{V_T+2}, s{S_T1}, v{V_L16}")
    e(f"v_lshlrev_b32 v{V_T+3}, 3, v0")
    e(f"v_add_u32 v1, s{S_T1}, v{V_T+3}")
    e(f"v_add_u32 v{V_T+3}, s{S_RING}, v{V_T+3}")
    e(f"ds_write_b64 v{V_T+3}, {vr(VM,2)} offset:8192")
    e(f"s_and_b32 s{S_T2}, s{S_J}, 1")
    e(f"s_cmp_eq_u32 s{S_T2}, 1")
    e(f"s_cbranch_scc1 {lab}_j1")
    for k in range(8):
        e(f"ds_write_b128 v{V_T+1}, {vr(V_G+4*k,4)} offset:{k*1024}")
    e(f"s_branch {lab}_jd")
    e.label(f"{lab}_j1")
    for k in range(8):
        e(f"ds_write_b128 v{V_T+1}, {vr(V_S+4*k,4)} offset:{k*1024}")
    e("s_waitcnt lgkmcnt(0)")
    for k in range(32):
        e(f"v_mov_b32 v{V_S+k}, v{V_G+k}")
    e.label(f"{lab}_jd")
    e("s_waitcnt lgkmcnt(0)")
    e("s_barrier")
    PO = V_F
    OACC = V_S
    e(f"ds_read_b64 {vr(VM+2,2)}, v1 offset:8192")
    for k in range(8):
        e(f"ds_read_b128 {vr(PO+4*k,4)}, v{V_T+2} offset:{k*1024}")
    e("s_waitcnt lgkmcnt(8)")
    MT, FA_, FB_, LT = VM + 4, VM + 5, VM + 6, VM + 7
    e(f"v_max_f32 v{MT}, v{VM}, v{VM+2}")
    e(f"v_sub_f32 v{FA_}, v{VM}, v{MT}")
    e(f"v_sub_f32 v{FB_}, v{VM+2}, v{MT}")
    e(f"v_mul_f32 v{FA_}, s{S_C}, v{FA_}")
    e(f"v_mul_f32 v{FB_}, s{S_C}, v{FB_}")
    e(f"v_exp_f32 v{FA_}, v{FA_}")
    e(f"v_exp_f32 v{FB_}, v{FB_}")
    e("s_nop 0")
    e(f"v_mul_f32 v{LT}, v{VM+1}, v{FA_}")
    e(f"v_fma_f32 v{LT}, v{VM+3}, v{FB_}, v{LT}")
    e(f"v_rcp_f32 v{LT}, v{LT}")
    e("s_nop 0")
    e(f"v_mul_f32 v{FA_}, v{FA_}, v{LT}")
    e(f"v_mul_f32 v{FB_}, v{FB_}, v{LT}")
    e(f"s_lshl_b32 s{S_T0}, s{SBP}, 5")
    e(f"s_add_u32 s{S_T0}, s{S_T0}, s{SH}")
    e(f"s_lshl_b32 s{S_T0}, s{S_T0}, 14")
    e(f"s_lshl_b32 s{S_T1}, s{S_J}, 12")
    e(f"s_add_u32 s{S_T0}, s{S_T0}, s{S_T1}")
    e("s_waitcnt lgkmcnt(0)")
    for k in range(32):
        e(f"v_mul_f32 v{OACC+k}, v{OACC+k}, v{FA_}")
        e(f"v_fma_f32 v{OACC+k}, v{PO+k}, v{FB_}, v{OACC+k}")
    for k in range(16):
        e(f"v_cvt_pk_bf16_f32 v{PO+k}, v{OACC+2*k}, v{OACC+2*k+1}")
    for fr in range(4):
        e(f"buffer_store_dwordx4 {vr(PO+4*fr,4)}, v{V_L16}, s[{SRD_O}:{SRD_O+3}], s{S_T0} offen offset:{fr*1024}{NT_OST}")
    if g == 0:
        e("s_branch L_oproj")


def emit_k1(e):
    emit_k1_prologue(e)
    emit_k1_role(e, 0)
    e.label("L_k1_B")
    emit_k1_role(e, 1)
    emit_oproj(e)
    e.label("L_k1_end")
    e("s_endpgm")


PRE_SS = int(OPT.get("pre_ss", "4"))


def emit_oproj(e):
    NSS = 5
    e.label("L_oproj")
    e.vm_issued = 0
    e.lg_issued = 0
    S_BR, S_NT, S_MT, S_KQ, S_MP = 9, 10, 11, 12, 13
    SRD_A, SRD_W, SRD_OUT, SRD_D = 44, 48, 52, 56
    S_OOFF, S_WOFF, S_W2K, S_T0k, S_T1k, S_CHW, S_CHO, S_CNT = 72, 73, 74, 77, 78, 80, 81, 82
    V_WD = 6
    V_WR = 8
    T0, T1, T2, T3, T4, T5 = range(20, 26)
    V_RW, V_RR, V_OA, V_DB = 26, 27, 28, 29
    FA = 128
    FO = 192
    ACC = 96
    e(f"s_lshr_b32 s{S_BR}, s{S_XCD}, 2")
    e(f"s_and_b32 s{S_T0k}, s{S_XCD}, 3")
    e(f"s_and_b32 s{S_T1k}, s{S_CI}, 3")
    e(f"s_lshl_b32 s{S_NT}, s{S_T0k}, 2")
    e(f"s_add_u32 s{S_NT}, s{S_NT}, s{S_T1k}")
    e(f"s_lshr_b32 s{S_MT}, s{S_CI}, 2")
    e(f"s_lshl_b32 s{S_CHW}, s{S_MT}, 1")
    e(f"s_lshl_b32 s{S_T1k}, s{S_T1k}, 2")
    e(f"s_add_u32 s{S_CHW}, s{S_CHW}, s{S_T1k}")
    e(f"s_and_b32 s{S_CHW}, s{S_CHW}, 15")
    e(f"s_mov_b32 s{S_CHO}, s{S_CHW}")
    e(f"s_lshl_b32 s{S_W2K}, s{S_W}, 11")
    e(f"s_lshr_b32 s{S_KQ}, s{S_W}, 1")
    e(f"s_and_b32 s{S_MP}, s{S_W}, 1")
    e(f"s_cmp_eq_u32 s{S_BR}, 1")
    e(f"s_cselect_b32 s{SRD_W}, s34, s24")
    e(f"s_cselect_b32 s{SRD_W+1}, s35, s25")
    e(f"s_and_b32 s{SRD_W+1}, s{SRD_W+1}, 0xffff")
    e(f"s_mov_b32 s{SRD_W+2}, {8<<20:#x}")
    e(f"s_mov_b32 s{SRD_W+3}, 0x20000")
    srd(e, SRD_A, 40, 41, 8 << 20)
    srd(e, SRD_OUT, 36, 37, 2 << 20)
    srd(e, SRD_D, 38, 39, 256)
    e(f"s_lshl_b32 s{S_OOFF}, s{S_BR}, 22")
    e(f"s_lshl_b32 s{S_T0k}, s{S_MT}, 19")
    e(f"s_add_u32 s{S_OOFF}, s{S_OOFF}, s{S_T0k}")
    e(f"s_lshl_b32 s{S_T0k}, s{S_MP}, 13")
    e(f"s_add_u32 s{S_OOFF}, s{S_OOFF}, s{S_T0k}")
    e(f"s_lshl_b32 s{S_T0k}, s{S_KQ}, 11")
    e(f"s_add_u32 s{S_OOFF}, s{S_OOFF}, s{S_T0k}")
    e(f"s_lshl_b32 s{S_WOFF}, s{S_W}, 15")
    e(f"s_lshl_b32 s{S_T0k}, s{S_NT}, 7")
    e(f"s_add_u32 s{S_WOFF}, s{S_WOFF}, s{S_T0k}")
    e(f"v_lshrrev_b32 v{T0}, 4, v0")
    e(f"v_lshrrev_b32 v{T2}, 3, v0")
    e(f"v_lshlrev_b32 v{T2}, 11, v{T2}")
    e(f"v_lshrrev_b32 v{T3}, 2, v0")
    e(f"v_and_b32 v{T3}, 4, v{T3}")
    e(f"v_and_b32 v{T4}, 7, v0")
    e(f"v_xor_b32 v{T3}, v{T3}, v{T4}")
    e(f"v_lshlrev_b32 v{T3}, 4, v{T3}")
    e(f"v_add_u32 v{V_WD}, v{T2}, v{T3}")
    e(f"v_add_u32 v{V_WD+1}, {8*2048-1024}, v{V_WD}")
    e(f"v_lshrrev_b32 v{T3}, 5, v0")
    e(f"v_and_b32 v{T1}, 1, v{T0}")
    e(f"v_lshrrev_b32 v{T2}, 2, v0")
    e(f"v_and_b32 v{T2}, 3, v{T2}")
    e(f"v_and_b32 v{T4}, 1, v0")
    e(f"v_lshlrev_b32 v{T4}, 1, v{T4}")
    e(f"v_or_b32 v{T4}, v{T4}, v{T1}")
    e(f"v_lshrrev_b32 v{T5}, 1, v{T2}")
    e(f"v_lshlrev_b32 v{T5}, 2, v{T5}")
    e(f"v_or_b32 v{T4}, v{T4}, v{T5}")
    e(f"v_lshlrev_b32 v{T4}, 4, v{T4}")
    e(f"v_lshrrev_b32 v{T5}, 1, v0")
    e(f"v_and_b32 v{T5}, 1, v{T5}")
    e(f"v_lshlrev_b32 v{T5}, 3, v{T5}")
    e(f"v_add_u32 v{T4}, v{T4}, v{T5}")
    e(f"v_lshlrev_b32 v{T5}, 4, v{T3}")
    e(f"v_add_u32 v{T5}, v{T5}, v{T2}")
    e(f"v_lshlrev_b32 v{T5}, 7, v{T5}")
    e(f"v_add_u32 v{T4}, v{T4}, v{T5}")
    e(f"s_lshl_b32 s{S_T1k}, s{S_KQ}, 12")
    e(f"v_add_u32 v{V_WR}, s{S_T1k}, v{T4}")
    e(f"v_add_u32 v{V_WR+1}, 512, v{V_WR}")
    e(f"v_xor_b32 v{V_WR+2}, 64, v{V_WR}")
    e(f"v_xor_b32 v{V_WR+3}, 64, v{V_WR+1}")
    for p in (1, 2):
        for i in range(4):
            e(f"v_add_u32 v{V_WR+4*p+i}, {65536*p}, v{V_WR+i}")
    e(f"s_lshl_b32 s{S_T0k}, s{S_W}, 13")
    e(f"v_add_u32 v{V_RW}, s{S_T0k}, v{V_L16}")
    e(f"s_lshl_b32 s{S_T0k}, s{S_MP}, 13")
    e(f"s_lshl_b32 s{S_T1k}, s{S_KQ}, 11")
    e(f"s_add_u32 s{S_T0k}, s{S_T0k}, s{S_T1k}")
    e(f"v_add_u32 v{V_RR}, s{S_T0k}, v{V_L16}")
    e(f"v_and_b32 v{V_OA}, 31, v0")
    e(f"v_lshlrev_b32 v{V_OA}, 12, v{V_OA}")
    e(f"v_lshlrev_b32 v{T4}, 5, v{T3}")
    e(f"v_add_u32 v{V_OA}, v{V_OA}, v{T4}")
    e(f"v_lshlrev_b32 v{V_DB}, 2, v0")
    e(f"v_mov_b32 v{T0}, 1")
    e(f"s_lshr_b32 s{S_T1k}, s2, 2")
    e(f"s_lshl_b32 s{S_T1k}, s{S_T1k}, 2")
    e(f"v_mov_b32 v{T1}, s{S_T1k}")
    if STAMP == 3:
        e("s_memrealtime s[96:97]")
    e("s_waitcnt vmcnt(0)")
    if STAMP == 3:
        e("s_memrealtime s[98:99]")
        e("s_waitcnt lgkmcnt(0)")
        e(f"v_mov_b32 v30, s96")
        e(f"v_mov_b32 v31, s98")
        e(f"v_mov_b32 v32, 0")
        e.vmem(f"buffer_store_dwordx2 v[30:31], v32, s[{SRD_ST}:{SRD_ST+3}], s92 offen offset:{58*4}")
    e("s_barrier")
    e(f"s_cmp_lg_u32 s{S_W}, 0")
    e("s_cbranch_scc1 L_op_noadd")
    e(f"v_mov_b32 v{T1}, 0")
    e("s_mov_b64 exec, 1")
    e(f"buffer_atomic_add v{T0}, v{T1}, s[{SRD_D}:{SRD_D+3}], 0 offen sc0")
    e("s_waitcnt vmcnt(0)")
    e(f"v_readfirstlane_b32 s{S_CNT}, v{T0}")
    e("s_mov_b64 exec, -1")
    e("s_nop 3")
    e(f"s_and_b32 s{S_CNT}, s{S_CNT}, 255")
    e(f"s_cmp_lg_u32 s{S_CNT}, 255")
    e("s_cbranch_scc1 L_op_noadd")
    e(f"v_mov_b32 v{T0}, 1")
    e(f"v_lshlrev_b32 v{T1}, 8, v0")
    for k in range(4):
        e(f"s_mov_b32 s{S_CNT}, {k*16384}")
        e(f"buffer_store_dword v{T0}, v{T1}, s[64:67], s{S_CNT} offen sc1")
    e.label("L_op_noadd")
    stamp(e, 61, 30)

    wtok, otok = {}, {}

    def w_pieces(s):
        out = []
        for hh in range(2):
            c = 2 * s + hh
            slot = (s % NSS) * 32768 + hh * 16384

            def p0(slot=slot):
                e(f"s_add_u32 m0, s{S_W2K}, {slot}")
                e(f"s_lshl_b32 s{S_T1k}, s{S_CHW}, 18")
                e(f"s_add_u32 s{S_T1k}, s{S_T1k}, s{S_WOFF}")
                e.vmem(f"buffer_load_dwordx4 v{V_WD}, s[{SRD_W}:{SRD_W+3}], s{S_T1k} offen{NT_WO} lds")

            def p1(c=c):
                wtok[s] = e.vmem(f"buffer_load_dwordx4 v{V_WD+1}, s[{SRD_W}:{SRD_W+3}], s{S_T1k} offen offset:1024{NT_WO} lds")
                e(f"s_add_u32 s{S_CHW}, s{S_CHW}, 1")
                e(f"s_and_b32 s{S_CHW}, s{S_CHW}, 15")
                if (c + 1) >> 4:
                    e(f"s_or_b32 s{S_CHW}, s{S_CHW}, 16")
            out += [p0, p1]
        return out

    def o_pieces(s):
        out = []
        fo = FO + 16 * (s & 3)
        for hh in range(2):
            c = 2 * s + hh

            def p0(hh=hh):
                e(f"s_lshl_b32 s{S_T0k}, s{S_CHO}, 14")
                e(f"s_add_u32 s{S_T0k}, s{S_T0k}, s{S_OOFF}")
                e.vmem(f"buffer_load_dwordx4 {vr(fo+8*hh,4)}, v{V_L16}, s[{SRD_A}:{SRD_A+3}], s{S_T0k} offen{NT_OLD}")

            def p1(hh=hh, c=c):
                otok[s] = e.vmem(f"buffer_load_dwordx4 {vr(fo+8*hh+4,4)}, v{V_L16}, s[{SRD_A}:{SRD_A+3}], s{S_T0k} offen offset:1024{NT_OLD}")
                e(f"s_add_u32 s{S_CHO}, s{S_CHO}, 1")
                e(f"s_and_b32 s{S_CHO}, s{S_CHO}, 15")
                if (c + 1) >> 4:
                    e(f"s_or_b32 s{S_CHO}, s{S_CHO}, 16")
            out += [p0, p1]
        return out

    def issue_w(s):
        for p_ in w_pieces(s):
            p_()

    def issue_o(s):
        for p_ in o_pieces(s):
            p_()

    def read_i(s, i):
        hh, ee, ntp = i >> 2, (i >> 1) & 1, i & 1
        fb = FA + 32 * (s & 1)
        off = (s % NSS) * 32768 + hh * 16384 + ee * 1024
        for z in range(2):
            e.lds(f"ds_read_b64_tr_b16 {vr(fb+16*hh+8*ee+4*ntp+2*z,2)}, v{V_WR+4*(off>>16)+2*ntp+z} offset:{off&0xffff}")

    def mfma_i(s, i):
        hh, ee, ntp = i >> 2, (i >> 1) & 1, i & 1
        fb = FA + 32 * (s & 1)
        fo = FO + 16 * (s & 3)
        c = "0" if (s == 0 and hh == 0 and ee == 0) else vr(ACC + 16 * ntp, 16)
        e(f"v_mfma_f32_32x32x16_bf16 {vr(ACC+16*ntp,16)}, {vr(fb+16*hh+8*ee+4*ntp,4)}, {vr(fo+8*hh+4*ee,4)}, {c}")

    def mfmas(s):
        for i in range(8):
            mfma_i(s, i)

    for s in range(PRE_SS):
        issue_w(s)
    e(f"s_cmp_lg_u32 s{S_W}, 0")
    e("s_cbranch_scc1 L_op_nopoll")
    e(f"s_mov_b32 s{S_CNT}, 0x40000")
    e(f"v_mov_b32 v{T1}, 0")
    e.label("L_op_poll")
    e(f"buffer_load_dword v{T2}, v{T1}, s[64:67], s68 offen sc1")
    e("s_waitcnt vmcnt(0)")
    e(f"v_readfirstlane_b32 s{S_T1k}, v{T2}")
    e(f"s_sub_u32 s{S_CNT}, s{S_CNT}, 1")
    e(f"s_cmp_eq_u32 s{S_CNT}, 0")
    e("s_cbranch_scc1 L_op_nopoll")
    e(f"s_cmp_eq_u32 s{S_T1k}, 1")
    e("s_cbranch_scc1 L_op_nopoll")
    e(f"s_sleep {OPT.get('sleep','4')}")
    e("s_branch L_op_poll")
    e.label("L_op_nopoll")
    if OPT.get("inv"):
        e("buffer_inv sc1")
        e("s_waitcnt vmcnt(0)")
    e("s_barrier")
    stamp(e, 62, 30)
    issue_o(0)
    issue_o(1)
    for s in range(PRE_SS, NSS - 1):
        issue_w(s)
    def loop(early):
        for s in range(16):
            e.comment(f"oproj step {s}")
            t = wtok[s]
            if s > 0:
                t = max(t, otok[s - 1])
            e.wait_vm(t)
            e("s_barrier")

            pcs = (o_pieces(s + 2) if s + 2 < 16 else []) + (w_pieces(s + NSS - 1) if s + NSS - 1 < 16 else [])
            pcs += [lambda: None] * (8 - len(pcs))
            for i in range(8):
                if s > 0:
                    mfma_i(s - 1, i)
                if OPT.get("oorder") == "1":
                    if i < 4:
                        read_i(s, 2 * i)
                        read_i(s, 2 * i + 1)
                    pcs[i]()
                elif early:
                    pcs[i]()
                    read_i(s, i)
                else:
                    read_i(s, i)
                    pcs[i]()
            e("s_waitcnt lgkmcnt(0)")
            if STAMP == 3:
                stamp(e, 1 + s, 30)
        e.wait_vm(otok[15])
        mfmas(15)

    if STAG:
        save = (e.vm_issued, dict(wtok), dict(otok))
        e(f"s_cmp_ge_u32 s{S_W}, 4")
        e("s_cbranch_scc1 L_op_late")
        loop(True)
        e("s_branch L_op_done")
        e.label("L_op_late")
        e.vm_issued = save[0]
        wtok.clear(); wtok.update(save[1]); otok.clear(); otok.update(save[2])
        loop(False)
        e.label("L_op_done")
    else:
        loop(False)
    e("s_nop 15")
    e("s_nop 3")
    e("s_barrier")
    for k in range(8):
        e(f"ds_write_b128 v{V_RW}, {vr(ACC+4*k,4)} offset:{k*1024}")
    e(f"s_lshl_b32 s{S_T0k}, s{S_MT}, 18")
    e(f"s_lshl_b32 s{S_T1k}, s{S_MP}, 17")
    e(f"s_add_u32 s{S_T0k}, s{S_T0k}, s{S_T1k}")
    e(f"s_lshl_b32 s{S_T1k}, s{S_BR}, 11")
    e(f"s_add_u32 s{S_T0k}, s{S_T0k}, s{S_T1k}")
    e(f"s_lshl_b32 s{S_T1k}, s{S_NT}, 7")
    e(f"s_add_u32 s{S_T0k}, s{S_T0k}, s{S_T1k}")
    e(f"s_lshr_b32 s{S_T1k}, s{S_KQ}, 1")
    e(f"s_lshl_b32 s{S_T1k}, s{S_T1k}, 6")
    e(f"s_add_u32 s{S_T0k}, s{S_T0k}, s{S_T1k}")
    e(f"s_and_b32 s{S_T1k}, s{S_KQ}, 1")
    e(f"s_lshl_b32 s{S_T1k}, s{S_T1k}, 4")
    e(f"s_add_u32 s{S_T0k}, s{S_T0k}, s{S_T1k}")
    e("s_waitcnt lgkmcnt(0)")
    e("s_barrier")
    for k in range(4):
        for q in range(2):
            e(f"ds_read_b128 {vr(FA+8*k+4*q,4)}, v{V_RR} offset:{k*16384+q*1024}")
    e("s_waitcnt lgkmcnt(0)")
    for r in range(8):
        e(f"v_add_f32 v{FA+r}, v{FA+r}, v{FA+8+r}")
        e(f"v_add_f32 v{FA+16+r}, v{FA+16+r}, v{FA+24+r}")
    for r in range(8):
        e(f"v_add_f32 v{FA+r}, v{FA+r}, v{FA+16+r}")
    for k in range(4):
        e(f"v_cvt_pk_bf16_f32 v{FA+32+k}, v{FA+2*k}, v{FA+2*k+1}")
    e(f"buffer_store_dwordx4 {vr(FA+32,4)}, v{V_OA}, s[{SRD_OUT}:{SRD_OUT+3}], s{S_T0k} offen")
    if STAMP:
        e("s_waitcnt vmcnt(0)")
    stamp(e, 63, 30)


e = Em()
emit_k1(e)
txt = HEADER + e.text() + '.section .rodata,"a"\n.p2align 6\n' + kernel_desc("concat_heads__gqa_block_cached__mha_block_cached__near_ridge_kernel")
open(OUT, "w").write(txt)
print("wrote", OUT, len(txt), "bytes")
```

```python
import sys, math, struct
sys.path.insert(0, "tools")
from asmlib import Em, vr, sr, kernel_desc

OUT = sys.argv[1] if len(sys.argv) > 1 else "concat_heads__gqa_block_cached__mha_block_cached__near_ridge.s"
OPT = dict(a.split("=") for a in sys.argv[2:])


def pol(name, dflt):
    v = OPT.get(name, dflt).strip()
    return "" if v in ("", "0") else " " + v.replace("+", " ")


NT_KVB = pol("nt_kvb", "nt")
NT_KVA = pol("nt_kva", "0")
NT_W = pol("nt_w", "0")
NT_X = pol("nt_x", "0")
NT_WO = pol("nt_wo", "0")
NT_OST = pol("nt_ost", "sc1")
NT_OLD = pol("nt_old", "sc1")
STAMP = int(OPT.get("stamp", "0"))
ONLY = OPT.get("only", "")
GRPBIT = int(OPT.get("grpbit", "4"))
FT = int(OPT.get("ft", "0"))
FT2 = int(OPT.get("ft2", "0"))
FT2O = int(OPT.get("ft2o", "0"))
KPRE_STEP = int(OPT.get("kpre_step", "2"))
SRD_ST = 88


def srd(e, dst, lo, hi, size, add=0):
    if add:
        e(f"s_add_u32 s{dst}, s{lo}, {add:#x}")
        e(f"s_addc_u32 s{dst+1}, s{hi}, 0")
        e(f"s_and_b32 s{dst+1}, s{dst+1}, 0xffff")
    else:
        e(f"s_mov_b32 s{dst}, s{lo}")
        e(f"s_and_b32 s{dst+1}, s{hi}, 0xffff")
    e(f"s_mov_b32 s{dst+2}, {size:#x}")
    e(f"s_mov_b32 s{dst+3}, 0x20000")


def stamp_init(e, wsreg, wavereg, base):
    if not STAMP: return
    if STAMP == 9:
        srd(e, SRD_ST, 38, 39, 256)
        e(f"s_cmp_eq_u32 s2, 101")
        e(f"s_cselect_b32 s92, 32, 0")
        e(f"s_cselect_b32 s93, 0, s2")
        e(f"s_add_u32 s93, s93, s{wavereg}")
        e(f"s_cmp_eq_u32 s93, 0")
        e(f"s_cselect_b32 s{SRD_ST+2}, 256, 0")
        return
    srd(e, SRD_ST, wsreg, wsreg + 1, 1 << 20, add=base)
    e(f"s_lshl_b32 s92, s2, 3")
    e(f"s_add_u32 s92, s92, s{wavereg}")
    e(f"s_lshl_b32 s92, s92, 8")


def stamp(e, idx, vt=250):
    if not STAMP: return
    if STAMP == 9:
        idx = {0: 1, 33: 2, 60: 3, 61: 4, 62: 5, 63: 6}[idx]
    e("s_memrealtime s[94:95]")
    e("s_waitcnt lgkmcnt(0)")
    e(f"v_mov_b32 v{vt}, s94")
    e(f"v_mov_b32 v{vt+1}, 0")
    e.vmem(f"buffer_store_dword v{vt}, v{vt+1}, s[{SRD_ST}:{SRD_ST+3}], s92 offen offset:{idx*4}")


def f32bits(x):
    return struct.unpack("<I", struct.pack("<f", x))[0]


CSCALE = (128 ** -0.5) * math.log2(math.e)

HEADER = """; Kernarg layout (104 bytes, ptrs only, base s[0:1]):
; @launch grid=(256,1,1) block=(512,1,1) lds=163840
.amdgcn_target "amdgcn-amd-amdhsa--gfx950"
.text
"""

S_W, S_J, S_I, S_XCD, S_CI = 3, 4, 5, 7, 8
S_HA, S_BPA, S_HB, S_BPB = 9, 10, 11, 12
SRD_X, SRD_WQ, SRD_K, SRD_V, SRD_O = 44, 48, 52, 56, 60
S_WQOFF, S_XOFF, S_KVOFF, S_RING, S_C, S_T0, S_T1, S_T2 = 72, 73, 74, 75, 76, 77, 78, 79
S_WQK, S_XK, S_KROT, S_WQM, S_XM = 80, 81, 82, 83, 84
V_L16 = 5
V_KVD = 6
V_KR = 10
V_VR = 18
V_T = 26
V_Q = 32
V_F = 64
V_G = 96
V_S = 128
V_WQR = 96
V_XR = 100
V_QXW = 108
V_WQD = 112
V_XD = 116
V_TWQ, V_TX, V_TD = 120, 121, 122
V_TKV = 31
QF = 128
QACC = 224

NR = 4
KPRE1 = int(OPT.get("kpre1", "6"))
FTKV = int(OPT.get("ftkv", "0"))
PACE = int(OPT.get("pace", "1"))
AROT = int(OPT.get("arot", "1"))
FTA = int(OPT.get("fta", "0"))
STAG = int(OPT.get("stag", "1"))
FLAG_OFF = 8 << 20


def wq_piece(slot):
    return 98304 + 16384 * slot


def x_piece(slot):
    return 16384 + 24576 * slot


XCH = 98304


def emit_k1_prologue(e):
    e.raw(".globl concat_heads__gqa_block_cached__mha_block_cached__near_ridge_kernel")
    e.raw(".p2align 8")
    e.raw(".type concat_heads__gqa_block_cached__mha_block_cached__near_ridge_kernel,@function")
    e.label("concat_heads__gqa_block_cached__mha_block_cached__near_ridge_kernel")
    e("s_cmp_ge_u32 s2, 256")
    e("s_cbranch_scc1 L_k1_end")
    e("s_load_dwordx16 s[16:31], s[0:1], 0")
    e("s_load_dwordx8 s[32:39], s[0:1], 64")
    e("s_load_dwordx2 s[40:41], s[0:1], 96")
    e("v_lshrrev_b32 v1, 6, v0")
    e("v_and_b32 v0, 63, v0")
    e("s_nop 0")
    e(f"v_readfirstlane_b32 s{S_W}, v1")
    e(f"s_and_b32 s{S_XCD}, s2, 7")
    e(f"s_lshr_b32 s{S_CI}, s2, 3")
    e(f"s_and_b32 s{S_J}, s{S_W}, 3")
    e(f"s_lshr_b32 s{S_I}, s{S_W}, 2")
    e(f"s_mov_b32 s{S_C}, {f32bits(CSCALE):#x}")
    e(f"s_lshl_b32 s{S_WQM}, s{S_J}, 12")
    e(f"s_lshl_b32 s{S_XM}, s{S_J}, 11")
    e(f"s_lshr_b32 s{S_HA}, s{S_XCD}, 1")
    e(f"s_lshl_b32 s{S_HA}, s{S_HA}, 3")
    e(f"s_and_b32 s{S_T0}, s{S_CI}, 7")
    e(f"s_add_u32 s{S_HA}, s{S_HA}, s{S_T0}")
    e(f"s_and_b32 s{S_BPA}, s{S_XCD}, 1")
    e(f"s_lshl_b32 s{S_BPA}, s{S_BPA}, 2")
    e(f"s_lshr_b32 s{S_T0}, s{S_CI}, 3")
    e(f"s_add_u32 s{S_BPA}, s{S_BPA}, s{S_T0}")
    e(f"s_lshl_b32 s{S_HB}, s{S_XCD}, 2")
    e(f"s_and_b32 s{S_T0}, s{S_CI}, 3")
    e(f"s_add_u32 s{S_HB}, s{S_HB}, s{S_T0}")
    e(f"s_lshr_b32 s{S_BPB}, s{S_CI}, 2")
    T0, T1, T2, T3, T4, T5 = 64, 65, 66, 67, 68, 69
    e(f"v_lshlrev_b32 v{V_L16}, 4, v0")
    e(f"v_lshrrev_b32 v{T0}, 4, v0")
    e(f"v_and_b32 v{T1}, 15, v0")
    e(f"v_lshlrev_b32 v{T2}, 2, v{T0}")
    e(f"v_xor_b32 v{T1}, v{T1}, v{T2}")
    e(f"v_lshlrev_b32 v{T1}, 4, v{T1}")
    e(f"v_lshlrev_b32 v{T2}, 8, v{T0}")
    e(f"v_add_u32 v{V_KVD}, v{T1}, v{T2}")
    for n in range(1, 4):
        e(f"v_xor_b32 v{V_KVD+n}, {16*n}, v{V_KVD}")
    e(f"v_lshlrev_b32 v{T2}, 13, v{T0}")
    e(f"v_add_u32 v{V_WQD}, v{T1}, v{T2}")
    for q in range(1, 4):
        e(f"v_xor_b32 v{V_WQD+q}, {16*q}, v{V_WQD}")
        e(f"v_add_u32 v{V_WQD+q}, {q*(32768-1024)}, v{V_WQD+q}")
    e(f"v_lshrrev_b32 v{T2}, 3, v0")
    e(f"v_lshlrev_b32 v{T2}, 11, v{T2}")
    e(f"v_and_b32 v{T3}, 7, v0")
    e(f"v_xor_b32 v{T3}, v{T3}, v{T0}")
    e(f"v_lshlrev_b32 v{T3}, 4, v{T3}")
    e(f"v_add_u32 v{V_XD}, v{T2}, v{T3}")
    e(f"v_xor_b32 v{V_XD+1}, 64, v{V_XD}")
    e(f"v_add_u32 v{V_XD+1}, {8*2048-1024}, v{V_XD+1}")
    e(f"v_and_b32 v{T2}, 31, v0")
    e(f"v_lshrrev_b32 v{T3}, 5, v0")
    e(f"v_lshrrev_b32 v{T4}, 1, v{T2}")
    e(f"v_and_b32 v{T4}, 7, v{T4}")
    e(f"v_xor_b32 v{T4}, v{T4}, v{T3}")
    e(f"v_lshlrev_b32 v{T4}, 4, v{T4}")
    e(f"v_lshlrev_b32 v{T5}, 7, v{T2}")
    e(f"v_add_u32 v{T4}, v{T4}, v{T5}")
    e(f"v_mov_b32 v{V_XR}, v{T4}")
    for s in range(1, 4):
        e(f"v_xor_b32 v{V_XR+s}, {32*s}, v{V_XR}")
    for s in range(4):
        e(f"v_add_u32 v{V_XR+4+s}, 65536, v{V_XR+s}")
    e(f"v_and_b32 v{T4}, 3, v{T2}")
    e(f"v_lshlrev_b32 v{T4}, 2, v{T4}")
    e(f"v_lshrrev_b32 v{T5}, 2, v{T2}")
    e(f"v_and_b32 v{T5}, 3, v{T5}")
    e(f"v_or_b32 v{T4}, v{T4}, v{T5}")
    e(f"v_xor_b32 v{T4}, v{T4}, v{T3}")
    e(f"v_lshlrev_b32 v{T4}, 4, v{T4}")
    e(f"v_lshlrev_b32 v{T5}, 8, v{T2}")
    e(f"v_add_u32 v{V_KR}, v{T4}, v{T5}")
    for s in range(1, 8):
        e(f"v_xor_b32 v{V_KR+s}, {32*s}, v{V_KR}")
    e(f"v_and_b32 v{T1}, 1, v{T0}")
    e(f"v_lshrrev_b32 v{T2}, 2, v0")
    e(f"v_and_b32 v{T2}, 3, v{T2}")
    e(f"v_and_b32 v{T4}, 1, v0")
    e(f"v_lshrrev_b32 v{T5}, 1, v0")
    e(f"v_and_b32 v{T5}, 1, v{T5}")
    e(f"v_lshlrev_b32 v{T5}, 3, v{T5}")
    e(f"v_lshlrev_b32 v{V_VR+2}, 6, v{T2}")
    e(f"v_add_u32 v{T5}, v{T5}, v{V_VR+2}")
    e(f"v_lshlrev_b32 v1, 1, v{T4}")
    e(f"v_or_b32 v1, v1, v{T1}")
    e(f"v_xor_b32 v1, v1, v{T3}")
    e(f"v_lshlrev_b32 v1, 4, v1")
    e(f"v_add_u32 v1, v1, v{T5}")
    e(f"v_lshlrev_b32 v{V_VR+1}, 2, v{T3}")
    e(f"v_add_u32 v{V_VR+1}, v{V_VR+1}, v{T2}")
    e(f"v_lshlrev_b32 v{V_VR+1}, 8, v{V_VR+1}")
    e(f"v_add_u32 v{V_VR}, v1, v{V_VR+1}")
    for dt in range(4):
        for z in range(2):
            if dt == 0 and z == 0:
                continue
            e(f"v_xor_b32 v{V_VR+2*dt+z}, {64*dt + 32*z + 2048*z}, v{V_VR}")
    e(f"v_lshlrev_b32 v1, 1, v{T1}")
    e(f"v_or_b32 v1, v1, v{T4}")
    e(f"v_lshlrev_b32 v{V_WQR+1}, 1, v{T3}")
    e(f"v_xor_b32 v1, v1, v{V_WQR+1}")
    e(f"v_lshlrev_b32 v1, 4, v1")
    e(f"v_add_u32 v1, v1, v{T5}")
    e(f"v_lshlrev_b32 v{V_WQR+1}, 3, v{T3}")
    e(f"v_add_u32 v{V_WQR+1}, v{V_WQR+1}, v{T2}")
    e(f"v_lshlrev_b32 v{V_WQR+1}, 8, v{V_WQR+1}")
    e(f"v_add_u32 v1, v1, v{V_WQR+1}")
    e(f"s_lshl_b32 s{S_T0}, s{S_J}, 6")
    e(f"v_xor_b32 v1, s{S_T0}, v1")
    e(f"v_add_u32 v{V_WQR}, 65536, v1")
    e(f"v_xor_b32 v{V_WQR+1}, {16+1024}, v{V_WQR}")
    e(f"v_add_u32 v{V_WQR+2}, 65536, v{V_WQR}")
    e(f"v_add_u32 v{V_WQR+3}, 65536, v{V_WQR+1}")
    e(f"s_lshl_b32 s{S_T0}, s{S_I}, 14")
    e(f"s_add_u32 s{S_T0}, s{S_T0}, s{S_XM}")
    e(f"s_add_u32 s{S_T0}, s{S_T0}, {XCH}")
    e(f"v_add_u32 v{V_QXW}, s{S_T0}, v{V_L16}")
    e(f"v_and_b32 v1, 15, v0")
    e(f"v_lshrrev_b32 v{V_TWQ}, 1, v1")
    e(f"v_lshlrev_b32 v{V_TWQ}, 13, v{V_TWQ}")
    e(f"v_and_b32 v1, 1, v1")
    e(f"v_lshlrev_b32 v1, 7, v1")
    e(f"v_add_u32 v{V_TWQ}, v{V_TWQ}, v1")
    e(f"v_and_b32 v{V_TX}, 7, v0")
    e(f"v_lshlrev_b32 v{V_TX}, 11, v{V_TX}")
    e(f"v_lshlrev_b32 v{V_TKV}, 7, v0")
    e("s_waitcnt lgkmcnt(0)")
    stamp_init(e, 40, S_W, 16 << 20)
    srd(e, 64, 40, 41, 65536, add=FLAG_OFF)
    srd(e, 68, 38, 39, 256)
    e(f"s_cmp_lg_u32 s{S_W}, 7")
    e("s_cbranch_scc1 L_k1_noflag")
    e("s_lshl_b32 s14, s2, 8")
    e("v_mov_b32 v1, 0")
    e("v_lshlrev_b32 v2, 2, v0")
    e("buffer_store_dword v1, v2, s[64:67], s14 offen sc1")
    e("v_mov_b32 v2, 1")
    e("s_waitcnt vmcnt(0)")
    e("s_mov_b64 exec, 1")
    e("buffer_atomic_add v2, v1, s[68:71], 0 offen")
    e("s_mov_b64 exec, -1")
    e.label("L_k1_noflag")
    e(f"s_cmp_ge_u32 s{S_W}, 4")
    e("s_cbranch_scc1 L_k1_B")


def emit_k1_role(e, g):
    e.vm_issued = 0
    e.lg_issued = 0
    nslot = 3 if g == 1 else 2
    wstride = 24576 if g == 1 else 16384
    rbase = 0 if g == 1 else 98304
    SH, SBP = (S_HA, S_BPA) if g == 0 else (S_HB, S_BPB)
    kv_tok, wq_tok, x_tok = {}, {}, {}

    def ring_setup(br, adv=0):
        sh, sbp = (S_HA, S_BPA) if br == 0 else (S_HB, S_BPB)
        px, pw = (16, 22) if br == 0 else (26, 32)
        srd(e, SRD_X, px, px + 1, 1 << 20)
        srd(e, SRD_WQ, pw, pw + 1, 8 << 20)
        e(f"s_lshl_b32 s{S_XOFF}, s{sbp}, 17")
        e(f"s_lshl_b32 s{S_T0}, s{S_J}, 15")
        e(f"s_add_u32 s{S_XOFF}, s{S_XOFF}, s{S_T0}")
        e(f"s_lshl_b32 s{S_WQOFF}, s{sh}, 8")
        e(f"s_lshl_b32 s{S_T0}, s{S_J}, 17")
        e(f"s_add_u32 s{S_WQOFF}, s{S_WQOFF}, s{S_T0}")
        if br == 1:
            e(f"s_lshl_b32 s{S_T0}, s{sbp}, 1")
            e(f"s_and_b32 s{S_T1}, s{S_CI}, 3")
            e(f"s_lshl_b32 s{S_T1}, s{S_T1}, 2")
        else:
            e(f"s_lshr_b32 s{S_T0}, s{S_CI}, 3")
            e(f"s_lshl_b32 s{S_T0}, s{S_T0}, 2")
            e(f"s_and_b32 s{S_T1}, s{S_CI}, 7")
            e(f"s_lshl_b32 s{S_T1}, s{S_T1}, 1")
        e(f"s_add_u32 s{S_T0}, s{S_T0}, s{S_T1}")
        if adv:
            e(f"s_add_u32 s{S_T0}, s{S_T0}, {adv}")
        e(f"s_and_b32 s{S_T0}, s{S_T0}, 15")
        e(f"s_lshl_b32 s{S_WQK}, s{S_T0}, 19")
        e(f"s_lshl_b32 s{S_XK}, s{S_T0}, 7")

    def issue_chunk(c):
        if c == 16:
            ring_setup(0)
        e(f"s_add_u32 m0, s{S_XM}, {x_piece(c % NR)}")
        e(f"s_add_u32 s{S_T0}, s{S_XOFF}, s{S_XK}")
        e.vmem(f"buffer_load_dwordx4 v{V_XD}, s[{SRD_X}:{SRD_X+3}], s{S_T0} offen{NT_X} lds")
        e.vmem(f"buffer_load_dwordx4 v{V_XD+1}, s[{SRD_X}:{SRD_X+3}], s{S_T0} offen offset:1024{NT_X} lds")
        e(f"s_add_u32 m0, s{S_WQM}, {wq_piece(c % NR)}")
        e(f"s_add_u32 s{S_T0}, s{S_WQOFF}, s{S_WQK}")
        for q in range(4):
            wq_tok[c] = e.vmem(f"buffer_load_dwordx4 v{V_WQD+q}, s[{SRD_WQ}:{SRD_WQ+3}], s{S_T0} offen offset:{q*1024}{NT_W} lds")
        e(f"s_add_u32 s{S_XK}, s{S_XK}, 128")
        e(f"s_and_b32 s{S_XK}, s{S_XK}, 2047")
        e(f"s_add_u32 s{S_WQK}, s{S_WQK}, 0x80000")
        e(f"s_and_b32 s{S_WQK}, s{S_WQK}, 0x7fffff")

    def kv_setup():
        pk, pv = (18, 20) if g == 0 else (28, 30)
        kvsize = (8 << 20) if g == 0 else (64 << 20)
        srd(e, SRD_K, pk, pk + 1, kvsize)
        srd(e, SRD_V, pv, pv + 1, kvsize)
        srd(e, SRD_O, 40, 41, 4 << 20, add=g * (4 << 20))
        e(f"s_lshl_b32 s{S_T0}, s{SBP}, 1")
        e(f"s_lshr_b32 s{S_T1}, s{S_J}, 1")
        e(f"s_add_u32 s{S_T0}, s{S_T0}, s{S_T1}")
        if g == 0:
            e(f"s_lshl_b32 s{S_T1}, s{S_T0}, 2")
            e(f"s_lshr_b32 s{S_T2}, s{SH}, 3")
        else:
            e(f"s_lshl_b32 s{S_T1}, s{S_T0}, 5")
            e(f"s_mov_b32 s{S_T2}, s{SH}")
        e(f"s_add_u32 s{S_T1}, s{S_T1}, s{S_T2}")
        e(f"s_lshl_b32 s{S_KVOFF}, s{S_T1}, 17")
        e(f"s_and_b32 s{S_T1}, s{S_J}, 1")
        e(f"s_lshl_b32 s{S_T1}, s{S_T1}, 16")
        e(f"s_add_u32 s{S_KVOFF}, s{S_KVOFF}, s{S_T1}")
        if g == 1:
            e(f"s_add_u32 s{S_KROT}, s{SH}, s{S_T0}")
        elif AROT:
            e(f"s_mov_b32 s{S_KROT}, s{SH}")
        else:
            e(f"s_mov_b32 s{S_KROT}, s{S_T0}")
        e(f"s_and_b32 s{S_KROT}, s{S_KROT}, 7")
        e(f"s_lshl_b32 s{S_KROT}, s{S_KROT}, 13")
        e(f"s_mul_i32 s{S_RING}, s{S_J}, {wstride}")
        if rbase:
            e(f"s_add_u32 s{S_RING}, s{S_RING}, {rbase}")
        for i in range(8):
            e(f"v_add_u32 v{V_KR+i}, s{S_RING}, v{V_KR+i}")
            e(f"v_add_u32 v{V_VR+i}, s{S_RING}, v{V_VR+i}")

    def issue_kv(n):
        nt_kv = NT_KVB if g == 1 else NT_KVA
        srd_ = SRD_K if n < 8 else SRD_V
        t = n & 7
        slot = n % nslot
        fta = FTA and g == 0 and t == 0
        if fta:
            nt_kv = " nt"
        e(f"s_add_u32 s{S_T0}, s{S_KROT}, {t*8192}")
        e(f"s_and_b32 s{S_T0}, s{S_T0}, 0xffff")
        e(f"s_add_u32 s{S_T0}, s{S_T0}, s{S_KVOFF}")
        for half in range(2):
            e(f"s_add_u32 m0, s{S_RING}, {slot*8192 + half*4096}")
            if half:
                e(f"s_add_u32 s{S_T0}, s{S_T0}, 4096")
            else:
                e("s_nop 0")
            for q in range(4):
                tok = e.vmem(f"buffer_load_dwordx4 v{V_KVD+q}, s[{srd_}:{srd_+3}], s{S_T0} offen offset:{q*1024}{nt_kv} lds")
        kv_tok[n] = tok
        if fta:
            e(f"s_sub_u32 s{S_T0}, s{S_T0}, 4096")
            e.vmem(f"buffer_load_dword v1, v{V_TKV}, s[{srd_}:{srd_+3}], s{S_T0} offen")

    def touch_kva():
        e(f"s_add_u32 s{S_T0}, s{S_KROT}, s{S_KVOFF}")
        for srd_ in (SRD_K, SRD_V):
            if FTKV == 1:
                e.vmem(f"buffer_load_dword v{V_TD}, v{V_TKV}, s[{srd_}:{srd_+3}], s{S_T0} offen nt")
            e.vmem(f"buffer_load_dword v{V_TD}, v{V_TKV}, s[{srd_}:{srd_+3}], s{S_T0} offen")

    def reads_ks(c, ks):
        fb = QF + 48 * (c & 1) + 12 * ks
        slot = c % NR
        off = wq_piece(slot) + ks * 4096
        for z in range(2):
            e.lds(f"ds_read_b64_tr_b16 {vr(fb+2*z,2)}, v{V_WQR+2*((off>>16)-1)+z} offset:{off & 0xffff}")
        for it in range(2):
            off = x_piece(slot) + it * 4096
            e.lds(f"ds_read_b128 {vr(fb+4+4*it,4)}, v{V_XR+4*(off>>16)+ks} offset:{off & 0xffff}")

    def mfma_ks(c, ks, its=(0, 1)):
        fb = QF + 48 * (c & 1) + 12 * ks
        for it in its:
            acc = QACC + 16 * it
            cc = "0" if ((c & 15) == 0 and ks == 0) else vr(acc, 16)
            e(f"v_mfma_f32_32x32x16_bf16 {vr(acc,16)}, {vr(fb,4)}, {vr(fb+4+4*it,4)}, {cc}")

    def mine(c):
        return 0 <= c < 32 and ((c < 16) == (g == 1))

    def loads(c):
        return c < 32 and ((c <= 18) == (g == 0))

    stamp(e, 0, 124)
    if g == 0:
        ring_setup(1)
        for c in range(NR - 1):
            issue_chunk(c)
    else:
        ring_setup(0, adv=3)
    kv_setup()
    for s in range(32):
        e.comment(f"qproj step {s}")
        if loads(s):
            e.wait_vm(wq_tok[s])
        e("s_barrier")
        for i in range(8):
            if mine(s - 1):
                mfma_ks(s - 1, i >> 1, (i & 1,))
            if mine(s) and i < 4:
                reads_ks(s, i)
        if loads(s + NR - 1):
            issue_chunk(s + NR - 1)
        if s == 8 and OPT.get("qonly"):
            stamp(e, 60, 124)
        if s == 15 and OPT.get("qonly"):
            stamp(e, 61, 124)
        if s == 22 and OPT.get("qonly"):
            stamp(e, 62, 124)
        if s == 31 and OPT.get("qonly"):
            stamp(e, 63, 124)
            stamp(e, 33, 124)
            e("s_endpgm")
        if g == 1 and s == KPRE_STEP and not OPT.get("qonly"):
            issue_kv(0)
        if g == 1 and s == KPRE1 and not OPT.get("qonly"):
            issue_kv(1)
        if mine(s):
            e("s_waitcnt lgkmcnt(0)")
        if STAMP == 2:
            stamp(e, 1 + s, 124)
    if mine(31):
        for ks in range(4):
            mfma_ks(31, ks)
    e("s_nop 15")
    e("s_nop 3")
    for k in range(16):
        e(f"v_cvt_pk_bf16_f32 v{V_F+k}, v{QACC+2*k}, v{QACC+2*k+1}")
    for it in range(2):
        for ss in range(2):
            e(f"ds_write_b128 v{V_QXW}, {vr(V_F+8*it+4*ss,4)} offset:{it*8192+ss*1024}")
    e(f"s_lshr_b32 s{S_T1}, s{S_J}, 1")
    e(f"s_lshl_b32 s{S_T1}, s{S_T1}, 13")
    e(f"s_add_u32 s{S_T1}, s{S_T1}, {XCH + g*16384}")
    e(f"v_add_u32 v{V_T}, s{S_T1}, v{V_L16}")
    e("s_waitcnt lgkmcnt(0)")
    e("s_barrier")
    for s in range(8):
        e(f"ds_read_b128 {vr(V_Q+4*s,4)}, v{V_T} offset:{s*1024}")
    e("s_waitcnt lgkmcnt(0)")
    e("s_barrier")
    for n in range(2 if (g == 1 and not OPT.get("qonly")) else 0, nslot):
        issue_kv(n)
    stamp(e, 33, V_T + 2)

    VMX = V_T
    VM, VMC, VL, VE, VP = V_Q, V_Q + 1, V_Q + 2, V_Q + 8, V_Q + 16

    def max_tile(t):
        b = V_S + 16 * t
        for ch in range(2):
            bb = b + 8 * ch
            if t == 0:
                e(f"v_max3_f32 v{VMX+ch}, v{bb}, v{bb+1}, v{bb+2}")
                e(f"v_max3_f32 v{VMX+ch}, v{VMX+ch}, v{bb+3}, v{bb+4}")
                e(f"v_max3_f32 v{VMX+ch}, v{VMX+ch}, v{bb+5}, v{bb+6}")
                e(f"v_max_f32 v{VMX+ch}, v{VMX+ch}, v{bb+7}")
            else:
                for k in range(4):
                    e(f"v_max3_f32 v{VMX+ch}, v{VMX+ch}, v{bb+2*k}, v{bb+2*k+1}")

    def exp_tile(t):
        p = VP + 8 * (t & 1)
        for hf in range(2):
            b = V_S + 16 * t + 8 * hf
            for i in range(8):
                e(f"v_fma_f32 v{VE+i}, v{b+i}, s{S_C}, -v{VMC}")
            for i in range(8):
                e(f"v_exp_f32 v{VE+i}, v{VE+i}")
            e("s_nop 0")
            for i in range(8):
                e(f"v_add_f32 v{VL+(i&3)}, v{VL+(i&3)}, v{VE+i}")
            for k in range(4):
                e(f"v_cvt_pk_bf16_f32 v{p+4*hf+k}, v{VE+2*k}, v{VE+2*k+1}")

    for t in range(8):
        e.comment(f"K tile {t}")
        if PACE == 2 and t > 0:
            e("s_barrier")
        e.wait_vm(kv_tok[t])
        if PACE == 1 and t > 0:
            e("s_barrier")
        toks = []
        for s in range(8):
            toks.append(e.lds(f"ds_read_b128 {vr(V_F+4*s,4)}, v{V_KR+s} offset:{(t%nslot)*8192}"))
        if t > 0:
            max_tile(t - 1)
        for s in range(8):
            e.wait_lds(toks[s])
            c = "0" if s == 0 else vr(V_S + 16 * t, 16)
            e(f"v_mfma_f32_32x32x16_bf16 {vr(V_S+16*t,16)}, {vr(V_F+4*s,4)}, {vr(V_Q+4*s,4)}, {c}")
        issue_kv(t + nslot)
        if STAMP == 2:
            stamp(e, 34 + t, V_T + 2)
    e("s_nop 7")
    max_tile(7)
    e(f"v_max_f32 v{VMX}, v{VMX}, v{VMX+1}")
    e(f"v_mov_b32 v{VMX+1}, v{VMX}")
    e("s_nop 1")
    e(f"v_permlane32_swap_b32 v{VMX}, v{VMX+1}")
    e("s_nop 1")
    e(f"v_max_f32 v{VM}, v{VMX}, v{VMX+1}")
    e(f"v_mul_f32 v{VMC}, s{S_C}, v{VM}")
    for i in range(4):
        e(f"v_mov_b32 v{VL+i}, 0")
    exp_tile(0)
    exp_tile(1)
    OA = [V_S, V_S + 16, V_G, V_G + 16]
    for t in range(8):
        n = 8 + t
        if PACE == 2:
            e("s_barrier")
        e.wait_vm(kv_tok[n])
        if PACE == 1:
            e("s_barrier")
        toks = []
        for u in range(2):
            for dt in range(4):
                for z in range(2):
                    toks.append(e.lds(f"ds_read_b64_tr_b16 {vr(V_F+16*u+4*dt+2*z,2)}, v{V_VR+2*dt+z} offset:{(n%nslot)*8192+u*4096}"))
        p = VP + 8 * (t & 1)
        for u in range(2):
            for dt in range(4):
                e.wait_lds(toks[8 * u + 2 * dt + 1])
                c = "0" if (t == 0 and u == 0) else vr(OA[dt], 16)
                e(f"v_mfma_f32_32x32x16_bf16 {vr(OA[dt],16)}, {vr(V_F+16*u+4*dt,4)}, {vr(p+4*u,4)}, {c}")
        if n + nslot < 16:
            issue_kv(n + nslot)
        if t + 2 < 8:
            exp_tile(t + 2)
        if STAMP == 2:
            stamp(e, 42 + t, V_T + 2)
    stamp(e, 60, V_T + 2)
    e(f"v_add_f32 v{VL}, v{VL}, v{VL+1}")
    e(f"v_add_f32 v{VL+2}, v{VL+2}, v{VL+3}")
    e(f"v_add_f32 v{VL}, v{VL}, v{VL+2}")
    e(f"v_mov_b32 v{VL+1}, v{VL}")
    e("s_nop 1")
    e(f"v_permlane32_swap_b32 v{VL}, v{VL+1}")
    e("s_nop 1")
    e(f"v_add_f32 v{VM+1}, v{VL}, v{VL+1}")
    e("s_nop 15")
    lab = f"L_k1_g{g}"
    e(f"v_add_u32 v{V_T+1}, s{S_RING}, v{V_L16}")
    e(f"s_xor_b32 s{S_T1}, s{S_J}, 1")
    e(f"s_mul_i32 s{S_T1}, s{S_T1}, {wstride}")
    if rbase:
        e(f"s_add_u32 s{S_T1}, s{S_T1}, {rbase}")
    e(f"v_add_u32 v{V_T+2}, s{S_T1}, v{V_L16}")
    e(f"v_lshlrev_b32 v{V_T+3}, 3, v0")
    e(f"v_add_u32 v1, s{S_T1}, v{V_T+3}")
    e(f"v_add_u32 v{V_T+3}, s{S_RING}, v{V_T+3}")
    e(f"ds_write_b64 v{V_T+3}, {vr(VM,2)} offset:8192")
    e(f"s_and_b32 s{S_T2}, s{S_J}, 1")
    e(f"s_cmp_eq_u32 s{S_T2}, 1")
    e(f"s_cbranch_scc1 {lab}_j1")
    for k in range(8):
        e(f"ds_write_b128 v{V_T+1}, {vr(V_G+4*k,4)} offset:{k*1024}")
    e(f"s_branch {lab}_jd")
    e.label(f"{lab}_j1")
    for k in range(8):
        e(f"ds_write_b128 v{V_T+1}, {vr(V_S+4*k,4)} offset:{k*1024}")
    e("s_waitcnt lgkmcnt(0)")
    for k in range(32):
        e(f"v_mov_b32 v{V_S+k}, v{V_G+k}")
    e.label(f"{lab}_jd")
    e("s_waitcnt lgkmcnt(0)")
    e("s_barrier")
    PO = V_F
    OACC = V_S
    e(f"ds_read_b64 {vr(VM+2,2)}, v1 offset:8192")
    for k in range(8):
        e(f"ds_read_b128 {vr(PO+4*k,4)}, v{V_T+2} offset:{k*1024}")
    e("s_waitcnt lgkmcnt(8)")
    MT, FA_, FB_, LT = VM + 4, VM + 5, VM + 6, VM + 7
    e(f"v_max_f32 v{MT}, v{VM}, v{VM+2}")
    e(f"v_sub_f32 v{FA_}, v{VM}, v{MT}")
    e(f"v_sub_f32 v{FB_}, v{VM+2}, v{MT}")
    e(f"v_mul_f32 v{FA_}, s{S_C}, v{FA_}")
    e(f"v_mul_f32 v{FB_}, s{S_C}, v{FB_}")
    e(f"v_exp_f32 v{FA_}, v{FA_}")
    e(f"v_exp_f32 v{FB_}, v{FB_}")
    e("s_nop 0")
    e(f"v_mul_f32 v{LT}, v{VM+1}, v{FA_}")
    e(f"v_fma_f32 v{LT}, v{VM+3}, v{FB_}, v{LT}")
    e(f"v_rcp_f32 v{LT}, v{LT}")
    e("s_nop 0")
    e(f"v_mul_f32 v{FA_}, v{FA_}, v{LT}")
    e(f"v_mul_f32 v{FB_}, v{FB_}, v{LT}")
    e(f"s_lshl_b32 s{S_T0}, s{SBP}, 5")
    e(f"s_add_u32 s{S_T0}, s{S_T0}, s{SH}")
    e(f"s_lshl_b32 s{S_T0}, s{S_T0}, 14")
    e(f"s_lshl_b32 s{S_T1}, s{S_J}, 12")
    e(f"s_add_u32 s{S_T0}, s{S_T0}, s{S_T1}")
    e("s_waitcnt lgkmcnt(0)")
    for k in range(32):
        e(f"v_mul_f32 v{OACC+k}, v{OACC+k}, v{FA_}")
        e(f"v_fma_f32 v{OACC+k}, v{PO+k}, v{FB_}, v{OACC+k}")
    for k in range(16):
        e(f"v_cvt_pk_bf16_f32 v{PO+k}, v{OACC+2*k}, v{OACC+2*k+1}")
    for fr in range(4):
        e(f"buffer_store_dwordx4 {vr(PO+4*fr,4)}, v{V_L16}, s[{SRD_O}:{SRD_O+3}], s{S_T0} offen offset:{fr*1024}{NT_OST}")
    if g == 0:
        e("s_branch L_oproj")


def emit_k1(e):
    emit_k1_prologue(e)
    emit_k1_role(e, 0)
    e.label("L_k1_B")
    emit_k1_role(e, 1)
    emit_oproj(e)
    e.label("L_k1_end")
    e("s_endpgm")


PART_OFF = 32 << 20
NMIN = int(OPT.get("nmin", "3"))
SPIN = 0x40000


def emit_oproj(e):
    NSS = 5
    e.label("L_oproj")
    e.vm_issued = 0
    e.lg_issued = 0
    S_BR, S_KQ, S_MT, S_NT, S_MS, S_KH = 85, 86, 87, 13, 15, 6
    SRD_A, SRD_W, SRD_OUT, SRD_P = 44, 48, 52, 56
    SRD_F, SRD_D = 64, 68
    S_OOFF, S_WOFF, S_W4K, S_T0k, S_T1k, S_ORD, S_MASK, S_CNT, S_FL = 72, 73, 74, 77, 78, 80, 81, 82, 14
    S_T2k, S_ROT = 79, 75
    V_WD = 6
    V_WR = 10
    T0, T1, T2, T3, T4, T5 = range(26, 32)
    V_FA, V_ONE, V_L4, V_CN = 32, 33, 34, 35
    V_RW, V_RR, V_OA, V_FA2 = 36, 37, 38, 39
    FO = 80
    FA = 128
    ACC = 192
    e(f"s_lshr_b32 s{S_BR}, s{S_XCD}, 2")
    e(f"s_and_b32 s{S_KQ}, s{S_XCD}, 3")
    e(f"s_lshr_b32 s{S_MT}, s{S_CI}, 3")
    e(f"s_and_b32 s{S_NT}, s{S_CI}, 7")
    e(f"s_and_b32 s{S_MS}, s{S_W}, 3")
    e(f"s_lshr_b32 s{S_KH}, s{S_W}, 2")
    e(f"s_lshl_b32 s{S_FL}, s2, 8")
    e(f"v_lshlrev_b32 v{V_L4}, 2, v0")
    e(f"v_mov_b32 v{V_ONE}, 1")
    e(f"v_mov_b32 v{T0}, 0")
    e(f"s_cmp_lg_u32 s{S_W}, 0")
    e("s_cbranch_scc1 L_op_nocnt")
    e(f"buffer_load_dword v{V_CN}, v{T0}, s[{SRD_D}:{SRD_D+3}], 0 offen sc1")
    e.label("L_op_nocnt")
    for br, sh, sbp, dst in ((0, S_HA, S_BPA, S_T0k), (1, S_HB, S_BPB, S_T1k)):
        e(f"s_lshr_b32 s{dst}, s{sbp}, 1")
        e(f"s_lshl_b32 s{dst}, s{dst}, 6")
        e(f"s_lshr_b32 s{S_T2k}, s{sh}, 3")
        e(f"s_add_u32 s{dst}, s{dst}, s{S_T2k}")
        if br:
            e(f"s_add_u32 s{dst}, s{dst}, 4")
        e(f"s_lshl_b32 s{dst}, s{dst}, 8")
        e(f"s_and_b32 s{S_T2k}, s{sbp}, 1")
        e(f"s_lshl_b32 s{S_T2k}, s{S_T2k}, 5")
        e(f"s_add_u32 s{dst}, s{dst}, s{S_T2k}")
        e(f"s_and_b32 s{S_T2k}, s{sh}, 7")
        e(f"s_lshl_b32 s{S_T2k}, s{S_T2k}, 2")
        e(f"s_add_u32 s{dst}, s{dst}, s{S_T2k}")
    e(f"v_mov_b32 v{T1}, s{S_T0k}")
    e(f"v_mov_b32 v{T2}, s{S_T1k}")
    e(f"v_cmp_gt_u32 vcc, 8, v0")
    e(f"v_and_b32 v{T3}, 7, v0")
    e(f"v_lshlrev_b32 v{T3}, 11, v{T3}")
    e(f"v_cndmask_b32 v{V_FA}, v{T2}, v{T1}, vcc")
    e(f"v_add_u32 v{V_FA}, v{V_FA}, v{T3}")
    e(f"s_lshl_b32 s{S_T0k}, s{S_CI}, 3")
    e(f"s_lshl_b32 s{S_T1k}, s{S_BR}, 2")
    e(f"s_add_u32 s{S_T0k}, s{S_T0k}, s{S_T1k}")
    e(f"s_lshl_b32 s{S_T0k}, s{S_T0k}, 8")
    e(f"s_lshl_b32 s{S_T1k}, s{S_KQ}, 2")
    e(f"s_add_u32 s{S_T0k}, s{S_T0k}, s{S_T1k}")
    e(f"s_add_u32 s{S_T0k}, s{S_T0k}, 64")
    e(f"v_lshlrev_b32 v{V_FA2}, 8, v0")
    e(f"v_add_u32 v{V_FA2}, s{S_T0k}, v{V_FA2}")
    e(f"s_cmp_eq_u32 s{S_BR}, 1")
    e(f"s_cselect_b32 s{SRD_W}, s34, s24")
    e(f"s_cselect_b32 s{SRD_W+1}, s35, s25")
    e(f"s_and_b32 s{SRD_W+1}, s{SRD_W+1}, 0xffff")
    e(f"s_mov_b32 s{SRD_W+2}, {8<<20:#x}")
    e(f"s_mov_b32 s{SRD_W+3}, 0x20000")
    srd(e, SRD_A, 40, 41, 8 << 20)
    srd(e, SRD_OUT, 36, 37, 2 << 20)
    srd(e, SRD_P, 40, 41, 16 << 20, add=PART_OFF)
    e(f"s_lshl_b32 s{S_OOFF}, s{S_BR}, 22")
    e(f"s_lshl_b32 s{S_T0k}, s{S_MT}, 20")
    e(f"s_add_u32 s{S_OOFF}, s{S_OOFF}, s{S_T0k}")
    e(f"s_lshr_b32 s{S_T0k}, s{S_MS}, 1")
    e(f"s_lshl_b32 s{S_T0k}, s{S_T0k}, 19")
    e(f"s_add_u32 s{S_OOFF}, s{S_OOFF}, s{S_T0k}")
    e(f"s_lshl_b32 s{S_T0k}, s{S_KQ}, 17")
    e(f"s_add_u32 s{S_OOFF}, s{S_OOFF}, s{S_T0k}")
    e(f"s_and_b32 s{S_T0k}, s{S_MS}, 1")
    e(f"s_lshl_b32 s{S_T0k}, s{S_T0k}, 13")
    e(f"s_add_u32 s{S_OOFF}, s{S_OOFF}, s{S_T0k}")
    e(f"s_lshl_b32 s{S_T0k}, s{S_KH}, 12")
    e(f"s_add_u32 s{S_OOFF}, s{S_OOFF}, s{S_T0k}")
    e(f"s_lshl_b32 s{S_WOFF}, s{S_KQ}, 21")
    e(f"s_lshl_b32 s{S_T0k}, s{S_W}, 15")
    e(f"s_add_u32 s{S_WOFF}, s{S_WOFF}, s{S_T0k}")
    e(f"s_lshl_b32 s{S_T0k}, s{S_NT}, 8")
    e(f"s_add_u32 s{S_WOFF}, s{S_WOFF}, s{S_T0k}")
    e(f"s_lshl_b32 s{S_W4K}, s{S_W}, 12")
    e(f"s_lshl_b32 s{S_ROT}, s{S_MT}, 1")
    e(f"s_add_u32 s{S_ROT}, s{S_ROT}, s{S_NT}")
    e(f"v_lshrrev_b32 v{T0}, 4, v0")
    e(f"v_and_b32 v{T1}, 15, v0")
    e(f"v_lshlrev_b32 v{T2}, 2, v{T0}")
    e(f"v_xor_b32 v{T1}, v{T1}, v{T2}")
    e(f"v_lshlrev_b32 v{T1}, 4, v{T1}")
    e(f"v_lshlrev_b32 v{T2}, 11, v{T0}")
    e(f"v_add_u32 v{V_WD}, v{T1}, v{T2}")
    for q in range(1, 4):
        e(f"v_xor_b32 v{V_WD+q}, {16*q}, v{V_WD}")
        e(f"v_add_u32 v{V_WD+q}, {q*(8192-1024)}, v{V_WD+q}")
    e(f"v_lshrrev_b32 v{T3}, 5, v0")
    e(f"v_and_b32 v{T1}, 1, v{T0}")
    e(f"v_lshrrev_b32 v{T2}, 2, v0")
    e(f"v_and_b32 v{T2}, 3, v{T2}")
    e(f"v_and_b32 v{T4}, 1, v0")
    e(f"v_lshlrev_b32 v{T4}, 1, v{T4}")
    e(f"v_or_b32 v{T4}, v{T4}, v{T1}")
    e(f"v_lshlrev_b32 v{T4}, 4, v{T4}")
    e(f"v_lshrrev_b32 v{T5}, 1, v0")
    e(f"v_and_b32 v{T5}, 1, v{T5}")
    e(f"v_lshlrev_b32 v{T5}, 3, v{T5}")
    e(f"v_add_u32 v{T4}, v{T4}, v{T5}")
    e(f"v_lshlrev_b32 v{T5}, 6, v{T2}")
    e(f"v_add_u32 v{T4}, v{T4}, v{T5}")
    e(f"v_lshlrev_b32 v{T5}, 4, v{T3}")
    e(f"v_add_u32 v{T5}, v{T5}, v{T2}")
    e(f"v_lshlrev_b32 v{T5}, 8, v{T5}")
    e(f"v_add_u32 v{T4}, v{T4}, v{T5}")
    e(f"s_lshl_b32 s{S_T1k}, s{S_KH}, 14")
    e(f"v_add_u32 v{V_WR}, s{S_T1k}, v{T4}")
    for nt in range(4):
        for ee in range(2):
            for z in range(2):
                i = 4 * nt + 2 * ee + z
                if i:
                    e(f"v_xor_b32 v{V_WR+i}, {64*nt + 16*(2*ee+z) + (8*ee+4*z)*256}, v{V_WR}")
    e(f"s_lshl_b32 s{S_T0k}, s{S_W}, 13")
    e(f"v_add_u32 v{V_RW}, s{S_T0k}, v{V_L16}")
    e(f"s_xor_b32 s{S_T0k}, s{S_T0k}, {4*8192}")
    e(f"v_add_u32 v{V_RR}, s{S_T0k}, v{V_L16}")
    e(f"v_and_b32 v{V_OA}, 31, v0")
    e(f"v_lshlrev_b32 v{V_OA}, 12, v{V_OA}")
    e(f"v_lshlrev_b32 v{T4}, 5, v{T3}")
    e(f"v_add_u32 v{V_OA}, v{V_OA}, v{T4}")
    e(f"s_mov_b32 s{S_ORD}, 0")
    for i in range(8):
        e(f"s_add_u32 s{S_T0k}, s{S_ROT}, {i}")
        e(f"s_and_b32 s{S_T0k}, s{S_T0k}, 7")
        e(f"s_lshl_b32 s{S_T0k}, s{S_T0k}, {4*i}")
        e(f"s_or_b32 s{S_ORD}, s{S_ORD}, s{S_T0k}")
    e(f"s_cmp_lg_u32 s{S_W}, 0")
    e("s_cbranch_scc1 L_op_noep")
    e(f"buffer_load_dword v41, v{V_L4}, s[{SRD_F}:{SRD_F+3}], s{S_FL} offen sc1")
    e.label("L_op_noep")
    e("s_waitcnt vmcnt(0)")
    e("s_barrier")
    e(f"s_cmp_lg_u32 s{S_W}, 0")
    e("s_cbranch_scc1 L_op_w0done")
    e(f"s_mov_b32 s{S_CNT}, {SPIN}")
    e.label("L_op_cnt")
    e(f"v_readfirstlane_b32 s{S_T0k}, v{V_CN}")
    e(f"s_sub_u32 s{S_CNT}, s{S_CNT}, 1")
    e(f"s_and_b32 s{S_T0k}, s{S_T0k}, 255")
    e(f"s_cmp_eq_u32 s{S_T0k}, 0")
    e("s_cbranch_scc1 L_op_cntok")
    e(f"s_cmp_eq_u32 s{S_CNT}, 0")
    e("s_cbranch_scc1 L_op_cntok")
    e("s_sleep 16")
    e(f"v_mov_b32 v{T0}, 0")
    e(f"buffer_load_dword v{V_CN}, v{T0}, s[{SRD_D}:{SRD_D+3}], 0 offen sc1")
    e("s_waitcnt vmcnt(0)")
    e("s_branch L_op_cnt")
    e.label("L_op_cntok")
    e("s_mov_b64 exec, 0xffff")
    e(f"buffer_store_dword v{V_ONE}, v{V_FA}, s[{SRD_F}:{SRD_F+3}], 0 offen sc1")
    e("s_mov_b64 exec, -1")

    def poll(lab):
        e(f"buffer_load_dword v{T2}, v{V_L4}, s[{SRD_F}:{SRD_F+3}], s{S_FL} offen sc1")
        e("s_waitcnt vmcnt(0)")
        e(f"v_cmp_eq_u32 vcc, 1, v{T2}")
        e("s_nop 3")
        e(f"s_lshr_b32 s{S_T0k}, vcc_lo, 8")
        e(f"s_and_b32 s{S_T0k}, s{S_T0k}, vcc_lo")
        e(f"s_and_b32 s{S_T0k}, s{S_T0k}, 0xff")
        e(f"s_and_b32 s{S_MASK}, vcc_lo, 0xf0000")
        e(f"s_or_b32 s{S_MASK}, s{S_MASK}, s{S_T0k}")

    e(f"v_cmp_eq_u32 vcc, 1, v41")
    e("s_nop 3")
    e(f"s_lshr_b32 s{S_T0k}, vcc_lo, 8")
    e(f"s_and_b32 s{S_T0k}, s{S_T0k}, vcc_lo")
    e(f"s_and_b32 s{S_MASK}, s{S_T0k}, 0xff")
    e.label("L_op_w0done")

    wtok, otok = {}, {}

    def w_pieces(s):
        slot = (s % NSS) * 32768

        def p0():
            e(f"s_bfe_u32 s{S_T1k}, s{S_ORD}, {(4 << 16) | (4 * s):#x}")
            e(f"s_add_u32 m0, s{S_W4K}, {slot}")
            e(f"s_lshl_b32 s{S_T1k}, s{S_T1k}, 18")
            e(f"s_add_u32 s{S_T1k}, s{S_T1k}, s{S_WOFF}")
            e.vmem(f"buffer_load_dwordx4 v{V_WD}, s[{SRD_W}:{SRD_W+3}], s{S_T1k} offen{NT_WO} lds")
        ps = [p0]
        for q in range(1, 4):
            def pq(q=q):
                wtok[s] = e.vmem(f"buffer_load_dwordx4 v{V_WD+q}, s[{SRD_W}:{SRD_W+3}], s{S_T1k} offen offset:{q*1024}{NT_WO} lds")
            ps.append(pq)
        return ps

    def o_pieces(s):
        fo = FO + 16 * (s % 3)

        def p0():
            e(f"s_bfe_u32 s{S_T0k}, s{S_ORD}, {(4 << 16) | (4 * s):#x}")
            e(f"s_lshl_b32 s{S_T0k}, s{S_T0k}, 14")
            e(f"s_add_u32 s{S_T0k}, s{S_T0k}, s{S_OOFF}")
            e.vmem(f"buffer_load_dwordx4 {vr(fo,4)}, v{V_L16}, s[{SRD_A}:{SRD_A+3}], s{S_T0k} offen{NT_OLD}")
        ps = [p0]
        for q in range(1, 4):
            def pq(q=q):
                otok[s] = e.vmem(f"buffer_load_dwordx4 {vr(fo+4*q,4)}, v{V_L16}, s[{SRD_A}:{SRD_A+3}], s{S_T0k} offen offset:{q*1024}{NT_OLD}")
            ps.append(pq)
        return ps

    page = [0]

    def set_page(p):
        if p != page[0]:
            d = (p - page[0]) * 65536
            for i in range(16):
                e(f"v_add_u32 v{V_WR+i}, {d & 0xffffffff:#x}, v{V_WR+i}")
            page[0] = p

    rbuf = {}
    nb = [0]

    def reads(s, q):
        b = nb[0] % 3
        nb[0] += 1
        rbuf[(s, q)] = b
        fb = FA + 16 * b
        off = ((s % NSS) * 32768 & 0xffff) + (q >> 1) * 8192
        ee = q & 1
        t = None
        for nt in range(4):
            for z in range(2):
                t = e.lds(f"ds_read_b64_tr_b16 {vr(fb+4*nt+2*z,2)}, v{V_WR+4*nt+2*ee+z} offset:{off}")
        return t

    def mf(s, q, nt):
        fb = FA + 16 * rbuf[(s, q)]
        fo = FO + 16 * (s % 3)
        c = "0" if (s == 0 and q == 0) else vr(ACC + 16 * nt, 16)
        e(f"v_mfma_f32_32x32x16_bf16 {vr(ACC+16*nt,16)}, {vr(fb+4*nt,4)}, {vr(fo+4*q,4)}, {c}")

    def need(pos, lab):
        e(f"s_cmp_lg_u32 s{S_W}, 0")
        e(f"s_cbranch_scc1 {lab}r")
        e(f"s_mov_b32 s{S_CNT}, {SPIN}")
        e.label(f"{lab}c")
        e(f"s_bfe_u32 s{S_T2k}, s{S_ORD}, {(4 << 16) | (4 * pos):#x}")
        e(f"s_bitcmp1_b32 s{S_MASK}, s{S_T2k}")
        e(f"s_cbranch_scc1 {lab}r")
        e(f"s_sub_u32 s{S_CNT}, s{S_CNT}, 1")
        e(f"s_cmp_eq_u32 s{S_CNT}, 0")
        e(f"s_cbranch_scc1 {lab}r")
        poll(lab)
        e(f"s_branch {lab}c")
        e.label(f"{lab}r")

    NPW = int(OPT.get("npw", "2"))
    for sw in range(NPW):
        for p_ in w_pieces(sw):
            p_()
    need(0, "L_op_n0")
    need(1, "L_op_n1")
    e("s_barrier")
    stamp(e, 62, 40)
    for p_ in o_pieces(0) + o_pieces(1):
        p_()
    for sw in range(NPW, 4):
        for p_ in w_pieces(sw):
            p_()
    for s in range(8):
        e.comment(f"oproj step {s}")
        set_page(((s % NSS) * 32768) >> 16)
        if s + 2 < 8:
            e(f"s_cmp_lg_u32 s{S_W}, 0")
            e(f"s_cbranch_scc1 L_op_rdy{s}")
            e(f"s_mov_b32 s{S_CNT}, {SPIN}")
            e.label(f"L_op_chk{s}")
            e(f"s_bfe_u32 s{S_T2k}, s{S_ORD}, {(4 << 16) | (4 * (s + 2)):#x}")
            e(f"s_bitcmp1_b32 s{S_MASK}, s{S_T2k}")
            e(f"s_cbranch_scc1 L_op_rdy{s}")
            e(f"s_sub_u32 s{S_CNT}, s{S_CNT}, 1")
            e(f"s_cmp_eq_u32 s{S_CNT}, 0")
            e(f"s_cbranch_scc1 L_op_rdy{s}")
            poll(f"c{s}")
            e(f"s_branch L_op_chk{s}")
            e.label(f"L_op_rdy{s}")
        e.wait_vm(max(wtok[s], otok[s]))
        e("s_barrier")
        pcs = (o_pieces(s + 2) if s + 2 < 8 else []) + (w_pieces(s + 4) if s + 4 < 8 else [])
        pcs += [lambda: None] * (8 - len(pcs))
        rt = {}
        rt[0] = reads(s, 0)
        if s > 0:
            mf(s - 1, 3, 0)
            mf(s - 1, 3, 1)
        rt[1] = reads(s, 1)
        if s > 0:
            mf(s - 1, 3, 2)
            mf(s - 1, 3, 3)
        k = 0
        for q in range(3):
            e.wait_lds(rt[q])
            for nt in range(4):
                mf(s, q, nt)
                if nt == 0 and q + 2 < 4:
                    rt[q + 2] = reads(s, q + 2)
                elif nt > 0 and k < 8:
                    pcs[k]()
                    k += 1
        e.wait_lds(rt[3])
        if STAMP == 3:
            stamp(e, 1 + s, 40)
    for nt in range(4):
        mf(7, 3, nt)
    e("s_nop 15")
    e("s_nop 3")
    e("s_barrier")
    e(f"s_cmp_eq_u32 s{S_KH}, 1")
    e("s_cbranch_scc1 L_op_kh1")
    for k in range(8):
        e(f"ds_write_b128 v{V_RW}, {vr(ACC+32+4*k,4)} offset:{k*1024}")
    e("s_branch L_op_khd")
    e.label("L_op_kh1")
    for k in range(8):
        e(f"ds_write_b128 v{V_RW}, {vr(ACC+4*k,4)} offset:{k*1024}")
    e("s_waitcnt lgkmcnt(0)")
    for k in range(32):
        e(f"v_mov_b32 v{ACC+k}, v{ACC+32+k}")
    e.label("L_op_khd")
    e(f"s_lshl_b32 s{S_T2k}, s{S_BR}, 5")
    e(f"s_add_u32 s{S_T2k}, s{S_T2k}, s{S_CI}")
    e(f"s_lshl_b32 s{S_T2k}, s{S_T2k}, 18")
    e(f"s_lshl_b32 s{S_T0k}, s{S_MS}, 16")
    e(f"s_add_u32 s{S_T0k}, s{S_T0k}, s{S_T2k}")
    e(f"s_lshl_b32 s{S_T1k}, s{S_KQ}, 14")
    e(f"s_add_u32 s{S_T0k}, s{S_T0k}, s{S_T1k}")
    e(f"s_lshl_b32 s{S_T1k}, s{S_KH}, 13")
    e(f"s_add_u32 s{S_T0k}, s{S_T0k}, s{S_T1k}")
    e(f"s_add_u32 s{S_T1k}, s{S_T0k}, 4096")
    e("s_waitcnt lgkmcnt(0)")
    e("s_barrier")
    for k in range(8):
        e(f"ds_read_b128 {vr(FA+4*k,4)}, v{V_RR} offset:{k*1024}")
    for k in range(8):
        e(f"s_waitcnt lgkmcnt({7-k})")
        for r in range(4):
            e(f"v_add_f32 v{ACC+4*k+r}, v{ACC+4*k+r}, v{FA+4*k+r}")
        so = S_T0k if k < 4 else S_T1k
        e(f"buffer_store_dwordx4 {vr(ACC+4*k,4)}, v{V_L16}, s[{SRD_P}:{SRD_P+3}], s{so} offen offset:{(k&3)*1024} sc1")
    e(f"s_lshl_b32 s{S_T0k}, s{S_KQ}, 16")
    e(f"s_add_u32 s{S_T2k}, s{S_T2k}, s{S_T0k}")
    e(f"s_lshl_b32 s{S_T0k}, s{S_W}, 11")
    e(f"s_add_u32 s{S_T2k}, s{S_T2k}, s{S_T0k}")
    e(f"s_mov_b32 s{S_OOFF}, s{S_T2k}")
    e(f"s_lshl_b32 s{S_WOFF}, s{S_MT}, 19")
    e(f"s_lshl_b32 s{S_T0k}, s{S_KQ}, 17")
    e(f"s_add_u32 s{S_WOFF}, s{S_WOFF}, s{S_T0k}")
    e(f"s_lshl_b32 s{S_T0k}, s{S_BR}, 11")
    e(f"s_add_u32 s{S_WOFF}, s{S_WOFF}, s{S_T0k}")
    e(f"s_lshl_b32 s{S_T0k}, s{S_NT}, 8")
    e(f"s_add_u32 s{S_WOFF}, s{S_WOFF}, s{S_T0k}")
    e(f"s_lshr_b32 s{S_T0k}, s{S_W}, 1")
    e(f"s_lshl_b32 s{S_T0k}, s{S_T0k}, 6")
    e(f"s_add_u32 s{S_WOFF}, s{S_WOFF}, s{S_T0k}")
    e(f"s_and_b32 s{S_T0k}, s{S_W}, 1")
    e(f"s_lshl_b32 s{S_T0k}, s{S_T0k}, 4")
    e(f"s_add_u32 s{S_WOFF}, s{S_WOFF}, s{S_T0k}")
    e("s_waitcnt vmcnt(0)")
    e("s_barrier")
    stamp(e, 61, 40)
    e(f"s_cmp_lg_u32 s{S_W}, 0")
    e("s_cbranch_scc1 L_op_fin")
    e("s_mov_b64 exec, 0xf")
    e(f"buffer_store_dword v{V_ONE}, v{V_FA2}, s[{SRD_F}:{SRD_F+3}], 0 offen sc1")
    e("s_mov_b64 exec, -1")
    e(f"s_mov_b32 s{S_CNT}, {SPIN}")
    e.label("L_op_poll2")
    poll("p2")
    e(f"s_lshr_b32 s{S_T0k}, s{S_MASK}, 16")
    e(f"s_cmp_eq_u32 s{S_T0k}, 15")
    e("s_cbranch_scc1 L_op_fin")
    e(f"s_sub_u32 s{S_CNT}, s{S_CNT}, 1")
    e(f"s_cmp_eq_u32 s{S_CNT}, 0")
    e("s_cbranch_scc1 L_op_fin")
    e("s_sleep 2")
    e("s_branch L_op_poll2")
    e.label("L_op_fin")
    e("s_barrier")
    for src in range(4):
        for q in range(2):
            e(f"buffer_load_dwordx4 {vr(FA+8*src+4*q,4)}, v{V_L16}, s[{SRD_P}:{SRD_P+3}], s{S_OOFF} offen offset:{q*1024} sc1")
        if src < 3:
            e(f"s_add_u32 s{S_OOFF}, s{S_OOFF}, 16384")
    e("s_waitcnt vmcnt(0)")
    for r in range(8):
        e(f"v_add_f32 v{FA+r}, v{FA+r}, v{FA+8+r}")
        e(f"v_add_f32 v{FA+16+r}, v{FA+16+r}, v{FA+24+r}")
    for r in range(8):
        e(f"v_add_f32 v{FA+r}, v{FA+r}, v{FA+16+r}")
    for k in range(4):
        e(f"v_cvt_pk_bf16_f32 v{FA+32+k}, v{FA+2*k}, v{FA+2*k+1}")
    e(f"buffer_store_dwordx4 {vr(FA+32,4)}, v{V_OA}, s[{SRD_OUT}:{SRD_OUT+3}], s{S_WOFF} offen")
    if STAMP:
        e("s_waitcnt vmcnt(0)")
    stamp(e, 63, 40)


e = Em()
emit_k1(e)
txt = HEADER + e.text() + '.section .rodata,"a"\n.p2align 6\n' + kernel_desc("concat_heads__gqa_block_cached__mha_block_cached__near_ridge_kernel")
open(OUT, "w").write(txt)
print("wrote", OUT, len(txt), "bytes")
```

```python
import sys, math, struct
sys.path.insert(0, "tools")
from asmlib import Em, vr, sr, kernel_desc

OUT = sys.argv[1] if len(sys.argv) > 1 else "concat_heads__gqa_block_cached__mha_block_cached__near_ridge.s"
OPT = dict(a.split("=") for a in sys.argv[2:])


def pol(name, dflt):
    v = OPT.get(name, dflt).strip()
    return "" if v in ("", "0") else " " + v.replace("+", " ")


NT_KVB = pol("nt_kvb", "nt")
NT_KVA = pol("nt_kva", "0")
NT_W = pol("nt_w", "0")
NT_X = pol("nt_x", "0")
NT_WO = pol("nt_wo", "0")
NT_OST = pol("nt_ost", "sc1")
NT_OLD = pol("nt_old", "sc1")
STAMP = int(OPT.get("stamp", "0"))
ONLY = OPT.get("only", "")
GRPBIT = int(OPT.get("grpbit", "4"))
FT = int(OPT.get("ft", "0"))
FT2 = int(OPT.get("ft2", "0"))
FT2O = int(OPT.get("ft2o", "0"))
KPRE_STEP = int(OPT.get("kpre_step", "2"))
SRD_ST = 88


def srd(e, dst, lo, hi, size, add=0):
    if add:
        e(f"s_add_u32 s{dst}, s{lo}, {add:#x}")
        e(f"s_addc_u32 s{dst+1}, s{hi}, 0")
        e(f"s_and_b32 s{dst+1}, s{dst+1}, 0xffff")
    else:
        e(f"s_mov_b32 s{dst}, s{lo}")
        e(f"s_and_b32 s{dst+1}, s{hi}, 0xffff")
    e(f"s_mov_b32 s{dst+2}, {size:#x}")
    e(f"s_mov_b32 s{dst+3}, 0x20000")


def stamp_init(e, wsreg, wavereg, base):
    if not STAMP: return
    if STAMP == 9:
        srd(e, SRD_ST, 38, 39, 256)
        e(f"s_cmp_eq_u32 s2, 101")
        e(f"s_cselect_b32 s92, 32, 0")
        e(f"s_cselect_b32 s93, 0, s2")
        e(f"s_add_u32 s93, s93, s{wavereg}")
        e(f"s_cmp_eq_u32 s93, 0")
        e(f"s_cselect_b32 s{SRD_ST+2}, 256, 0")
        return
    srd(e, SRD_ST, wsreg, wsreg + 1, 1 << 20, add=base)
    e(f"s_lshl_b32 s92, s2, 3")
    e(f"s_add_u32 s92, s92, s{wavereg}")
    e(f"s_lshl_b32 s92, s92, 8")


def stamp(e, idx, vt=250):
    if not STAMP: return
    if STAMP == 9:
        idx = {0: 1, 33: 2, 60: 3, 61: 4, 62: 5, 63: 6}[idx]
    e("s_memrealtime s[94:95]")
    e("s_waitcnt lgkmcnt(0)")
    e(f"v_mov_b32 v{vt}, s94")
    e(f"v_mov_b32 v{vt+1}, 0")
    e.vmem(f"buffer_store_dword v{vt}, v{vt+1}, s[{SRD_ST}:{SRD_ST+3}], s92 offen offset:{idx*4}")


def f32bits(x):
    return struct.unpack("<I", struct.pack("<f", x))[0]


CSCALE = (128 ** -0.5) * math.log2(math.e)

HEADER = """; Kernarg layout (104 bytes, ptrs only, base s[0:1]):
; @launch grid=(256,1,1) block=(512,1,1) lds=163840
.amdgcn_target "amdgcn-amd-amdhsa--gfx950"
.text
"""

S_W, S_J, S_I, S_XCD, S_CI = 3, 4, 5, 7, 8
S_HA, S_BPA, S_HB, S_BPB = 9, 10, 11, 12
SRD_X, SRD_WQ, SRD_K, SRD_V, SRD_O = 44, 48, 52, 56, 60
S_WQOFF, S_XOFF, S_KVOFF, S_RING, S_C, S_T0, S_T1, S_T2 = 72, 73, 74, 75, 76, 77, 78, 79
S_WQK, S_XK, S_KROT, S_WQM, S_XM = 80, 81, 82, 83, 84
V_L16 = 5
V_KVD = 6
V_KR = 10
V_VR = 18
V_T = 26
V_Q = 32
V_F = 64
V_G = 96
V_S = 128
V_WQR = 96
V_XR = 100
V_QXW = 108
V_WQD = 112
V_XD = 116
V_TWQ, V_TX, V_TD = 120, 121, 122
V_TKV = 31
QF = 128
QACC = 224

NR = 4
KPRE1 = int(OPT.get("kpre1", "6"))
FTKV = int(OPT.get("ftkv", "0"))
PACE = int(OPT.get("pace", "1"))
AROT = int(OPT.get("arot", "1"))
FTA = int(OPT.get("fta", "0"))
STAG = int(OPT.get("stag", "1"))
RST = int(OPT.get("rst", "3"))
RST_STEPS = [int(x) for x in OPT.get("rst_steps", "18,22,26").split(",")]
RST_REG = [128, 192, 224]
FLAG_OFF = 8 << 20


def wq_piece(slot):
    return 98304 + 16384 * slot


def x_piece(slot):
    return 16384 + 24576 * slot


XCH = 98304


def emit_k1_prologue(e):
    e.raw(".globl concat_heads__gqa_block_cached__mha_block_cached__near_ridge_kernel")
    e.raw(".p2align 8")
    e.raw(".type concat_heads__gqa_block_cached__mha_block_cached__near_ridge_kernel,@function")
    e.label("concat_heads__gqa_block_cached__mha_block_cached__near_ridge_kernel")
    e("s_cmp_ge_u32 s2, 256")
    e("s_cbranch_scc1 L_k1_end")
    e("s_load_dwordx16 s[16:31], s[0:1], 0")
    e("s_load_dwordx8 s[32:39], s[0:1], 64")
    e("s_load_dwordx2 s[40:41], s[0:1], 96")
    e("v_lshrrev_b32 v1, 6, v0")
    e("v_and_b32 v0, 63, v0")
    e("s_nop 0")
    e(f"v_readfirstlane_b32 s{S_W}, v1")
    e(f"s_and_b32 s{S_XCD}, s2, 7")
    e(f"s_lshr_b32 s{S_CI}, s2, 3")
    e(f"s_and_b32 s{S_J}, s{S_W}, 3")
    e(f"s_lshr_b32 s{S_I}, s{S_W}, 2")
    e(f"s_mov_b32 s{S_C}, {f32bits(CSCALE):#x}")
    e(f"s_lshl_b32 s{S_WQM}, s{S_J}, 12")
    e(f"s_lshl_b32 s{S_XM}, s{S_J}, 11")
    e(f"s_lshr_b32 s{S_HA}, s{S_XCD}, 1")
    e(f"s_lshl_b32 s{S_HA}, s{S_HA}, 3")
    e(f"s_and_b32 s{S_T0}, s{S_CI}, 7")
    e(f"s_add_u32 s{S_HA}, s{S_HA}, s{S_T0}")
    e(f"s_and_b32 s{S_BPA}, s{S_XCD}, 1")
    e(f"s_lshl_b32 s{S_BPA}, s{S_BPA}, 2")
    e(f"s_lshr_b32 s{S_T0}, s{S_CI}, 3")
    e(f"s_add_u32 s{S_BPA}, s{S_BPA}, s{S_T0}")
    e(f"s_lshl_b32 s{S_HB}, s{S_XCD}, 2")
    e(f"s_and_b32 s{S_T0}, s{S_CI}, 3")
    e(f"s_add_u32 s{S_HB}, s{S_HB}, s{S_T0}")
    e(f"s_lshr_b32 s{S_BPB}, s{S_CI}, 2")
    T0, T1, T2, T3, T4, T5 = 64, 65, 66, 67, 68, 69
    e(f"v_lshlrev_b32 v{V_L16}, 4, v0")
    e(f"v_lshrrev_b32 v{T0}, 4, v0")
    e(f"v_and_b32 v{T1}, 15, v0")
    e(f"v_lshlrev_b32 v{T2}, 2, v{T0}")
    e(f"v_xor_b32 v{T1}, v{T1}, v{T2}")
    e(f"v_lshlrev_b32 v{T1}, 4, v{T1}")
    e(f"v_lshlrev_b32 v{T2}, 8, v{T0}")
    e(f"v_add_u32 v{V_KVD}, v{T1}, v{T2}")
    for n in range(1, 4):
        e(f"v_xor_b32 v{V_KVD+n}, {16*n}, v{V_KVD}")
    e(f"v_lshlrev_b32 v{T2}, 13, v{T0}")
    e(f"v_add_u32 v{V_WQD}, v{T1}, v{T2}")
    for q in range(1, 4):
        e(f"v_xor_b32 v{V_WQD+q}, {16*q}, v{V_WQD}")
        e(f"v_add_u32 v{V_WQD+q}, {q*(32768-1024)}, v{V_WQD+q}")
    e(f"v_lshrrev_b32 v{T2}, 3, v0")
    e(f"v_lshlrev_b32 v{T2}, 11, v{T2}")
    e(f"v_and_b32 v{T3}, 7, v0")
    e(f"v_xor_b32 v{T3}, v{T3}, v{T0}")
    e(f"v_lshlrev_b32 v{T3}, 4, v{T3}")
    e(f"v_add_u32 v{V_XD}, v{T2}, v{T3}")
    e(f"v_xor_b32 v{V_XD+1}, 64, v{V_XD}")
    e(f"v_add_u32 v{V_XD+1}, {8*2048-1024}, v{V_XD+1}")
    e(f"v_and_b32 v{T2}, 31, v0")
    e(f"v_lshrrev_b32 v{T3}, 5, v0")
    e(f"v_lshrrev_b32 v{T4}, 1, v{T2}")
    e(f"v_and_b32 v{T4}, 7, v{T4}")
    e(f"v_xor_b32 v{T4}, v{T4}, v{T3}")
    e(f"v_lshlrev_b32 v{T4}, 4, v{T4}")
    e(f"v_lshlrev_b32 v{T5}, 7, v{T2}")
    e(f"v_add_u32 v{T4}, v{T4}, v{T5}")
    e(f"v_mov_b32 v{V_XR}, v{T4}")
    for s in range(1, 4):
        e(f"v_xor_b32 v{V_XR+s}, {32*s}, v{V_XR}")
    for s in range(4):
        e(f"v_add_u32 v{V_XR+4+s}, 65536, v{V_XR+s}")
    e(f"v_and_b32 v{T4}, 3, v{T2}")
    e(f"v_lshlrev_b32 v{T4}, 2, v{T4}")
    e(f"v_lshrrev_b32 v{T5}, 2, v{T2}")
    e(f"v_and_b32 v{T5}, 3, v{T5}")
    e(f"v_or_b32 v{T4}, v{T4}, v{T5}")
    e(f"v_xor_b32 v{T4}, v{T4}, v{T3}")
    e(f"v_lshlrev_b32 v{T4}, 4, v{T4}")
    e(f"v_lshlrev_b32 v{T5}, 8, v{T2}")
    e(f"v_add_u32 v{V_KR}, v{T4}, v{T5}")
    for s in range(1, 8):
        e(f"v_xor_b32 v{V_KR+s}, {32*s}, v{V_KR}")
    e(f"v_and_b32 v{T1}, 1, v{T0}")
    e(f"v_lshrrev_b32 v{T2}, 2, v0")
    e(f"v_and_b32 v{T2}, 3, v{T2}")
    e(f"v_and_b32 v{T4}, 1, v0")
    e(f"v_lshrrev_b32 v{T5}, 1, v0")
    e(f"v_and_b32 v{T5}, 1, v{T5}")
    e(f"v_lshlrev_b32 v{T5}, 3, v{T5}")
    e(f"v_lshlrev_b32 v{V_VR+2}, 6, v{T2}")
    e(f"v_add_u32 v{T5}, v{T5}, v{V_VR+2}")
    e(f"v_lshlrev_b32 v1, 1, v{T4}")
    e(f"v_or_b32 v1, v1, v{T1}")
    e(f"v_xor_b32 v1, v1, v{T3}")
    e(f"v_lshlrev_b32 v1, 4, v1")
    e(f"v_add_u32 v1, v1, v{T5}")
    e(f"v_lshlrev_b32 v{V_VR+1}, 2, v{T3}")
    e(f"v_add_u32 v{V_VR+1}, v{V_VR+1}, v{T2}")
    e(f"v_lshlrev_b32 v{V_VR+1}, 8, v{V_VR+1}")
    e(f"v_add_u32 v{V_VR}, v1, v{V_VR+1}")
    for dt in range(4):
        for z in range(2):
            if dt == 0 and z == 0:
                continue
            e(f"v_xor_b32 v{V_VR+2*dt+z}, {64*dt + 32*z + 2048*z}, v{V_VR}")
    e(f"v_lshlrev_b32 v1, 1, v{T1}")
    e(f"v_or_b32 v1, v1, v{T4}")
    e(f"v_lshlrev_b32 v{V_WQR+1}, 1, v{T3}")
    e(f"v_xor_b32 v1, v1, v{V_WQR+1}")
    e(f"v_lshlrev_b32 v1, 4, v1")
    e(f"v_add_u32 v1, v1, v{T5}")
    e(f"v_lshlrev_b32 v{V_WQR+1}, 3, v{T3}")
    e(f"v_add_u32 v{V_WQR+1}, v{V_WQR+1}, v{T2}")
    e(f"v_lshlrev_b32 v{V_WQR+1}, 8, v{V_WQR+1}")
    e(f"v_add_u32 v1, v1, v{V_WQR+1}")
    e(f"s_lshl_b32 s{S_T0}, s{S_J}, 6")
    e(f"v_xor_b32 v1, s{S_T0}, v1")
    e(f"v_add_u32 v{V_WQR}, 65536, v1")
    e(f"v_xor_b32 v{V_WQR+1}, {16+1024}, v{V_WQR}")
    e(f"v_add_u32 v{V_WQR+2}, 65536, v{V_WQR}")
    e(f"v_add_u32 v{V_WQR+3}, 65536, v{V_WQR+1}")
    e(f"s_lshl_b32 s{S_T0}, s{S_I}, 14")
    e(f"s_add_u32 s{S_T0}, s{S_T0}, s{S_XM}")
    e(f"s_add_u32 s{S_T0}, s{S_T0}, {XCH}")
    e(f"v_add_u32 v{V_QXW}, s{S_T0}, v{V_L16}")
    e(f"v_and_b32 v1, 15, v0")
    e(f"v_lshrrev_b32 v{V_TWQ}, 1, v1")
    e(f"v_lshlrev_b32 v{V_TWQ}, 13, v{V_TWQ}")
    e(f"v_and_b32 v1, 1, v1")
    e(f"v_lshlrev_b32 v1, 7, v1")
    e(f"v_add_u32 v{V_TWQ}, v{V_TWQ}, v1")
    e(f"v_and_b32 v{V_TX}, 7, v0")
    e(f"v_lshlrev_b32 v{V_TX}, 11, v{V_TX}")
    e(f"v_lshlrev_b32 v{V_TKV}, 7, v0")
    e("s_waitcnt lgkmcnt(0)")
    stamp_init(e, 40, S_W, 16 << 20)
    srd(e, 64, 40, 41, 65536, add=FLAG_OFF)
    srd(e, 68, 38, 39, 256)
    e(f"s_cmp_lg_u32 s{S_W}, 7")
    e("s_cbranch_scc1 L_k1_noflag")
    e("s_lshl_b32 s14, s2, 8")
    e("v_mov_b32 v1, 0")
    e("v_lshlrev_b32 v2, 2, v0")
    e("buffer_store_dword v1, v2, s[64:67], s14 offen sc1")
    e("v_mov_b32 v2, 1")
    e("s_waitcnt vmcnt(0)")
    e("s_mov_b64 exec, 1")
    e("buffer_atomic_add v2, v1, s[68:71], 0 offen")
    e("s_mov_b64 exec, -1")
    e.label("L_k1_noflag")
    e(f"s_cmp_ge_u32 s{S_W}, 4")
    e("s_cbranch_scc1 L_k1_B")


def emit_k1_role(e, g):
    e.vm_issued = 0
    e.lg_issued = 0
    nslot = 3 if g == 1 else 2
    wstride = 24576 if g == 1 else 16384
    rbase = 0 if g == 1 else 98304
    SH, SBP = (S_HA, S_BPA) if g == 0 else (S_HB, S_BPB)
    kv_tok, wq_tok, x_tok = {}, {}, {}

    def ring_setup(br, adv=0):
        sh, sbp = (S_HA, S_BPA) if br == 0 else (S_HB, S_BPB)
        px, pw = (16, 22) if br == 0 else (26, 32)
        srd(e, SRD_X, px, px + 1, 1 << 20)
        srd(e, SRD_WQ, pw, pw + 1, 8 << 20)
        e(f"s_lshl_b32 s{S_XOFF}, s{sbp}, 17")
        e(f"s_lshl_b32 s{S_T0}, s{S_J}, 15")
        e(f"s_add_u32 s{S_XOFF}, s{S_XOFF}, s{S_T0}")
        e(f"s_lshl_b32 s{S_WQOFF}, s{sh}, 8")
        e(f"s_lshl_b32 s{S_T0}, s{S_J}, 17")
        e(f"s_add_u32 s{S_WQOFF}, s{S_WQOFF}, s{S_T0}")
        if br == 1:
            e(f"s_lshl_b32 s{S_T0}, s{sbp}, 1")
            e(f"s_and_b32 s{S_T1}, s{S_CI}, 3")
            e(f"s_lshl_b32 s{S_T1}, s{S_T1}, 2")
        else:
            e(f"s_lshr_b32 s{S_T0}, s{S_CI}, 3")
            e(f"s_lshl_b32 s{S_T0}, s{S_T0}, 2")
            e(f"s_and_b32 s{S_T1}, s{S_CI}, 7")
            e(f"s_lshl_b32 s{S_T1}, s{S_T1}, 1")
        e(f"s_add_u32 s{S_T0}, s{S_T0}, s{S_T1}")
        if adv:
            e(f"s_add_u32 s{S_T0}, s{S_T0}, {adv}")
        e(f"s_and_b32 s{S_T0}, s{S_T0}, 15")
        e(f"s_lshl_b32 s{S_WQK}, s{S_T0}, 19")
        e(f"s_lshl_b32 s{S_XK}, s{S_T0}, 7")

    def issue_chunk(c):
        if c == 16:
            ring_setup(0)
        e(f"s_add_u32 m0, s{S_XM}, {x_piece(c % NR)}")
        e(f"s_add_u32 s{S_T0}, s{S_XOFF}, s{S_XK}")
        e.vmem(f"buffer_load_dwordx4 v{V_XD}, s[{SRD_X}:{SRD_X+3}], s{S_T0} offen{NT_X} lds")
        e.vmem(f"buffer_load_dwordx4 v{V_XD+1}, s[{SRD_X}:{SRD_X+3}], s{S_T0} offen offset:1024{NT_X} lds")
        e(f"s_add_u32 m0, s{S_WQM}, {wq_piece(c % NR)}")
        e(f"s_add_u32 s{S_T0}, s{S_WQOFF}, s{S_WQK}")
        for q in range(4):
            wq_tok[c] = e.vmem(f"buffer_load_dwordx4 v{V_WQD+q}, s[{SRD_WQ}:{SRD_WQ+3}], s{S_T0} offen offset:{q*1024}{NT_W} lds")
        e(f"s_add_u32 s{S_XK}, s{S_XK}, 128")
        e(f"s_and_b32 s{S_XK}, s{S_XK}, 2047")
        e(f"s_add_u32 s{S_WQK}, s{S_WQK}, 0x80000")
        e(f"s_and_b32 s{S_WQK}, s{S_WQK}, 0x7fffff")

    def kv_setup():
        pk, pv = (18, 20) if g == 0 else (28, 30)
        kvsize = (8 << 20) if g == 0 else (64 << 20)
        srd(e, SRD_K, pk, pk + 1, kvsize)
        srd(e, SRD_V, pv, pv + 1, kvsize)
        srd(e, SRD_O, 40, 41, 4 << 20, add=g * (4 << 20))
        e(f"s_lshl_b32 s{S_T0}, s{SBP}, 1")
        e(f"s_lshr_b32 s{S_T1}, s{S_J}, 1")
        e(f"s_add_u32 s{S_T0}, s{S_T0}, s{S_T1}")
        if g == 0:
            e(f"s_lshl_b32 s{S_T1}, s{S_T0}, 2")
            e(f"s_lshr_b32 s{S_T2}, s{SH}, 3")
        else:
            e(f"s_lshl_b32 s{S_T1}, s{S_T0}, 5")
            e(f"s_mov_b32 s{S_T2}, s{SH}")
        e(f"s_add_u32 s{S_T1}, s{S_T1}, s{S_T2}")
        e(f"s_lshl_b32 s{S_KVOFF}, s{S_T1}, 17")
        e(f"s_and_b32 s{S_T1}, s{S_J}, 1")
        e(f"s_lshl_b32 s{S_T1}, s{S_T1}, 16")
        e(f"s_add_u32 s{S_KVOFF}, s{S_KVOFF}, s{S_T1}")
        if g == 1:
            e(f"s_add_u32 s{S_KROT}, s{SH}, s{S_T0}")
        elif AROT:
            e(f"s_mov_b32 s{S_KROT}, s{SH}")
        else:
            e(f"s_mov_b32 s{S_KROT}, s{S_T0}")
        e(f"s_and_b32 s{S_KROT}, s{S_KROT}, 7")
        e(f"s_lshl_b32 s{S_KROT}, s{S_KROT}, 13")
        e(f"s_mul_i32 s{S_RING}, s{S_J}, {wstride}")
        if rbase:
            e(f"s_add_u32 s{S_RING}, s{S_RING}, {rbase}")
        for i in range(8):
            e(f"v_add_u32 v{V_KR+i}, s{S_RING}, v{V_KR+i}")
            e(f"v_add_u32 v{V_VR+i}, s{S_RING}, v{V_VR+i}")

    def issue_kv(n):
        nt_kv = NT_KVB if g == 1 else NT_KVA
        srd_ = SRD_K if n < 8 else SRD_V
        t = n & 7
        slot = n % nslot
        fta = FTA and g == 0 and t == 0
        if fta:
            nt_kv = " nt"
        e(f"s_add_u32 s{S_T0}, s{S_KROT}, {t*8192}")
        e(f"s_and_b32 s{S_T0}, s{S_T0}, 0xffff")
        e(f"s_add_u32 s{S_T0}, s{S_T0}, s{S_KVOFF}")
        for half in range(2):
            e(f"s_add_u32 m0, s{S_RING}, {slot*8192 + half*4096}")
            if half:
                e(f"s_add_u32 s{S_T0}, s{S_T0}, 4096")
            else:
                e("s_nop 0")
            for q in range(4):
                tok = e.vmem(f"buffer_load_dwordx4 v{V_KVD+q}, s[{srd_}:{srd_+3}], s{S_T0} offen offset:{q*1024}{nt_kv} lds")
        kv_tok[n] = tok
        if fta:
            e(f"s_sub_u32 s{S_T0}, s{S_T0}, 4096")
            e.vmem(f"buffer_load_dword v1, v{V_TKV}, s[{srd_}:{srd_+3}], s{S_T0} offen")

    st_tok = {}

    def stage_load(k):
        t = 2 + k
        rb = RST_REG[k]
        e(f"s_add_u32 s{S_T0}, s{S_KROT}, {t*8192}")
        e(f"s_and_b32 s{S_T0}, s{S_T0}, 0xffff")
        e(f"s_add_u32 s{S_T0}, s{S_T0}, s{S_KVOFF}")
        for half in range(2):
            if half:
                e(f"s_add_u32 s{S_T0}, s{S_T0}, 4096")
            for q in range(4):
                st_tok[k] = e.vmem(f"buffer_load_dwordx4 {vr(rb+16*half+4*q,4)}, v{V_KVD+q}, s[{SRD_K}:{SRD_K+3}], s{S_T0} offen offset:{q*1024}{NT_KVB}")

    def stage_flush(k):
        t = 2 + k
        rb = RST_REG[k]
        e.wait_vm(st_tok[k])
        e(f"v_add_u32 v1, s{S_RING}, v{V_L16}")
        for i in range(8):
            e.lds(f"ds_write_b128 v1, {vr(rb+4*i,4)} offset:{(t % nslot)*8192 + i*1024}")
        kv_tok[t] = st_tok[k]

    def touch_kva():
        e(f"s_add_u32 s{S_T0}, s{S_KROT}, s{S_KVOFF}")
        for srd_ in (SRD_K, SRD_V):
            if FTKV == 1:
                e.vmem(f"buffer_load_dword v{V_TD}, v{V_TKV}, s[{srd_}:{srd_+3}], s{S_T0} offen nt")
            e.vmem(f"buffer_load_dword v{V_TD}, v{V_TKV}, s[{srd_}:{srd_+3}], s{S_T0} offen")

    def reads_ks(c, ks):
        fb = QF + 48 * (c & 1) + 12 * ks
        slot = c % NR
        off = wq_piece(slot) + ks * 4096
        for z in range(2):
            e.lds(f"ds_read_b64_tr_b16 {vr(fb+2*z,2)}, v{V_WQR+2*((off>>16)-1)+z} offset:{off & 0xffff}")
        for it in range(2):
            off = x_piece(slot) + it * 4096
            e.lds(f"ds_read_b128 {vr(fb+4+4*it,4)}, v{V_XR+4*(off>>16)+ks} offset:{off & 0xffff}")

    def mfma_ks(c, ks, its=(0, 1)):
        fb = QF + 48 * (c & 1) + 12 * ks
        for it in its:
            acc = QACC + 16 * it
            cc = "0" if ((c & 15) == 0 and ks == 0) else vr(acc, 16)
            e(f"v_mfma_f32_32x32x16_bf16 {vr(acc,16)}, {vr(fb,4)}, {vr(fb+4+4*it,4)}, {cc}")

    def mine(c):
        return 0 <= c < 32 and ((c < 16) == (g == 1))

    def loads(c):
        return c < 32 and ((c <= 18) == (g == 0))

    stamp(e, 0, 124)
    if g == 0:
        ring_setup(1)
        for c in range(NR - 1):
            issue_chunk(c)
    else:
        ring_setup(0, adv=3)
    kv_setup()
    for s in range(32):
        e.comment(f"qproj step {s}")
        if loads(s):
            e.wait_vm(wq_tok[s])
        e("s_barrier")
        for i in range(8):
            if mine(s - 1):
                mfma_ks(s - 1, i >> 1, (i & 1,))
            if mine(s) and i < 4:
                reads_ks(s, i)
        if loads(s + NR - 1):
            issue_chunk(s + NR - 1)
        if s == 8 and OPT.get("qonly"):
            stamp(e, 60, 124)
        if s == 15 and OPT.get("qonly"):
            stamp(e, 61, 124)
        if s == 22 and OPT.get("qonly"):
            stamp(e, 62, 124)
        if s == 31 and OPT.get("qonly"):
            stamp(e, 63, 124)
            stamp(e, 33, 124)
            e("s_endpgm")
        if g == 1 and s == KPRE_STEP and not OPT.get("qonly"):
            issue_kv(0)
        if g == 1 and s == KPRE1 and not OPT.get("qonly"):
            issue_kv(1)
        if g == 1 and RST and s == 17:
            for k in range(16):
                e(f"v_cvt_pk_bf16_f32 v{V_F+k}, v{QACC+2*k}, v{QACC+2*k+1}")
        if g == 1 and s in RST_STEPS[:RST]:
            stage_load(RST_STEPS.index(s))
        if mine(s):
            e("s_waitcnt lgkmcnt(0)")
        if STAMP == 2:
            stamp(e, 1 + s, 124)
    if mine(31):
        for ks in range(4):
            mfma_ks(31, ks)
    if not (g == 1 and RST):
        e("s_nop 15")
        e("s_nop 3")
        for k in range(16):
            e(f"v_cvt_pk_bf16_f32 v{V_F+k}, v{QACC+2*k}, v{QACC+2*k+1}")
    for it in range(2):
        for ss in range(2):
            e(f"ds_write_b128 v{V_QXW}, {vr(V_F+8*it+4*ss,4)} offset:{it*8192+ss*1024}")
    e(f"s_lshr_b32 s{S_T1}, s{S_J}, 1")
    e(f"s_lshl_b32 s{S_T1}, s{S_T1}, 13")
    e(f"s_add_u32 s{S_T1}, s{S_T1}, {XCH + g*16384}")
    e(f"v_add_u32 v{V_T}, s{S_T1}, v{V_L16}")
    e("s_waitcnt lgkmcnt(0)")
    e("s_barrier")
    for s in range(8):
        e(f"ds_read_b128 {vr(V_Q+4*s,4)}, v{V_T} offset:{s*1024}")
    e("s_waitcnt lgkmcnt(0)")
    e("s_barrier")
    def refill(n):
        if g == 1 and 2 <= n < 2 + RST:
            stage_flush(n - 2)
        else:
            issue_kv(n)

    for n in range(2 if (g == 1 and not OPT.get("qonly")) else 0, nslot):
        refill(n)
    stamp(e, 33, V_T + 2)

    VMX = V_T
    VM, VMC, VL, VE, VP = V_Q, V_Q + 1, V_Q + 2, V_Q + 8, V_Q + 16

    def max_tile(t):
        b = V_S + 16 * t
        for ch in range(2):
            bb = b + 8 * ch
            if t == 0:
                e(f"v_max3_f32 v{VMX+ch}, v{bb}, v{bb+1}, v{bb+2}")
                e(f"v_max3_f32 v{VMX+ch}, v{VMX+ch}, v{bb+3}, v{bb+4}")
                e(f"v_max3_f32 v{VMX+ch}, v{VMX+ch}, v{bb+5}, v{bb+6}")
                e(f"v_max_f32 v{VMX+ch}, v{VMX+ch}, v{bb+7}")
            else:
                for k in range(4):
                    e(f"v_max3_f32 v{VMX+ch}, v{VMX+ch}, v{bb+2*k}, v{bb+2*k+1}")

    def exp_tile(t):
        p = VP + 8 * (t & 1)
        for hf in range(2):
            b = V_S + 16 * t + 8 * hf
            for i in range(8):
                e(f"v_fma_f32 v{VE+i}, v{b+i}, s{S_C}, -v{VMC}")
            for i in range(8):
                e(f"v_exp_f32 v{VE+i}, v{VE+i}")
            e("s_nop 0")
            for i in range(8):
                e(f"v_add_f32 v{VL+(i&3)}, v{VL+(i&3)}, v{VE+i}")
            for k in range(4):
                e(f"v_cvt_pk_bf16_f32 v{p+4*hf+k}, v{VE+2*k}, v{VE+2*k+1}")

    for t in range(8):
        e.comment(f"K tile {t}")
        if PACE == 2 and t > 0:
            e("s_barrier")
        e.wait_vm(kv_tok[t])
        if PACE == 1 and t > 0:
            e("s_barrier")
        toks = []
        for s in range(8):
            toks.append(e.lds(f"ds_read_b128 {vr(V_F+4*s,4)}, v{V_KR+s} offset:{(t%nslot)*8192}"))
        if t > 0:
            max_tile(t - 1)
        for s in range(8):
            e.wait_lds(toks[s])
            c = "0" if s == 0 else vr(V_S + 16 * t, 16)
            e(f"v_mfma_f32_32x32x16_bf16 {vr(V_S+16*t,16)}, {vr(V_F+4*s,4)}, {vr(V_Q+4*s,4)}, {c}")
        refill(t + nslot)
        if STAMP == 2:
            stamp(e, 34 + t, V_T + 2)
    e("s_nop 7")
    max_tile(7)
    e(f"v_max_f32 v{VMX}, v{VMX}, v{VMX+1}")
    e(f"v_mov_b32 v{VMX+1}, v{VMX}")
    e("s_nop 1")
    e(f"v_permlane32_swap_b32 v{VMX}, v{VMX+1}")
    e("s_nop 1")
    e(f"v_max_f32 v{VM}, v{VMX}, v{VMX+1}")
    e(f"v_mul_f32 v{VMC}, s{S_C}, v{VM}")
    for i in range(4):
        e(f"v_mov_b32 v{VL+i}, 0")
    exp_tile(0)
    exp_tile(1)
    OA = [V_S, V_S + 16, V_G, V_G + 16]
    for t in range(8):
        n = 8 + t
        if PACE == 2:
            e("s_barrier")
        e.wait_vm(kv_tok[n])
        if PACE == 1:
            e("s_barrier")
        toks = []
        for u in range(2):
            for dt in range(4):
                for z in range(2):
                    toks.append(e.lds(f"ds_read_b64_tr_b16 {vr(V_F+16*u+4*dt+2*z,2)}, v{V_VR+2*dt+z} offset:{(n%nslot)*8192+u*4096}"))
        p = VP + 8 * (t & 1)
        for u in range(2):
            for dt in range(4):
                e.wait_lds(toks[8 * u + 2 * dt + 1])
                c = "0" if (t == 0 and u == 0) else vr(OA[dt], 16)
                e(f"v_mfma_f32_32x32x16_bf16 {vr(OA[dt],16)}, {vr(V_F+16*u+4*dt,4)}, {vr(p+4*u,4)}, {c}")
        if n + nslot < 16:
            issue_kv(n + nslot)
        if t + 2 < 8:
            exp_tile(t + 2)
        if STAMP == 2:
            stamp(e, 42 + t, V_T + 2)
    stamp(e, 60, V_T + 2)
    e(f"v_add_f32 v{VL}, v{VL}, v{VL+1}")
    e(f"v_add_f32 v{VL+2}, v{VL+2}, v{VL+3}")
    e(f"v_add_f32 v{VL}, v{VL}, v{VL+2}")
    e(f"v_mov_b32 v{VL+1}, v{VL}")
    e("s_nop 1")
    e(f"v_permlane32_swap_b32 v{VL}, v{VL+1}")
    e("s_nop 1")
    e(f"v_add_f32 v{VM+1}, v{VL}, v{VL+1}")
    e("s_nop 15")
    lab = f"L_k1_g{g}"
    e(f"v_add_u32 v{V_T+1}, s{S_RING}, v{V_L16}")
    e(f"s_xor_b32 s{S_T1}, s{S_J}, 1")
    e(f"s_mul_i32 s{S_T1}, s{S_T1}, {wstride}")
    if rbase:
        e(f"s_add_u32 s{S_T1}, s{S_T1}, {rbase}")
    e(f"v_add_u32 v{V_T+2}, s{S_T1}, v{V_L16}")
    e(f"v_lshlrev_b32 v{V_T+3}, 3, v0")
    e(f"v_add_u32 v1, s{S_T1}, v{V_T+3}")
    e(f"v_add_u32 v{V_T+3}, s{S_RING}, v{V_T+3}")
    e(f"ds_write_b64 v{V_T+3}, {vr(VM,2)} offset:8192")
    e(f"s_and_b32 s{S_T2}, s{S_J}, 1")
    e(f"s_cmp_eq_u32 s{S_T2}, 1")
    e(f"s_cbranch_scc1 {lab}_j1")
    for k in range(8):
        e(f"ds_write_b128 v{V_T+1}, {vr(V_G+4*k,4)} offset:{k*1024}")
    e(f"s_branch {lab}_jd")
    e.label(f"{lab}_j1")
    for k in range(8):
        e(f"ds_write_b128 v{V_T+1}, {vr(V_S+4*k,4)} offset:{k*1024}")
    e("s_waitcnt lgkmcnt(0)")
    for k in range(32):
        e(f"v_mov_b32 v{V_S+k}, v{V_G+k}")
    e.label(f"{lab}_jd")
    e("s_waitcnt lgkmcnt(0)")
    e("s_barrier")
    PO = V_F
    OACC = V_S
    e(f"ds_read_b64 {vr(VM+2,2)}, v1 offset:8192")
    for k in range(8):
        e(f"ds_read_b128 {vr(PO+4*k,4)}, v{V_T+2} offset:{k*1024}")
    e("s_waitcnt lgkmcnt(8)")
    MT, FA_, FB_, LT = VM + 4, VM + 5, VM + 6, VM + 7
    e(f"v_max_f32 v{MT}, v{VM}, v{VM+2}")
    e(f"v_sub_f32 v{FA_}, v{VM}, v{MT}")
    e(f"v_sub_f32 v{FB_}, v{VM+2}, v{MT}")
    e(f"v_mul_f32 v{FA_}, s{S_C}, v{FA_}")
    e(f"v_mul_f32 v{FB_}, s{S_C}, v{FB_}")
    e(f"v_exp_f32 v{FA_}, v{FA_}")
    e(f"v_exp_f32 v{FB_}, v{FB_}")
    e("s_nop 0")
    e(f"v_mul_f32 v{LT}, v{VM+1}, v{FA_}")
    e(f"v_fma_f32 v{LT}, v{VM+3}, v{FB_}, v{LT}")
    e(f"v_rcp_f32 v{LT}, v{LT}")
    e("s_nop 0")
    e(f"v_mul_f32 v{FA_}, v{FA_}, v{LT}")
    e(f"v_mul_f32 v{FB_}, v{FB_}, v{LT}")
    e(f"s_lshl_b32 s{S_T0}, s{SBP}, 5")
    e(f"s_add_u32 s{S_T0}, s{S_T0}, s{SH}")
    e(f"s_lshl_b32 s{S_T0}, s{S_T0}, 14")
    e(f"s_lshl_b32 s{S_T1}, s{S_J}, 12")
    e(f"s_add_u32 s{S_T0}, s{S_T0}, s{S_T1}")
    e("s_waitcnt lgkmcnt(0)")
    for k in range(32):
        e(f"v_mul_f32 v{OACC+k}, v{OACC+k}, v{FA_}")
        e(f"v_fma_f32 v{OACC+k}, v{PO+k}, v{FB_}, v{OACC+k}")
    for k in range(16):
        e(f"v_cvt_pk_bf16_f32 v{PO+k}, v{OACC+2*k}, v{OACC+2*k+1}")
    for fr in range(4):
        e(f"buffer_store_dwordx4 {vr(PO+4*fr,4)}, v{V_L16}, s[{SRD_O}:{SRD_O+3}], s{S_T0} offen offset:{fr*1024}{NT_OST}")
    if g == 0:
        e("s_branch L_oproj")


def emit_k1(e):
    emit_k1_prologue(e)
    emit_k1_role(e, 0)
    e.label("L_k1_B")
    emit_k1_role(e, 1)
    emit_oproj(e)
    e.label("L_k1_end")
    e("s_endpgm")


PART_OFF = 32 << 20
NMIN = int(OPT.get("nmin", "3"))
SPIN = 0x40000


def emit_oproj(e):
    NSS = 5
    e.label("L_oproj")
    e.vm_issued = 0
    e.lg_issued = 0
    S_BR, S_KQ, S_MT, S_NT, S_MS, S_KH = 85, 86, 87, 13, 15, 6
    SRD_A, SRD_W, SRD_OUT, SRD_P = 44, 48, 52, 56
    SRD_F, SRD_D = 64, 68
    S_OOFF, S_WOFF, S_W4K, S_T0k, S_T1k, S_ORD, S_MASK, S_CNT, S_FL = 72, 73, 74, 77, 78, 80, 81, 82, 14
    S_T2k, S_ROT = 79, 75
    V_WD = 6
    V_WR = 10
    T0, T1, T2, T3, T4, T5 = range(26, 32)
    V_FA, V_ONE, V_L4, V_CN = 32, 33, 34, 35
    V_RW, V_RR, V_OA, V_FA2 = 36, 37, 38, 39
    FO = 80
    FA = 128
    ACC = 192
    e(f"s_lshr_b32 s{S_BR}, s{S_XCD}, 2")
    e(f"s_and_b32 s{S_KQ}, s{S_XCD}, 3")
    e(f"s_lshr_b32 s{S_MT}, s{S_CI}, 3")
    e(f"s_and_b32 s{S_NT}, s{S_CI}, 7")
    e(f"s_and_b32 s{S_MS}, s{S_W}, 3")
    e(f"s_lshr_b32 s{S_KH}, s{S_W}, 2")
    e(f"s_lshl_b32 s{S_FL}, s2, 8")
    e(f"v_lshlrev_b32 v{V_L4}, 2, v0")
    e(f"v_mov_b32 v{V_ONE}, 1")
    e(f"v_mov_b32 v{T0}, 0")
    e(f"s_cmp_lg_u32 s{S_W}, 0")
    e("s_cbranch_scc1 L_op_nocnt")
    e(f"buffer_load_dword v{V_CN}, v{T0}, s[{SRD_D}:{SRD_D+3}], 0 offen sc1")
    e.label("L_op_nocnt")
    for br, sh, sbp, dst in ((0, S_HA, S_BPA, S_T0k), (1, S_HB, S_BPB, S_T1k)):
        e(f"s_lshr_b32 s{dst}, s{sbp}, 1")
        e(f"s_lshl_b32 s{dst}, s{dst}, 6")
        e(f"s_lshr_b32 s{S_T2k}, s{sh}, 3")
        e(f"s_add_u32 s{dst}, s{dst}, s{S_T2k}")
        if br:
            e(f"s_add_u32 s{dst}, s{dst}, 4")
        e(f"s_lshl_b32 s{dst}, s{dst}, 8")
        e(f"s_and_b32 s{S_T2k}, s{sbp}, 1")
        e(f"s_lshl_b32 s{S_T2k}, s{S_T2k}, 5")
        e(f"s_add_u32 s{dst}, s{dst}, s{S_T2k}")
        e(f"s_and_b32 s{S_T2k}, s{sh}, 7")
        e(f"s_lshl_b32 s{S_T2k}, s{S_T2k}, 2")
        e(f"s_add_u32 s{dst}, s{dst}, s{S_T2k}")
    e(f"v_mov_b32 v{T1}, s{S_T0k}")
    e(f"v_mov_b32 v{T2}, s{S_T1k}")
    e(f"v_cmp_gt_u32 vcc, 8, v0")
    e(f"v_and_b32 v{T3}, 7, v0")
    e(f"v_lshlrev_b32 v{T3}, 11, v{T3}")
    e(f"v_cndmask_b32 v{V_FA}, v{T2}, v{T1}, vcc")
    e(f"v_add_u32 v{V_FA}, v{V_FA}, v{T3}")
    e(f"s_lshl_b32 s{S_T0k}, s{S_CI}, 3")
    e(f"s_lshl_b32 s{S_T1k}, s{S_BR}, 2")
    e(f"s_add_u32 s{S_T0k}, s{S_T0k}, s{S_T1k}")
    e(f"s_lshl_b32 s{S_T0k}, s{S_T0k}, 8")
    e(f"s_lshl_b32 s{S_T1k}, s{S_KQ}, 2")
    e(f"s_add_u32 s{S_T0k}, s{S_T0k}, s{S_T1k}")
    e(f"s_add_u32 s{S_T0k}, s{S_T0k}, 64")
    e(f"v_lshlrev_b32 v{V_FA2}, 8, v0")
    e(f"v_add_u32 v{V_FA2}, s{S_T0k}, v{V_FA2}")
    e(f"s_cmp_eq_u32 s{S_BR}, 1")
    e(f"s_cselect_b32 s{SRD_W}, s34, s24")
    e(f"s_cselect_b32 s{SRD_W+1}, s35, s25")
    e(f"s_and_b32 s{SRD_W+1}, s{SRD_W+1}, 0xffff")
    e(f"s_mov_b32 s{SRD_W+2}, {8<<20:#x}")
    e(f"s_mov_b32 s{SRD_W+3}, 0x20000")
    srd(e, SRD_A, 40, 41, 8 << 20)
    srd(e, SRD_OUT, 36, 37, 2 << 20)
    srd(e, SRD_P, 40, 41, 16 << 20, add=PART_OFF)
    e(f"s_lshl_b32 s{S_OOFF}, s{S_BR}, 22")
    e(f"s_lshl_b32 s{S_T0k}, s{S_MT}, 20")
    e(f"s_add_u32 s{S_OOFF}, s{S_OOFF}, s{S_T0k}")
    e(f"s_lshr_b32 s{S_T0k}, s{S_MS}, 1")
    e(f"s_lshl_b32 s{S_T0k}, s{S_T0k}, 19")
    e(f"s_add_u32 s{S_OOFF}, s{S_OOFF}, s{S_T0k}")
    e(f"s_lshl_b32 s{S_T0k}, s{S_KQ}, 17")
    e(f"s_add_u32 s{S_OOFF}, s{S_OOFF}, s{S_T0k}")
    e(f"s_and_b32 s{S_T0k}, s{S_MS}, 1")
    e(f"s_lshl_b32 s{S_T0k}, s{S_T0k}, 13")
    e(f"s_add_u32 s{S_OOFF}, s{S_OOFF}, s{S_T0k}")
    e(f"s_lshl_b32 s{S_T0k}, s{S_KH}, 12")
    e(f"s_add_u32 s{S_OOFF}, s{S_OOFF}, s{S_T0k}")
    e(f"s_lshl_b32 s{S_WOFF}, s{S_KQ}, 21")
    e(f"s_lshl_b32 s{S_T0k}, s{S_W}, 15")
    e(f"s_add_u32 s{S_WOFF}, s{S_WOFF}, s{S_T0k}")
    e(f"s_lshl_b32 s{S_T0k}, s{S_NT}, 8")
    e(f"s_add_u32 s{S_WOFF}, s{S_WOFF}, s{S_T0k}")
    e(f"s_lshl_b32 s{S_W4K}, s{S_W}, 12")
    e(f"s_lshl_b32 s{S_ROT}, s{S_MT}, 1")
    e(f"s_add_u32 s{S_ROT}, s{S_ROT}, s{S_NT}")
    e(f"v_lshrrev_b32 v{T0}, 4, v0")
    e(f"v_and_b32 v{T1}, 15, v0")
    e(f"v_lshlrev_b32 v{T2}, 2, v{T0}")
    e(f"v_xor_b32 v{T1}, v{T1}, v{T2}")
    e(f"v_lshlrev_b32 v{T1}, 4, v{T1}")
    e(f"v_lshlrev_b32 v{T2}, 11, v{T0}")
    e(f"v_add_u32 v{V_WD}, v{T1}, v{T2}")
    for q in range(1, 4):
        e(f"v_xor_b32 v{V_WD+q}, {16*q}, v{V_WD}")
        e(f"v_add_u32 v{V_WD+q}, {q*(8192-1024)}, v{V_WD+q}")
    e(f"v_lshrrev_b32 v{T3}, 5, v0")
    e(f"v_and_b32 v{T1}, 1, v{T0}")
    e(f"v_lshrrev_b32 v{T2}, 2, v0")
    e(f"v_and_b32 v{T2}, 3, v{T2}")
    e(f"v_and_b32 v{T4}, 1, v0")
    e(f"v_lshlrev_b32 v{T4}, 1, v{T4}")
    e(f"v_or_b32 v{T4}, v{T4}, v{T1}")
    e(f"v_lshlrev_b32 v{T4}, 4, v{T4}")
    e(f"v_lshrrev_b32 v{T5}, 1, v0")
    e(f"v_and_b32 v{T5}, 1, v{T5}")
    e(f"v_lshlrev_b32 v{T5}, 3, v{T5}")
    e(f"v_add_u32 v{T4}, v{T4}, v{T5}")
    e(f"v_lshlrev_b32 v{T5}, 6, v{T2}")
    e(f"v_add_u32 v{T4}, v{T4}, v{T5}")
    e(f"v_lshlrev_b32 v{T5}, 4, v{T3}")
    e(f"v_add_u32 v{T5}, v{T5}, v{T2}")
    e(f"v_lshlrev_b32 v{T5}, 8, v{T5}")
    e(f"v_add_u32 v{T4}, v{T4}, v{T5}")
    e(f"s_lshl_b32 s{S_T1k}, s{S_KH}, 14")
    e(f"v_add_u32 v{V_WR}, s{S_T1k}, v{T4}")
    for nt in range(4):
        for ee in range(2):
            for z in range(2):
                i = 4 * nt + 2 * ee + z
                if i:
                    e(f"v_xor_b32 v{V_WR+i}, {64*nt + 16*(2*ee+z) + (8*ee+4*z)*256}, v{V_WR}")
    e(f"s_lshl_b32 s{S_T0k}, s{S_W}, 13")
    e(f"v_add_u32 v{V_RW}, s{S_T0k}, v{V_L16}")
    e(f"s_xor_b32 s{S_T0k}, s{S_T0k}, {4*8192}")
    e(f"v_add_u32 v{V_RR}, s{S_T0k}, v{V_L16}")
    e(f"v_and_b32 v{V_OA}, 31, v0")
    e(f"v_lshlrev_b32 v{V_OA}, 12, v{V_OA}")
    e(f"v_lshlrev_b32 v{T4}, 5, v{T3}")
    e(f"v_add_u32 v{V_OA}, v{V_OA}, v{T4}")
    e(f"s_mov_b32 s{S_ORD}, 0")
    for i in range(8):
        e(f"s_add_u32 s{S_T0k}, s{S_ROT}, {i}")
        e(f"s_and_b32 s{S_T0k}, s{S_T0k}, 7")
        e(f"s_lshl_b32 s{S_T0k}, s{S_T0k}, {4*i}")
        e(f"s_or_b32 s{S_ORD}, s{S_ORD}, s{S_T0k}")
    e(f"s_cmp_lg_u32 s{S_W}, 0")
    e("s_cbranch_scc1 L_op_noep")
    e(f"buffer_load_dword v41, v{V_L4}, s[{SRD_F}:{SRD_F+3}], s{S_FL} offen sc1")
    e.label("L_op_noep")
    e("s_waitcnt vmcnt(0)")
    e("s_barrier")
    e(f"s_cmp_lg_u32 s{S_W}, 0")
    e("s_cbranch_scc1 L_op_w0done")
    e(f"s_mov_b32 s{S_CNT}, {SPIN}")
    e.label("L_op_cnt")
    e(f"v_readfirstlane_b32 s{S_T0k}, v{V_CN}")
    e(f"s_sub_u32 s{S_CNT}, s{S_CNT}, 1")
    e(f"s_and_b32 s{S_T0k}, s{S_T0k}, 255")
    e(f"s_cmp_eq_u32 s{S_T0k}, 0")
    e("s_cbranch_scc1 L_op_cntok")
    e(f"s_cmp_eq_u32 s{S_CNT}, 0")
    e("s_cbranch_scc1 L_op_cntok")
    e("s_sleep 16")
    e(f"v_mov_b32 v{T0}, 0")
    e(f"buffer_load_dword v{V_CN}, v{T0}, s[{SRD_D}:{SRD_D+3}], 0 offen sc1")
    e("s_waitcnt vmcnt(0)")
    e("s_branch L_op_cnt")
    e.label("L_op_cntok")
    e("s_mov_b64 exec, 0xffff")
    e(f"buffer_store_dword v{V_ONE}, v{V_FA}, s[{SRD_F}:{SRD_F+3}], 0 offen sc1")
    e("s_mov_b64 exec, -1")

    def poll(lab):
        e(f"buffer_load_dword v{T2}, v{V_L4}, s[{SRD_F}:{SRD_F+3}], s{S_FL} offen sc1")
        e("s_waitcnt vmcnt(0)")
        e(f"v_cmp_eq_u32 vcc, 1, v{T2}")
        e("s_nop 3")
        e(f"s_lshr_b32 s{S_T0k}, vcc_lo, 8")
        e(f"s_and_b32 s{S_T0k}, s{S_T0k}, vcc_lo")
        e(f"s_and_b32 s{S_T0k}, s{S_T0k}, 0xff")
        e(f"s_and_b32 s{S_MASK}, vcc_lo, 0xf0000")
        e(f"s_or_b32 s{S_MASK}, s{S_MASK}, s{S_T0k}")

    e(f"v_cmp_eq_u32 vcc, 1, v41")
    e("s_nop 3")
    e(f"s_lshr_b32 s{S_T0k}, vcc_lo, 8")
    e(f"s_and_b32 s{S_T0k}, s{S_T0k}, vcc_lo")
    e(f"s_and_b32 s{S_MASK}, s{S_T0k}, 0xff")
    e.label("L_op_w0done")

    wtok, otok = {}, {}

    def w_pieces(s):
        slot = (s % NSS) * 32768

        def p0():
            e(f"s_bfe_u32 s{S_T1k}, s{S_ORD}, {(4 << 16) | (4 * s):#x}")
            e(f"s_add_u32 m0, s{S_W4K}, {slot}")
            e(f"s_lshl_b32 s{S_T1k}, s{S_T1k}, 18")
            e(f"s_add_u32 s{S_T1k}, s{S_T1k}, s{S_WOFF}")
            e.vmem(f"buffer_load_dwordx4 v{V_WD}, s[{SRD_W}:{SRD_W+3}], s{S_T1k} offen{NT_WO} lds")
        ps = [p0]
        for q in range(1, 4):
            def pq(q=q):
                wtok[s] = e.vmem(f"buffer_load_dwordx4 v{V_WD+q}, s[{SRD_W}:{SRD_W+3}], s{S_T1k} offen offset:{q*1024}{NT_WO} lds")
            ps.append(pq)
        return ps

    def o_pieces(s):
        fo = FO + 16 * (s % 3)

        def p0():
            e(f"s_bfe_u32 s{S_T0k}, s{S_ORD}, {(4 << 16) | (4 * s):#x}")
            e(f"s_lshl_b32 s{S_T0k}, s{S_T0k}, 14")
            e(f"s_add_u32 s{S_T0k}, s{S_T0k}, s{S_OOFF}")
            e.vmem(f"buffer_load_dwordx4 {vr(fo,4)}, v{V_L16}, s[{SRD_A}:{SRD_A+3}], s{S_T0k} offen{NT_OLD}")
        ps = [p0]
        for q in range(1, 4):
            def pq(q=q):
                otok[s] = e.vmem(f"buffer_load_dwordx4 {vr(fo+4*q,4)}, v{V_L16}, s[{SRD_A}:{SRD_A+3}], s{S_T0k} offen offset:{q*1024}{NT_OLD}")
            ps.append(pq)
        return ps

    page = [0]

    def set_page(p):
        if p != page[0]:
            d = (p - page[0]) * 65536
            for i in range(16):
                e(f"v_add_u32 v{V_WR+i}, {d & 0xffffffff:#x}, v{V_WR+i}")
            page[0] = p

    rbuf = {}
    nb = [0]

    def reads(s, q):
        b = nb[0] % 3
        nb[0] += 1
        rbuf[(s, q)] = b
        fb = FA + 16 * b
        off = ((s % NSS) * 32768 & 0xffff) + (q >> 1) * 8192
        ee = q & 1
        t = None
        for nt in range(4):
            for z in range(2):
                t = e.lds(f"ds_read_b64_tr_b16 {vr(fb+4*nt+2*z,2)}, v{V_WR+4*nt+2*ee+z} offset:{off}")
        return t

    def mf(s, q, nt):
        fb = FA + 16 * rbuf[(s, q)]
        fo = FO + 16 * (s % 3)
        c = "0" if (s == 0 and q == 0) else vr(ACC + 16 * nt, 16)
        e(f"v_mfma_f32_32x32x16_bf16 {vr(ACC+16*nt,16)}, {vr(fb+4*nt,4)}, {vr(fo+4*q,4)}, {c}")

    def need(pos, lab):
        e(f"s_cmp_lg_u32 s{S_W}, 0")
        e(f"s_cbranch_scc1 {lab}r")
        e(f"s_mov_b32 s{S_CNT}, {SPIN}")
        e.label(f"{lab}c")
        e(f"s_bfe_u32 s{S_T2k}, s{S_ORD}, {(4 << 16) | (4 * pos):#x}")
        e(f"s_bitcmp1_b32 s{S_MASK}, s{S_T2k}")
        e(f"s_cbranch_scc1 {lab}r")
        e(f"s_sub_u32 s{S_CNT}, s{S_CNT}, 1")
        e(f"s_cmp_eq_u32 s{S_CNT}, 0")
        e(f"s_cbranch_scc1 {lab}r")
        poll(lab)
        e(f"s_branch {lab}c")
        e.label(f"{lab}r")

    NPW = int(OPT.get("npw", "2"))
    for sw in range(NPW):
        for p_ in w_pieces(sw):
            p_()
    need(0, "L_op_n0")
    need(1, "L_op_n1")
    e("s_barrier")
    stamp(e, 62, 40)
    for p_ in o_pieces(0) + o_pieces(1):
        p_()
    for sw in range(NPW, 4):
        for p_ in w_pieces(sw):
            p_()
    for s in range(8):
        e.comment(f"oproj step {s}")
        set_page(((s % NSS) * 32768) >> 16)
        if s + 2 < 8:
            e(f"s_cmp_lg_u32 s{S_W}, 0")
            e(f"s_cbranch_scc1 L_op_rdy{s}")
            e(f"s_mov_b32 s{S_CNT}, {SPIN}")
            e.label(f"L_op_chk{s}")
            e(f"s_bfe_u32 s{S_T2k}, s{S_ORD}, {(4 << 16) | (4 * (s + 2)):#x}")
            e(f"s_bitcmp1_b32 s{S_MASK}, s{S_T2k}")
            e(f"s_cbranch_scc1 L_op_rdy{s}")
            e(f"s_sub_u32 s{S_CNT}, s{S_CNT}, 1")
            e(f"s_cmp_eq_u32 s{S_CNT}, 0")
            e(f"s_cbranch_scc1 L_op_rdy{s}")
            poll(f"c{s}")
            e(f"s_branch L_op_chk{s}")
            e.label(f"L_op_rdy{s}")
        e.wait_vm(max(wtok[s], otok[s]))
        e("s_barrier")
        pcs = (o_pieces(s + 2) if s + 2 < 8 else []) + (w_pieces(s + 4) if s + 4 < 8 else [])
        pcs += [lambda: None] * (8 - len(pcs))
        rt = {}
        rt[0] = reads(s, 0)
        if s > 0:
            mf(s - 1, 3, 0)
            mf(s - 1, 3, 1)
        rt[1] = reads(s, 1)
        if s > 0:
            mf(s - 1, 3, 2)
            mf(s - 1, 3, 3)
        k = 0
        for q in range(3):
            e.wait_lds(rt[q])
            for nt in range(4):
                mf(s, q, nt)
                if nt == 0 and q + 2 < 4:
                    rt[q + 2] = reads(s, q + 2)
                elif nt > 0 and k < 8:
                    pcs[k]()
                    k += 1
        e.wait_lds(rt[3])
        if STAMP == 3:
            stamp(e, 1 + s, 40)
    for nt in range(4):
        mf(7, 3, nt)
    e("s_nop 15")
    e("s_nop 3")
    e("s_barrier")
    e(f"s_cmp_eq_u32 s{S_KH}, 1")
    e("s_cbranch_scc1 L_op_kh1")
    for k in range(8):
        e(f"ds_write_b128 v{V_RW}, {vr(ACC+32+4*k,4)} offset:{k*1024}")
    e("s_branch L_op_khd")
    e.label("L_op_kh1")
    for k in range(8):
        e(f"ds_write_b128 v{V_RW}, {vr(ACC+4*k,4)} offset:{k*1024}")
    e("s_waitcnt lgkmcnt(0)")
    for k in range(32):
        e(f"v_mov_b32 v{ACC+k}, v{ACC+32+k}")
    e.label("L_op_khd")
    e(f"s_lshl_b32 s{S_T2k}, s{S_BR}, 5")
    e(f"s_add_u32 s{S_T2k}, s{S_T2k}, s{S_CI}")
    e(f"s_lshl_b32 s{S_T2k}, s{S_T2k}, 18")
    e(f"s_lshl_b32 s{S_T0k}, s{S_MS}, 16")
    e(f"s_add_u32 s{S_T0k}, s{S_T0k}, s{S_T2k}")
    e(f"s_lshl_b32 s{S_T1k}, s{S_KQ}, 14")
    e(f"s_add_u32 s{S_T0k}, s{S_T0k}, s{S_T1k}")
    e(f"s_lshl_b32 s{S_T1k}, s{S_KH}, 13")
    e(f"s_add_u32 s{S_T0k}, s{S_T0k}, s{S_T1k}")
    e(f"s_add_u32 s{S_T1k}, s{S_T0k}, 4096")
    e("s_waitcnt lgkmcnt(0)")
    e("s_barrier")
    for k in range(8):
        e(f"ds_read_b128 {vr(FA+4*k,4)}, v{V_RR} offset:{k*1024}")
    for k in range(8):
        e(f"s_waitcnt lgkmcnt({7-k})")
        for r in range(4):
            e(f"v_add_f32 v{ACC+4*k+r}, v{ACC+4*k+r}, v{FA+4*k+r}")
        so = S_T0k if k < 4 else S_T1k
        e(f"buffer_store_dwordx4 {vr(ACC+4*k,4)}, v{V_L16}, s[{SRD_P}:{SRD_P+3}], s{so} offen offset:{(k&3)*1024} sc1")
    e(f"s_lshl_b32 s{S_T0k}, s{S_KQ}, 16")
    e(f"s_add_u32 s{S_T2k}, s{S_T2k}, s{S_T0k}")
    e(f"s_lshl_b32 s{S_T0k}, s{S_W}, 11")
    e(f"s_add_u32 s{S_T2k}, s{S_T2k}, s{S_T0k}")
    e(f"s_mov_b32 s{S_OOFF}, s{S_T2k}")
    e(f"s_lshl_b32 s{S_WOFF}, s{S_MT}, 19")
    e(f"s_lshl_b32 s{S_T0k}, s{S_KQ}, 17")
    e(f"s_add_u32 s{S_WOFF}, s{S_WOFF}, s{S_T0k}")
    e(f"s_lshl_b32 s{S_T0k}, s{S_BR}, 11")
    e(f"s_add_u32 s{S_WOFF}, s{S_WOFF}, s{S_T0k}")
    e(f"s_lshl_b32 s{S_T0k}, s{S_NT}, 8")
    e(f"s_add_u32 s{S_WOFF}, s{S_WOFF}, s{S_T0k}")
    e(f"s_lshr_b32 s{S_T0k}, s{S_W}, 1")
    e(f"s_lshl_b32 s{S_T0k}, s{S_T0k}, 6")
    e(f"s_add_u32 s{S_WOFF}, s{S_WOFF}, s{S_T0k}")
    e(f"s_and_b32 s{S_T0k}, s{S_W}, 1")
    e(f"s_lshl_b32 s{S_T0k}, s{S_T0k}, 4")
    e(f"s_add_u32 s{S_WOFF}, s{S_WOFF}, s{S_T0k}")
    e("s_waitcnt vmcnt(0)")
    e("s_barrier")
    stamp(e, 61, 40)
    e(f"s_cmp_lg_u32 s{S_W}, 0")
    e("s_cbranch_scc1 L_op_fin")
    e("s_mov_b64 exec, 0xf")
    e(f"buffer_store_dword v{V_ONE}, v{V_FA2}, s[{SRD_F}:{SRD_F+3}], 0 offen sc1")
    e("s_mov_b64 exec, -1")
    e(f"s_mov_b32 s{S_CNT}, {SPIN}")
    e.label("L_op_poll2")
    poll("p2")
    e(f"s_lshr_b32 s{S_T0k}, s{S_MASK}, 16")
    e(f"s_cmp_eq_u32 s{S_T0k}, 15")
    e("s_cbranch_scc1 L_op_fin")
    e(f"s_sub_u32 s{S_CNT}, s{S_CNT}, 1")
    e(f"s_cmp_eq_u32 s{S_CNT}, 0")
    e("s_cbranch_scc1 L_op_fin")
    e("s_sleep 2")
    e("s_branch L_op_poll2")
    e.label("L_op_fin")
    e("s_barrier")
    for src in range(4):
        for q in range(2):
            e(f"buffer_load_dwordx4 {vr(FA+8*src+4*q,4)}, v{V_L16}, s[{SRD_P}:{SRD_P+3}], s{S_OOFF} offen offset:{q*1024} sc1")
        if src < 3:
            e(f"s_add_u32 s{S_OOFF}, s{S_OOFF}, 16384")
    e("s_waitcnt vmcnt(0)")
    for r in range(8):
        e(f"v_add_f32 v{FA+r}, v{FA+r}, v{FA+8+r}")
        e(f"v_add_f32 v{FA+16+r}, v{FA+16+r}, v{FA+24+r}")
    for r in range(8):
        e(f"v_add_f32 v{FA+r}, v{FA+r}, v{FA+16+r}")
    for k in range(4):
        e(f"v_cvt_pk_bf16_f32 v{FA+32+k}, v{FA+2*k}, v{FA+2*k+1}")
    e(f"buffer_store_dwordx4 {vr(FA+32,4)}, v{V_OA}, s[{SRD_OUT}:{SRD_OUT+3}], s{S_WOFF} offen")
    if STAMP:
        e("s_waitcnt vmcnt(0)")
    stamp(e, 63, 40)


e = Em()
emit_k1(e)
txt = HEADER + e.text() + '.section .rodata,"a"\n.p2align 6\n' + kernel_desc("concat_heads__gqa_block_cached__mha_block_cached__near_ridge_kernel")
open(OUT, "w").write(txt)
print("wrote", OUT, len(txt), "bytes")
```

```python
import sys, math, struct
sys.path.insert(0, "tools")
from asmlib import Em, vr, sr, kernel_desc

OUT = sys.argv[1] if len(sys.argv) > 1 else "concat_heads__gqa_block_cached__mha_block_cached__near_ridge.s"
OPT = dict(a.split("=") for a in sys.argv[2:])


def pol(name, dflt):
    v = OPT.get(name, dflt).strip()
    return "" if v in ("", "0") else " " + v.replace("+", " ")


NT_KVB = pol("nt_kvb", "nt")
NT_KVA = pol("nt_kva", "0")
NT_W = pol("nt_w", "0")
NT_X = pol("nt_x", "0")
NT_WO = pol("nt_wo", "0")
NT_OST = pol("nt_ost", "sc1")
NT_OLD = pol("nt_old", "sc1")
STAMP = int(OPT.get("stamp", "0"))
ONLY = OPT.get("only", "")
GRPBIT = int(OPT.get("grpbit", "4"))
FT = int(OPT.get("ft", "0"))
FT2 = int(OPT.get("ft2", "0"))
FT2O = int(OPT.get("ft2o", "0"))
KPRE_STEP = int(OPT.get("kpre_step", "2"))
SRD_ST = 88


def srd(e, dst, lo, hi, size, add=0):
    if add:
        e(f"s_add_u32 s{dst}, s{lo}, {add:#x}")
        e(f"s_addc_u32 s{dst+1}, s{hi}, 0")
        e(f"s_and_b32 s{dst+1}, s{dst+1}, 0xffff")
    else:
        e(f"s_mov_b32 s{dst}, s{lo}")
        e(f"s_and_b32 s{dst+1}, s{hi}, 0xffff")
    e(f"s_mov_b32 s{dst+2}, {size:#x}")
    e(f"s_mov_b32 s{dst+3}, 0x20000")


def stamp_init(e, wsreg, wavereg, base):
    if not STAMP: return
    if STAMP == 9:
        srd(e, SRD_ST, 38, 39, 256)
        e(f"s_cmp_eq_u32 s2, 101")
        e(f"s_cselect_b32 s92, 32, 0")
        e(f"s_cselect_b32 s93, 0, s2")
        e(f"s_add_u32 s93, s93, s{wavereg}")
        e(f"s_cmp_eq_u32 s93, 0")
        e(f"s_cselect_b32 s{SRD_ST+2}, 256, 0")
        return
    srd(e, SRD_ST, wsreg, wsreg + 1, 1 << 20, add=base)
    e(f"s_lshl_b32 s92, s2, 3")
    e(f"s_add_u32 s92, s92, s{wavereg}")
    e(f"s_lshl_b32 s92, s92, 8")


def stamp(e, idx, vt=250):
    if not STAMP: return
    if STAMP == 9:
        idx = {0: 1, 33: 2, 60: 3, 61: 4, 62: 5, 63: 6}[idx]
    e("s_memrealtime s[94:95]")
    e("s_waitcnt lgkmcnt(0)")
    e(f"v_mov_b32 v{vt}, s94")
    e(f"v_mov_b32 v{vt+1}, 0")
    e.vmem(f"buffer_store_dword v{vt}, v{vt+1}, s[{SRD_ST}:{SRD_ST+3}], s92 offen offset:{idx*4}")


def f32bits(x):
    return struct.unpack("<I", struct.pack("<f", x))[0]


CSCALE = (128 ** -0.5) * math.log2(math.e)

HEADER = """; Kernarg layout (104 bytes, ptrs only, base s[0:1]):
; @launch grid=(256,1,1) block=(512,1,1) lds=163840
.amdgcn_target "amdgcn-amd-amdhsa--gfx950"
.text
"""

S_W, S_J, S_I, S_XCD, S_CI = 3, 4, 5, 7, 8
S_HA, S_BPA, S_HB, S_BPB = 9, 10, 11, 12
SRD_X, SRD_WQ, SRD_K, SRD_V, SRD_O = 44, 48, 52, 56, 60
S_WQOFF, S_XOFF, S_KVOFF, S_RING, S_C, S_T0, S_T1, S_T2 = 72, 73, 74, 75, 76, 77, 78, 79
S_WQK, S_XK, S_KROT, S_WQM, S_XM = 80, 81, 82, 83, 84
V_L16 = 5
V_KVD = 6
V_KR = 10
V_VR = 18
V_T = 26
V_Q = 32
V_F = 64
V_G = 96
V_S = 128
V_WQR = 96
V_XR = 100
V_QXW = 86
V_WQD = 80
V_XD = 84
V_TWQ, V_TX, V_TD = 120, 121, 122
V_TKV = 31
QF = 128
QACC = 224

NR = 4
KPRE1 = int(OPT.get("kpre1", "6"))
FTKV = int(OPT.get("ftkv", "0"))
PACE = int(OPT.get("pace", "1"))
AROT = int(OPT.get("arot", "1"))
FTA = int(OPT.get("fta", "0"))
STAG = int(OPT.get("stag", "1"))
RST = int(OPT.get("rst", "3"))
RST_STEPS = [int(x) for x in OPT.get("rst_steps", "24,27,30").split(",")]
RST_REG = [128, 160, 192, 224, 96]
FLAG_OFF = 8 << 20


def wq_piece(slot):
    return 98304 + 16384 * slot


def x_piece(slot):
    return 16384 + 24576 * slot


XCH = 98304


def emit_k1_prologue(e):
    e.raw(".globl concat_heads__gqa_block_cached__mha_block_cached__near_ridge_kernel")
    e.raw(".p2align 8")
    e.raw(".type concat_heads__gqa_block_cached__mha_block_cached__near_ridge_kernel,@function")
    e.label("concat_heads__gqa_block_cached__mha_block_cached__near_ridge_kernel")
    e("s_cmp_ge_u32 s2, 256")
    e("s_cbranch_scc1 L_k1_end")
    e("s_load_dwordx16 s[16:31], s[0:1], 0")
    e("s_load_dwordx8 s[32:39], s[0:1], 64")
    e("s_load_dwordx2 s[40:41], s[0:1], 96")
    e("v_lshrrev_b32 v1, 6, v0")
    e("v_and_b32 v0, 63, v0")
    e("s_nop 0")
    e(f"v_readfirstlane_b32 s{S_W}, v1")
    e(f"s_and_b32 s{S_XCD}, s2, 7")
    e(f"s_lshr_b32 s{S_CI}, s2, 3")
    e(f"s_and_b32 s{S_J}, s{S_W}, 3")
    e(f"s_lshr_b32 s{S_I}, s{S_W}, 2")
    e(f"s_mov_b32 s{S_C}, {f32bits(CSCALE):#x}")
    e(f"s_lshl_b32 s{S_WQM}, s{S_J}, 12")
    e(f"s_lshl_b32 s{S_XM}, s{S_J}, 11")
    e(f"s_lshr_b32 s{S_HA}, s{S_XCD}, 1")
    e(f"s_lshl_b32 s{S_HA}, s{S_HA}, 3")
    e(f"s_and_b32 s{S_T0}, s{S_CI}, 7")
    e(f"s_add_u32 s{S_HA}, s{S_HA}, s{S_T0}")
    e(f"s_and_b32 s{S_BPA}, s{S_XCD}, 1")
    e(f"s_lshl_b32 s{S_BPA}, s{S_BPA}, 2")
    e(f"s_lshr_b32 s{S_T0}, s{S_CI}, 3")
    e(f"s_add_u32 s{S_BPA}, s{S_BPA}, s{S_T0}")
    e(f"s_lshl_b32 s{S_HB}, s{S_XCD}, 2")
    e(f"s_and_b32 s{S_T0}, s{S_CI}, 3")
    e(f"s_add_u32 s{S_HB}, s{S_HB}, s{S_T0}")
    e(f"s_lshr_b32 s{S_BPB}, s{S_CI}, 2")
    T0, T1, T2, T3, T4, T5 = 64, 65, 66, 67, 68, 69
    e(f"v_lshlrev_b32 v{V_L16}, 4, v0")
    e(f"v_lshrrev_b32 v{T0}, 4, v0")
    e(f"v_and_b32 v{T1}, 15, v0")
    e(f"v_lshlrev_b32 v{T2}, 2, v{T0}")
    e(f"v_xor_b32 v{T1}, v{T1}, v{T2}")
    e(f"v_lshlrev_b32 v{T1}, 4, v{T1}")
    e(f"v_lshlrev_b32 v{T2}, 8, v{T0}")
    e(f"v_add_u32 v{V_KVD}, v{T1}, v{T2}")
    for n in range(1, 4):
        e(f"v_xor_b32 v{V_KVD+n}, {16*n}, v{V_KVD}")
    e(f"v_lshlrev_b32 v{T2}, 13, v{T0}")
    e(f"v_add_u32 v{V_WQD}, v{T1}, v{T2}")
    for q in range(1, 4):
        e(f"v_xor_b32 v{V_WQD+q}, {16*q}, v{V_WQD}")
        e(f"v_add_u32 v{V_WQD+q}, {q*(32768-1024)}, v{V_WQD+q}")
    e(f"v_lshrrev_b32 v{T2}, 3, v0")
    e(f"v_lshlrev_b32 v{T2}, 11, v{T2}")
    e(f"v_and_b32 v{T3}, 7, v0")
    e(f"v_xor_b32 v{T3}, v{T3}, v{T0}")
    e(f"v_lshlrev_b32 v{T3}, 4, v{T3}")
    e(f"v_add_u32 v{V_XD}, v{T2}, v{T3}")
    e(f"v_xor_b32 v{V_XD+1}, 64, v{V_XD}")
    e(f"v_add_u32 v{V_XD+1}, {8*2048-1024}, v{V_XD+1}")
    e(f"v_and_b32 v{T2}, 31, v0")
    e(f"v_lshrrev_b32 v{T3}, 5, v0")
    e(f"v_lshrrev_b32 v{T4}, 1, v{T2}")
    e(f"v_and_b32 v{T4}, 7, v{T4}")
    e(f"v_xor_b32 v{T4}, v{T4}, v{T3}")
    e(f"v_lshlrev_b32 v{T4}, 4, v{T4}")
    e(f"v_lshlrev_b32 v{T5}, 7, v{T2}")
    e(f"v_add_u32 v{T4}, v{T4}, v{T5}")
    e(f"v_mov_b32 v{V_XR}, v{T4}")
    for s in range(1, 4):
        e(f"v_xor_b32 v{V_XR+s}, {32*s}, v{V_XR}")
    for s in range(4):
        e(f"v_add_u32 v{V_XR+4+s}, 65536, v{V_XR+s}")
    e(f"v_and_b32 v{T4}, 3, v{T2}")
    e(f"v_lshlrev_b32 v{T4}, 2, v{T4}")
    e(f"v_lshrrev_b32 v{T5}, 2, v{T2}")
    e(f"v_and_b32 v{T5}, 3, v{T5}")
    e(f"v_or_b32 v{T4}, v{T4}, v{T5}")
    e(f"v_xor_b32 v{T4}, v{T4}, v{T3}")
    e(f"v_lshlrev_b32 v{T4}, 4, v{T4}")
    e(f"v_lshlrev_b32 v{T5}, 8, v{T2}")
    e(f"v_add_u32 v{V_KR}, v{T4}, v{T5}")
    for s in range(1, 8):
        e(f"v_xor_b32 v{V_KR+s}, {32*s}, v{V_KR}")
    e(f"v_and_b32 v{T1}, 1, v{T0}")
    e(f"v_lshrrev_b32 v{T2}, 2, v0")
    e(f"v_and_b32 v{T2}, 3, v{T2}")
    e(f"v_and_b32 v{T4}, 1, v0")
    e(f"v_lshrrev_b32 v{T5}, 1, v0")
    e(f"v_and_b32 v{T5}, 1, v{T5}")
    e(f"v_lshlrev_b32 v{T5}, 3, v{T5}")
    e(f"v_lshlrev_b32 v{V_VR+2}, 6, v{T2}")
    e(f"v_add_u32 v{T5}, v{T5}, v{V_VR+2}")
    e(f"v_lshlrev_b32 v1, 1, v{T4}")
    e(f"v_or_b32 v1, v1, v{T1}")
    e(f"v_xor_b32 v1, v1, v{T3}")
    e(f"v_lshlrev_b32 v1, 4, v1")
    e(f"v_add_u32 v1, v1, v{T5}")
    e(f"v_lshlrev_b32 v{V_VR+1}, 2, v{T3}")
    e(f"v_add_u32 v{V_VR+1}, v{V_VR+1}, v{T2}")
    e(f"v_lshlrev_b32 v{V_VR+1}, 8, v{V_VR+1}")
    e(f"v_add_u32 v{V_VR}, v1, v{V_VR+1}")
    for dt in range(4):
        for z in range(2):
            if dt == 0 and z == 0:
                continue
            e(f"v_xor_b32 v{V_VR+2*dt+z}, {64*dt + 32*z + 2048*z}, v{V_VR}")
    e(f"v_lshlrev_b32 v1, 1, v{T1}")
    e(f"v_or_b32 v1, v1, v{T4}")
    e(f"v_lshlrev_b32 v{V_WQR+1}, 1, v{T3}")
    e(f"v_xor_b32 v1, v1, v{V_WQR+1}")
    e(f"v_lshlrev_b32 v1, 4, v1")
    e(f"v_add_u32 v1, v1, v{T5}")
    e(f"v_lshlrev_b32 v{V_WQR+1}, 3, v{T3}")
    e(f"v_add_u32 v{V_WQR+1}, v{V_WQR+1}, v{T2}")
    e(f"v_lshlrev_b32 v{V_WQR+1}, 8, v{V_WQR+1}")
    e(f"v_add_u32 v1, v1, v{V_WQR+1}")
    e(f"s_lshl_b32 s{S_T0}, s{S_J}, 6")
    e(f"v_xor_b32 v1, s{S_T0}, v1")
    e(f"v_add_u32 v{V_WQR}, 65536, v1")
    e(f"v_xor_b32 v{V_WQR+1}, {16+1024}, v{V_WQR}")
    e(f"v_add_u32 v{V_WQR+2}, 65536, v{V_WQR}")
    e(f"v_add_u32 v{V_WQR+3}, 65536, v{V_WQR+1}")
    e(f"s_lshl_b32 s{S_T0}, s{S_I}, 14")
    e(f"s_add_u32 s{S_T0}, s{S_T0}, s{S_XM}")
    e(f"s_add_u32 s{S_T0}, s{S_T0}, {XCH}")
    e(f"v_add_u32 v{V_QXW}, s{S_T0}, v{V_L16}")
    e(f"v_and_b32 v1, 15, v0")
    e(f"v_lshrrev_b32 v{V_TWQ}, 1, v1")
    e(f"v_lshlrev_b32 v{V_TWQ}, 13, v{V_TWQ}")
    e(f"v_and_b32 v1, 1, v1")
    e(f"v_lshlrev_b32 v1, 7, v1")
    e(f"v_add_u32 v{V_TWQ}, v{V_TWQ}, v1")
    e(f"v_and_b32 v{V_TX}, 7, v0")
    e(f"v_lshlrev_b32 v{V_TX}, 11, v{V_TX}")
    e(f"v_lshlrev_b32 v{V_TKV}, 7, v0")
    e("s_waitcnt lgkmcnt(0)")
    stamp_init(e, 40, S_W, 16 << 20)
    srd(e, 64, 40, 41, 65536, add=FLAG_OFF)
    srd(e, 68, 38, 39, 256)
    e(f"s_cmp_lg_u32 s{S_W}, 7")
    e("s_cbranch_scc1 L_k1_noflag")
    e("s_lshl_b32 s14, s2, 8")
    e("v_mov_b32 v1, 0")
    e("v_lshlrev_b32 v2, 2, v0")
    e("buffer_store_dword v1, v2, s[64:67], s14 offen sc1")
    e("v_mov_b32 v2, 1")
    e("s_waitcnt vmcnt(0)")
    e("s_mov_b64 exec, 1")
    e("buffer_atomic_add v2, v1, s[68:71], 0 offen")
    e("s_mov_b64 exec, -1")
    e.label("L_k1_noflag")
    e(f"s_cmp_ge_u32 s{S_W}, 4")
    e("s_cbranch_scc1 L_k1_B")


def emit_k1_role(e, g):
    e.vm_issued = 0
    e.lg_issued = 0
    nslot = 3 if g == 1 else 2
    wstride = 24576 if g == 1 else 16384
    rbase = 0 if g == 1 else 98304
    SH, SBP = (S_HA, S_BPA) if g == 0 else (S_HB, S_BPB)
    kv_tok, wq_tok, x_tok = {}, {}, {}

    def ring_setup(br, adv=0):
        sh, sbp = (S_HA, S_BPA) if br == 0 else (S_HB, S_BPB)
        px, pw = (16, 22) if br == 0 else (26, 32)
        srd(e, SRD_X, px, px + 1, 1 << 20)
        srd(e, SRD_WQ, pw, pw + 1, 8 << 20)
        e(f"s_lshl_b32 s{S_XOFF}, s{sbp}, 17")
        e(f"s_lshl_b32 s{S_T0}, s{S_J}, 15")
        e(f"s_add_u32 s{S_XOFF}, s{S_XOFF}, s{S_T0}")
        e(f"s_lshl_b32 s{S_WQOFF}, s{sh}, 8")
        e(f"s_lshl_b32 s{S_T0}, s{S_J}, 17")
        e(f"s_add_u32 s{S_WQOFF}, s{S_WQOFF}, s{S_T0}")
        if br == 1:
            e(f"s_lshl_b32 s{S_T0}, s{sbp}, 1")
            e(f"s_and_b32 s{S_T1}, s{S_CI}, 3")
            e(f"s_lshl_b32 s{S_T1}, s{S_T1}, 2")
        else:
            e(f"s_lshr_b32 s{S_T0}, s{S_CI}, 3")
            e(f"s_lshl_b32 s{S_T0}, s{S_T0}, 2")
            e(f"s_and_b32 s{S_T1}, s{S_CI}, 7")
            e(f"s_lshl_b32 s{S_T1}, s{S_T1}, 1")
        e(f"s_add_u32 s{S_T0}, s{S_T0}, s{S_T1}")
        if adv:
            e(f"s_add_u32 s{S_T0}, s{S_T0}, {adv}")
        e(f"s_and_b32 s{S_T0}, s{S_T0}, 15")
        e(f"s_lshl_b32 s{S_WQK}, s{S_T0}, 19")
        e(f"s_lshl_b32 s{S_XK}, s{S_T0}, 7")

    def issue_chunk(c):
        if c == 16:
            ring_setup(0)
        e(f"s_add_u32 m0, s{S_XM}, {x_piece(c % NR)}")
        e(f"s_add_u32 s{S_T0}, s{S_XOFF}, s{S_XK}")
        e.vmem(f"buffer_load_dwordx4 v{V_XD}, s[{SRD_X}:{SRD_X+3}], s{S_T0} offen{NT_X} lds")
        e.vmem(f"buffer_load_dwordx4 v{V_XD+1}, s[{SRD_X}:{SRD_X+3}], s{S_T0} offen offset:1024{NT_X} lds")
        e(f"s_add_u32 m0, s{S_WQM}, {wq_piece(c % NR)}")
        e(f"s_add_u32 s{S_T0}, s{S_WQOFF}, s{S_WQK}")
        for q in range(4):
            wq_tok[c] = e.vmem(f"buffer_load_dwordx4 v{V_WQD+q}, s[{SRD_WQ}:{SRD_WQ+3}], s{S_T0} offen offset:{q*1024}{NT_W} lds")
        e(f"s_add_u32 s{S_XK}, s{S_XK}, 128")
        e(f"s_and_b32 s{S_XK}, s{S_XK}, 2047")
        e(f"s_add_u32 s{S_WQK}, s{S_WQK}, 0x80000")
        e(f"s_and_b32 s{S_WQK}, s{S_WQK}, 0x7fffff")

    def kv_setup():
        pk, pv = (18, 20) if g == 0 else (28, 30)
        kvsize = (8 << 20) if g == 0 else (64 << 20)
        srd(e, SRD_K, pk, pk + 1, kvsize)
        srd(e, SRD_V, pv, pv + 1, kvsize)
        srd(e, SRD_O, 40, 41, 4 << 20, add=g * (4 << 20))
        e(f"s_lshl_b32 s{S_T0}, s{SBP}, 1")
        e(f"s_lshr_b32 s{S_T1}, s{S_J}, 1")
        e(f"s_add_u32 s{S_T0}, s{S_T0}, s{S_T1}")
        if g == 0:
            e(f"s_lshl_b32 s{S_T1}, s{S_T0}, 2")
            e(f"s_lshr_b32 s{S_T2}, s{SH}, 3")
        else:
            e(f"s_lshl_b32 s{S_T1}, s{S_T0}, 5")
            e(f"s_mov_b32 s{S_T2}, s{SH}")
        e(f"s_add_u32 s{S_T1}, s{S_T1}, s{S_T2}")
        e(f"s_lshl_b32 s{S_KVOFF}, s{S_T1}, 17")
        e(f"s_and_b32 s{S_T1}, s{S_J}, 1")
        e(f"s_lshl_b32 s{S_T1}, s{S_T1}, 16")
        e(f"s_add_u32 s{S_KVOFF}, s{S_KVOFF}, s{S_T1}")
        if g == 1:
            e(f"s_add_u32 s{S_KROT}, s{SH}, s{S_T0}")
        elif AROT:
            e(f"s_mov_b32 s{S_KROT}, s{SH}")
        else:
            e(f"s_mov_b32 s{S_KROT}, s{S_T0}")
        e(f"s_and_b32 s{S_KROT}, s{S_KROT}, 7")
        e(f"s_lshl_b32 s{S_KROT}, s{S_KROT}, 13")
        e(f"s_mul_i32 s{S_RING}, s{S_J}, {wstride}")
        if rbase:
            e(f"s_add_u32 s{S_RING}, s{S_RING}, {rbase}")
        for i in range(8):
            e(f"v_add_u32 v{V_KR+i}, s{S_RING}, v{V_KR+i}")
            e(f"v_add_u32 v{V_VR+i}, s{S_RING}, v{V_VR+i}")

    def issue_kv(n):
        nt_kv = NT_KVB if g == 1 else NT_KVA
        srd_ = SRD_K if n < 8 else SRD_V
        t = n & 7
        slot = n % nslot
        fta = FTA and g == 0 and t == 0
        if fta:
            nt_kv = " nt"
        e(f"s_add_u32 s{S_T0}, s{S_KROT}, {t*8192}")
        e(f"s_and_b32 s{S_T0}, s{S_T0}, 0xffff")
        e(f"s_add_u32 s{S_T0}, s{S_T0}, s{S_KVOFF}")
        for half in range(2):
            e(f"s_add_u32 m0, s{S_RING}, {slot*8192 + half*4096}")
            if half:
                e(f"s_add_u32 s{S_T0}, s{S_T0}, 4096")
            else:
                e("s_nop 0")
            for q in range(4):
                tok = e.vmem(f"buffer_load_dwordx4 v{V_KVD+q}, s[{srd_}:{srd_+3}], s{S_T0} offen offset:{q*1024}{nt_kv} lds")
        kv_tok[n] = tok
        if fta:
            e(f"s_sub_u32 s{S_T0}, s{S_T0}, 4096")
            e.vmem(f"buffer_load_dword v1, v{V_TKV}, s[{srd_}:{srd_+3}], s{S_T0} offen")

    st_tok = {}

    def stage_load(k):
        t = 2 + k
        rb = RST_REG[k]
        e(f"s_add_u32 s{S_T0}, s{S_KROT}, {t*8192}")
        e(f"s_and_b32 s{S_T0}, s{S_T0}, 0xffff")
        e(f"s_add_u32 s{S_T0}, s{S_T0}, s{S_KVOFF}")
        for half in range(2):
            if half:
                e(f"s_add_u32 s{S_T0}, s{S_T0}, 4096")
            for q in range(4):
                st_tok[k] = e.vmem(f"buffer_load_dwordx4 {vr(rb+16*half+4*q,4)}, v{V_KVD+q}, s[{SRD_K}:{SRD_K+3}], s{S_T0} offen offset:{q*1024}{NT_KVB}")

    def stage_flush(k):
        t = 2 + k
        rb = RST_REG[k]
        e.wait_vm(st_tok[k])
        e(f"v_add_u32 v1, s{S_RING}, v{V_L16}")
        for i in range(8):
            e.lds(f"ds_write_b128 v1, {vr(rb+4*i,4)} offset:{(t % nslot)*8192 + i*1024}")
        kv_tok[t] = st_tok[k]

    def touch_kva():
        e(f"s_add_u32 s{S_T0}, s{S_KROT}, s{S_KVOFF}")
        for srd_ in (SRD_K, SRD_V):
            if FTKV == 1:
                e.vmem(f"buffer_load_dword v{V_TD}, v{V_TKV}, s[{srd_}:{srd_+3}], s{S_T0} offen nt")
            e.vmem(f"buffer_load_dword v{V_TD}, v{V_TKV}, s[{srd_}:{srd_+3}], s{S_T0} offen")

    def reads_ks(c, ks):
        fb = QF + 48 * (c & 1) + 12 * ks
        slot = c % NR
        off = wq_piece(slot) + ks * 4096
        for z in range(2):
            e.lds(f"ds_read_b64_tr_b16 {vr(fb+2*z,2)}, v{V_WQR+2*((off>>16)-1)+z} offset:{off & 0xffff}")
        for it in range(2):
            off = x_piece(slot) + it * 4096
            e.lds(f"ds_read_b128 {vr(fb+4+4*it,4)}, v{V_XR+4*(off>>16)+ks} offset:{off & 0xffff}")

    def mfma_ks(c, ks, its=(0, 1)):
        fb = QF + 48 * (c & 1) + 12 * ks
        for it in its:
            acc = QACC + 16 * it
            cc = "0" if ((c & 15) == 0 and ks == 0) else vr(acc, 16)
            e(f"v_mfma_f32_32x32x16_bf16 {vr(acc,16)}, {vr(fb,4)}, {vr(fb+4+4*it,4)}, {cc}")

    def mine(c):
        return 0 <= c < 32 and ((c < 16) == (g == 1))

    def loads(c):
        return c < 32 and ((c <= 18) == (g == 0))

    stamp(e, 0, 124)
    if g == 0:
        ring_setup(1)
        for c in range(NR - 1):
            issue_chunk(c)
    else:
        ring_setup(0, adv=3)
    kv_setup()
    for s in range(32):
        e.comment(f"qproj step {s}")
        if loads(s):
            e.wait_vm(wq_tok[s])
        e("s_barrier")
        for i in range(8):
            if mine(s - 1):
                mfma_ks(s - 1, i >> 1, (i & 1,))
            if mine(s) and i < 4:
                reads_ks(s, i)
        if loads(s + NR - 1):
            issue_chunk(s + NR - 1)
        if s == 8 and OPT.get("qonly"):
            stamp(e, 60, 124)
        if s == 15 and OPT.get("qonly"):
            stamp(e, 61, 124)
        if s == 22 and OPT.get("qonly"):
            stamp(e, 62, 124)
        if s == 31 and OPT.get("qonly"):
            stamp(e, 63, 124)
            stamp(e, 33, 124)
            e("s_endpgm")
        if g == 1 and s == KPRE_STEP and not OPT.get("qonly"):
            issue_kv(0)
        if g == 1 and s == KPRE1 and not OPT.get("qonly"):
            issue_kv(1)
        if g == 1 and RST and s == 17:
            for k in range(16):
                e(f"v_cvt_pk_bf16_f32 v{V_F+k}, v{QACC+2*k}, v{QACC+2*k+1}")
        if g == 1 and s in RST_STEPS[:RST]:
            stage_load(RST_STEPS.index(s))
        if mine(s):
            e("s_waitcnt lgkmcnt(0)")
        if STAMP == 2:
            stamp(e, 1 + s, 124)
    if mine(31):
        for ks in range(4):
            mfma_ks(31, ks)
    if not (g == 1 and RST):
        e("s_nop 15")
        e("s_nop 3")
        for k in range(16):
            e(f"v_cvt_pk_bf16_f32 v{V_F+k}, v{QACC+2*k}, v{QACC+2*k+1}")
    for it in range(2):
        for ss in range(2):
            e(f"ds_write_b128 v{V_QXW}, {vr(V_F+8*it+4*ss,4)} offset:{it*8192+ss*1024}")
    e(f"s_lshr_b32 s{S_T1}, s{S_J}, 1")
    e(f"s_lshl_b32 s{S_T1}, s{S_T1}, 13")
    e(f"s_add_u32 s{S_T1}, s{S_T1}, {XCH + g*16384}")
    e(f"v_add_u32 v{V_T}, s{S_T1}, v{V_L16}")
    e("s_waitcnt lgkmcnt(0)")
    e("s_barrier")
    for s in range(8):
        e(f"ds_read_b128 {vr(V_Q+4*s,4)}, v{V_T} offset:{s*1024}")
    e("s_waitcnt lgkmcnt(0)")
    e("s_barrier")
    def refill(n):
        if g == 1 and 2 <= n < 2 + RST:
            stage_flush(n - 2)
        else:
            issue_kv(n)

    for n in range(2 if (g == 1 and not OPT.get("qonly")) else 0, nslot):
        refill(n)
    stamp(e, 33, V_T + 2)

    VMX = V_T
    VM, VMC, VL, VE, VP = V_Q, V_Q + 1, V_Q + 2, V_Q + 8, V_Q + 16

    def max_tile(t):
        b = V_S + 16 * t
        for ch in range(2):
            bb = b + 8 * ch
            if t == 0:
                e(f"v_max3_f32 v{VMX+ch}, v{bb}, v{bb+1}, v{bb+2}")
                e(f"v_max3_f32 v{VMX+ch}, v{VMX+ch}, v{bb+3}, v{bb+4}")
                e(f"v_max3_f32 v{VMX+ch}, v{VMX+ch}, v{bb+5}, v{bb+6}")
                e(f"v_max_f32 v{VMX+ch}, v{VMX+ch}, v{bb+7}")
            else:
                for k in range(4):
                    e(f"v_max3_f32 v{VMX+ch}, v{VMX+ch}, v{bb+2*k}, v{bb+2*k+1}")

    def exp_tile(t):
        p = VP + 8 * (t & 1)
        for hf in range(2):
            b = V_S + 16 * t + 8 * hf
            for i in range(8):
                e(f"v_fma_f32 v{VE+i}, v{b+i}, s{S_C}, -v{VMC}")
            for i in range(8):
                e(f"v_exp_f32 v{VE+i}, v{VE+i}")
            e("s_nop 0")
            for i in range(8):
                e(f"v_add_f32 v{VL+(i&3)}, v{VL+(i&3)}, v{VE+i}")
            for k in range(4):
                e(f"v_cvt_pk_bf16_f32 v{p+4*hf+k}, v{VE+2*k}, v{VE+2*k+1}")

    for t in range(8):
        e.comment(f"K tile {t}")
        if PACE == 2 and t > 0:
            e("s_barrier")
        e.wait_vm(kv_tok[t])
        if PACE == 1 and t > 0:
            e("s_barrier")
        toks = []
        for s in range(8):
            toks.append(e.lds(f"ds_read_b128 {vr(V_F+4*s,4)}, v{V_KR+s} offset:{(t%nslot)*8192}"))
        if t > 0:
            max_tile(t - 1)
        for s in range(8):
            e.wait_lds(toks[s])
            c = "0" if s == 0 else vr(V_S + 16 * t, 16)
            e(f"v_mfma_f32_32x32x16_bf16 {vr(V_S+16*t,16)}, {vr(V_F+4*s,4)}, {vr(V_Q+4*s,4)}, {c}")
        refill(t + nslot)
        if STAMP == 2:
            stamp(e, 34 + t, V_T + 2)
    e("s_nop 7")
    max_tile(7)
    e(f"v_max_f32 v{VMX}, v{VMX}, v{VMX+1}")
    e(f"v_mov_b32 v{VMX+1}, v{VMX}")
    e("s_nop 1")
    e(f"v_permlane32_swap_b32 v{VMX}, v{VMX+1}")
    e("s_nop 1")
    e(f"v_max_f32 v{VM}, v{VMX}, v{VMX+1}")
    e(f"v_mul_f32 v{VMC}, s{S_C}, v{VM}")
    for i in range(4):
        e(f"v_mov_b32 v{VL+i}, 0")
    exp_tile(0)
    exp_tile(1)
    OA = [V_S, V_S + 16, V_G, V_G + 16]
    for t in range(8):
        n = 8 + t
        if PACE == 2:
            e("s_barrier")
        e.wait_vm(kv_tok[n])
        if PACE == 1:
            e("s_barrier")
        toks = []
        for u in range(2):
            for dt in range(4):
                for z in range(2):
                    toks.append(e.lds(f"ds_read_b64_tr_b16 {vr(V_F+16*u+4*dt+2*z,2)}, v{V_VR+2*dt+z} offset:{(n%nslot)*8192+u*4096}"))
        p = VP + 8 * (t & 1)
        for u in range(2):
            for dt in range(4):
                e.wait_lds(toks[8 * u + 2 * dt + 1])
                c = "0" if (t == 0 and u == 0) else vr(OA[dt], 16)
                e(f"v_mfma_f32_32x32x16_bf16 {vr(OA[dt],16)}, {vr(V_F+16*u+4*dt,4)}, {vr(p+4*u,4)}, {c}")
        if n + nslot < 16:
            issue_kv(n + nslot)
        if t + 2 < 8:
            exp_tile(t + 2)
        if STAMP == 2:
            stamp(e, 42 + t, V_T + 2)
    stamp(e, 60, V_T + 2)
    e(f"v_add_f32 v{VL}, v{VL}, v{VL+1}")
    e(f"v_add_f32 v{VL+2}, v{VL+2}, v{VL+3}")
    e(f"v_add_f32 v{VL}, v{VL}, v{VL+2}")
    e(f"v_mov_b32 v{VL+1}, v{VL}")
    e("s_nop 1")
    e(f"v_permlane32_swap_b32 v{VL}, v{VL+1}")
    e("s_nop 1")
    e(f"v_add_f32 v{VM+1}, v{VL}, v{VL+1}")
    e("s_nop 15")
    lab = f"L_k1_g{g}"
    e(f"v_add_u32 v{V_T+1}, s{S_RING}, v{V_L16}")
    e(f"s_xor_b32 s{S_T1}, s{S_J}, 1")
    e(f"s_mul_i32 s{S_T1}, s{S_T1}, {wstride}")
    if rbase:
        e(f"s_add_u32 s{S_T1}, s{S_T1}, {rbase}")
    e(f"v_add_u32 v{V_T+2}, s{S_T1}, v{V_L16}")
    e(f"v_lshlrev_b32 v{V_T+3}, 3, v0")
    e(f"v_add_u32 v1, s{S_T1}, v{V_T+3}")
    e(f"v_add_u32 v{V_T+3}, s{S_RING}, v{V_T+3}")
    e(f"ds_write_b64 v{V_T+3}, {vr(VM,2)} offset:8192")
    e(f"s_and_b32 s{S_T2}, s{S_J}, 1")
    e(f"s_cmp_eq_u32 s{S_T2}, 1")
    e(f"s_cbranch_scc1 {lab}_j1")
    for k in range(8):
        e(f"ds_write_b128 v{V_T+1}, {vr(V_G+4*k,4)} offset:{k*1024}")
    e(f"s_branch {lab}_jd")
    e.label(f"{lab}_j1")
    for k in range(8):
        e(f"ds_write_b128 v{V_T+1}, {vr(V_S+4*k,4)} offset:{k*1024}")
    e("s_waitcnt lgkmcnt(0)")
    for k in range(32):
        e(f"v_mov_b32 v{V_S+k}, v{V_G+k}")
    e.label(f"{lab}_jd")
    e("s_waitcnt lgkmcnt(0)")
    e("s_barrier")
    PO = V_F
    OACC = V_S
    e(f"ds_read_b64 {vr(VM+2,2)}, v1 offset:8192")
    for k in range(8):
        e(f"ds_read_b128 {vr(PO+4*k,4)}, v{V_T+2} offset:{k*1024}")
    e("s_waitcnt lgkmcnt(8)")
    MT, FA_, FB_, LT = VM + 4, VM + 5, VM + 6, VM + 7
    e(f"v_max_f32 v{MT}, v{VM}, v{VM+2}")
    e(f"v_sub_f32 v{FA_}, v{VM}, v{MT}")
    e(f"v_sub_f32 v{FB_}, v{VM+2}, v{MT}")
    e(f"v_mul_f32 v{FA_}, s{S_C}, v{FA_}")
    e(f"v_mul_f32 v{FB_}, s{S_C}, v{FB_}")
    e(f"v_exp_f32 v{FA_}, v{FA_}")
    e(f"v_exp_f32 v{FB_}, v{FB_}")
    e("s_nop 0")
    e(f"v_mul_f32 v{LT}, v{VM+1}, v{FA_}")
    e(f"v_fma_f32 v{LT}, v{VM+3}, v{FB_}, v{LT}")
    e(f"v_rcp_f32 v{LT}, v{LT}")
    e("s_nop 0")
    e(f"v_mul_f32 v{FA_}, v{FA_}, v{LT}")
    e(f"v_mul_f32 v{FB_}, v{FB_}, v{LT}")
    e(f"s_lshl_b32 s{S_T0}, s{SBP}, 5")
    e(f"s_add_u32 s{S_T0}, s{S_T0}, s{SH}")
    e(f"s_lshl_b32 s{S_T0}, s{S_T0}, 14")
    e(f"s_lshl_b32 s{S_T1}, s{S_J}, 12")
    e(f"s_add_u32 s{S_T0}, s{S_T0}, s{S_T1}")
    e("s_waitcnt lgkmcnt(0)")
    for k in range(32):
        e(f"v_mul_f32 v{OACC+k}, v{OACC+k}, v{FA_}")
        e(f"v_fma_f32 v{OACC+k}, v{PO+k}, v{FB_}, v{OACC+k}")
    for k in range(16):
        e(f"v_cvt_pk_bf16_f32 v{PO+k}, v{OACC+2*k}, v{OACC+2*k+1}")
    for fr in range(4):
        e(f"buffer_store_dwordx4 {vr(PO+4*fr,4)}, v{V_L16}, s[{SRD_O}:{SRD_O+3}], s{S_T0} offen offset:{fr*1024}{NT_OST}")
    if g == 0:
        e("s_branch L_oproj")


def emit_k1(e):
    emit_k1_prologue(e)
    emit_k1_role(e, 0)
    e.label("L_k1_B")
    emit_k1_role(e, 1)
    emit_oproj(e)
    e.label("L_k1_end")
    e("s_endpgm")


PART_OFF = 32 << 20
NMIN = int(OPT.get("nmin", "3"))
SPIN = 0x40000


def emit_oproj(e):
    NSS = 5
    e.label("L_oproj")
    e.vm_issued = 0
    e.lg_issued = 0
    S_BR, S_KQ, S_MT, S_NT, S_MS, S_KH = 85, 86, 87, 13, 15, 6
    SRD_A, SRD_W, SRD_OUT, SRD_P = 44, 48, 52, 56
    SRD_F, SRD_D = 64, 68
    S_OOFF, S_WOFF, S_W4K, S_T0k, S_T1k, S_ORD, S_MASK, S_CNT, S_FL = 72, 73, 74, 77, 78, 80, 81, 82, 14
    S_T2k, S_ROT = 79, 75
    V_WD = 6
    V_WR = 10
    T0, T1, T2, T3, T4, T5 = range(26, 32)
    V_FA, V_ONE, V_L4, V_CN = 32, 33, 34, 35
    V_RW, V_RR, V_OA, V_FA2 = 36, 37, 38, 39
    FO = 80
    FA = 128
    ACC = 192
    e(f"s_lshr_b32 s{S_BR}, s{S_XCD}, 2")
    e(f"s_and_b32 s{S_KQ}, s{S_XCD}, 3")
    e(f"s_lshr_b32 s{S_MT}, s{S_CI}, 3")
    e(f"s_and_b32 s{S_NT}, s{S_CI}, 7")
    e(f"s_and_b32 s{S_MS}, s{S_W}, 3")
    e(f"s_lshr_b32 s{S_KH}, s{S_W}, 2")
    e(f"s_lshl_b32 s{S_FL}, s2, 8")
    e(f"v_lshlrev_b32 v{V_L4}, 2, v0")
    e(f"v_mov_b32 v{V_ONE}, 1")
    e(f"v_mov_b32 v{T0}, 0")
    e(f"s_cmp_lg_u32 s{S_W}, 0")
    e("s_cbranch_scc1 L_op_nocnt")
    e(f"buffer_load_dword v{V_CN}, v{T0}, s[{SRD_D}:{SRD_D+3}], 0 offen sc1")
    e.label("L_op_nocnt")
    for br, sh, sbp, dst in ((0, S_HA, S_BPA, S_T0k), (1, S_HB, S_BPB, S_T1k)):
        e(f"s_lshr_b32 s{dst}, s{sbp}, 1")
        e(f"s_lshl_b32 s{dst}, s{dst}, 6")
        e(f"s_lshr_b32 s{S_T2k}, s{sh}, 3")
        e(f"s_add_u32 s{dst}, s{dst}, s{S_T2k}")
        if br:
            e(f"s_add_u32 s{dst}, s{dst}, 4")
        e(f"s_lshl_b32 s{dst}, s{dst}, 8")
        e(f"s_and_b32 s{S_T2k}, s{sbp}, 1")
        e(f"s_lshl_b32 s{S_T2k}, s{S_T2k}, 5")
        e(f"s_add_u32 s{dst}, s{dst}, s{S_T2k}")
        e(f"s_and_b32 s{S_T2k}, s{sh}, 7")
        e(f"s_lshl_b32 s{S_T2k}, s{S_T2k}, 2")
        e(f"s_add_u32 s{dst}, s{dst}, s{S_T2k}")
    e(f"v_mov_b32 v{T1}, s{S_T0k}")
    e(f"v_mov_b32 v{T2}, s{S_T1k}")
    e(f"v_cmp_gt_u32 vcc, 8, v0")
    e(f"v_and_b32 v{T3}, 7, v0")
    e(f"v_lshlrev_b32 v{T3}, 11, v{T3}")
    e(f"v_cndmask_b32 v{V_FA}, v{T2}, v{T1}, vcc")
    e(f"v_add_u32 v{V_FA}, v{V_FA}, v{T3}")
    e(f"s_lshl_b32 s{S_T0k}, s{S_CI}, 3")
    e(f"s_lshl_b32 s{S_T1k}, s{S_BR}, 2")
    e(f"s_add_u32 s{S_T0k}, s{S_T0k}, s{S_T1k}")
    e(f"s_lshl_b32 s{S_T0k}, s{S_T0k}, 8")
    e(f"s_lshl_b32 s{S_T1k}, s{S_KQ}, 2")
    e(f"s_add_u32 s{S_T0k}, s{S_T0k}, s{S_T1k}")
    e(f"s_add_u32 s{S_T0k}, s{S_T0k}, 64")
    e(f"v_lshlrev_b32 v{V_FA2}, 8, v0")
    e(f"v_add_u32 v{V_FA2}, s{S_T0k}, v{V_FA2}")
    e(f"s_cmp_eq_u32 s{S_BR}, 1")
    e(f"s_cselect_b32 s{SRD_W}, s34, s24")
    e(f"s_cselect_b32 s{SRD_W+1}, s35, s25")
    e(f"s_and_b32 s{SRD_W+1}, s{SRD_W+1}, 0xffff")
    e(f"s_mov_b32 s{SRD_W+2}, {8<<20:#x}")
    e(f"s_mov_b32 s{SRD_W+3}, 0x20000")
    srd(e, SRD_A, 40, 41, 8 << 20)
    srd(e, SRD_OUT, 36, 37, 2 << 20)
    srd(e, SRD_P, 40, 41, 16 << 20, add=PART_OFF)
    e(f"s_lshl_b32 s{S_OOFF}, s{S_BR}, 22")
    e(f"s_lshl_b32 s{S_T0k}, s{S_MT}, 20")
    e(f"s_add_u32 s{S_OOFF}, s{S_OOFF}, s{S_T0k}")
    e(f"s_lshr_b32 s{S_T0k}, s{S_MS}, 1")
    e(f"s_lshl_b32 s{S_T0k}, s{S_T0k}, 19")
    e(f"s_add_u32 s{S_OOFF}, s{S_OOFF}, s{S_T0k}")
    e(f"s_lshl_b32 s{S_T0k}, s{S_KQ}, 17")
    e(f"s_add_u32 s{S_OOFF}, s{S_OOFF}, s{S_T0k}")
    e(f"s_and_b32 s{S_T0k}, s{S_MS}, 1")
    e(f"s_lshl_b32 s{S_T0k}, s{S_T0k}, 13")
    e(f"s_add_u32 s{S_OOFF}, s{S_OOFF}, s{S_T0k}")
    e(f"s_lshl_b32 s{S_T0k}, s{S_KH}, 12")
    e(f"s_add_u32 s{S_OOFF}, s{S_OOFF}, s{S_T0k}")
    e(f"s_lshl_b32 s{S_WOFF}, s{S_KQ}, 21")
    e(f"s_lshl_b32 s{S_T0k}, s{S_W}, 15")
    e(f"s_add_u32 s{S_WOFF}, s{S_WOFF}, s{S_T0k}")
    e(f"s_lshl_b32 s{S_T0k}, s{S_NT}, 8")
    e(f"s_add_u32 s{S_WOFF}, s{S_WOFF}, s{S_T0k}")
    e(f"s_lshl_b32 s{S_W4K}, s{S_W}, 12")
    e(f"s_lshl_b32 s{S_ROT}, s{S_MT}, 1")
    e(f"s_add_u32 s{S_ROT}, s{S_ROT}, s{S_NT}")
    e(f"v_lshrrev_b32 v{T0}, 4, v0")
    e(f"v_and_b32 v{T1}, 15, v0")
    e(f"v_lshlrev_b32 v{T2}, 2, v{T0}")
    e(f"v_xor_b32 v{T1}, v{T1}, v{T2}")
    e(f"v_lshlrev_b32 v{T1}, 4, v{T1}")
    e(f"v_lshlrev_b32 v{T2}, 11, v{T0}")
    e(f"v_add_u32 v{V_WD}, v{T1}, v{T2}")
    for q in range(1, 4):
        e(f"v_xor_b32 v{V_WD+q}, {16*q}, v{V_WD}")
        e(f"v_add_u32 v{V_WD+q}, {q*(8192-1024)}, v{V_WD+q}")
    e(f"v_lshrrev_b32 v{T3}, 5, v0")
    e(f"v_and_b32 v{T1}, 1, v{T0}")
    e(f"v_lshrrev_b32 v{T2}, 2, v0")
    e(f"v_and_b32 v{T2}, 3, v{T2}")
    e(f"v_and_b32 v{T4}, 1, v0")
    e(f"v_lshlrev_b32 v{T4}, 1, v{T4}")
    e(f"v_or_b32 v{T4}, v{T4}, v{T1}")
    e(f"v_lshlrev_b32 v{T4}, 4, v{T4}")
    e(f"v_lshrrev_b32 v{T5}, 1, v0")
    e(f"v_and_b32 v{T5}, 1, v{T5}")
    e(f"v_lshlrev_b32 v{T5}, 3, v{T5}")
    e(f"v_add_u32 v{T4}, v{T4}, v{T5}")
    e(f"v_lshlrev_b32 v{T5}, 6, v{T2}")
    e(f"v_add_u32 v{T4}, v{T4}, v{T5}")
    e(f"v_lshlrev_b32 v{T5}, 4, v{T3}")
    e(f"v_add_u32 v{T5}, v{T5}, v{T2}")
    e(f"v_lshlrev_b32 v{T5}, 8, v{T5}")
    e(f"v_add_u32 v{T4}, v{T4}, v{T5}")
    e(f"s_lshl_b32 s{S_T1k}, s{S_KH}, 14")
    e(f"v_add_u32 v{V_WR}, s{S_T1k}, v{T4}")
    for nt in range(4):
        for ee in range(2):
            for z in range(2):
                i = 4 * nt + 2 * ee + z
                if i:
                    e(f"v_xor_b32 v{V_WR+i}, {64*nt + 16*(2*ee+z) + (8*ee+4*z)*256}, v{V_WR}")
    e(f"s_lshl_b32 s{S_T0k}, s{S_W}, 13")
    e(f"v_add_u32 v{V_RW}, s{S_T0k}, v{V_L16}")
    e(f"s_xor_b32 s{S_T0k}, s{S_T0k}, {4*8192}")
    e(f"v_add_u32 v{V_RR}, s{S_T0k}, v{V_L16}")
    e(f"v_and_b32 v{V_OA}, 31, v0")
    e(f"v_lshlrev_b32 v{V_OA}, 12, v{V_OA}")
    e(f"v_lshlrev_b32 v{T4}, 5, v{T3}")
    e(f"v_add_u32 v{V_OA}, v{V_OA}, v{T4}")
    e(f"s_mov_b32 s{S_ORD}, 0")
    for i in range(8):
        e(f"s_add_u32 s{S_T0k}, s{S_ROT}, {i}")
        e(f"s_and_b32 s{S_T0k}, s{S_T0k}, 7")
        e(f"s_lshl_b32 s{S_T0k}, s{S_T0k}, {4*i}")
        e(f"s_or_b32 s{S_ORD}, s{S_ORD}, s{S_T0k}")
    e(f"s_cmp_lg_u32 s{S_W}, 0")
    e("s_cbranch_scc1 L_op_noep")
    e(f"buffer_load_dword v41, v{V_L4}, s[{SRD_F}:{SRD_F+3}], s{S_FL} offen sc1")
    e.label("L_op_noep")
    e("s_waitcnt vmcnt(0)")
    e("s_barrier")
    e(f"s_cmp_lg_u32 s{S_W}, 0")
    e("s_cbranch_scc1 L_op_w0done")
    e(f"s_mov_b32 s{S_CNT}, {SPIN}")
    e.label("L_op_cnt")
    e(f"v_readfirstlane_b32 s{S_T0k}, v{V_CN}")
    e(f"s_sub_u32 s{S_CNT}, s{S_CNT}, 1")
    e(f"s_and_b32 s{S_T0k}, s{S_T0k}, 255")
    e(f"s_cmp_eq_u32 s{S_T0k}, 0")
    e("s_cbranch_scc1 L_op_cntok")
    e(f"s_cmp_eq_u32 s{S_CNT}, 0")
    e("s_cbranch_scc1 L_op_cntok")
    e("s_sleep 16")
    e(f"v_mov_b32 v{T0}, 0")
    e(f"buffer_load_dword v{V_CN}, v{T0}, s[{SRD_D}:{SRD_D+3}], 0 offen sc1")
    e("s_waitcnt vmcnt(0)")
    e("s_branch L_op_cnt")
    e.label("L_op_cntok")
    e("s_mov_b64 exec, 0xffff")
    e(f"buffer_store_dword v{V_ONE}, v{V_FA}, s[{SRD_F}:{SRD_F+3}], 0 offen sc1")
    e("s_mov_b64 exec, -1")

    def poll(lab):
        e(f"buffer_load_dword v{T2}, v{V_L4}, s[{SRD_F}:{SRD_F+3}], s{S_FL} offen sc1")
        e("s_waitcnt vmcnt(0)")
        e(f"v_cmp_eq_u32 vcc, 1, v{T2}")
        e("s_nop 3")
        e(f"s_lshr_b32 s{S_T0k}, vcc_lo, 8")
        e(f"s_and_b32 s{S_T0k}, s{S_T0k}, vcc_lo")
        e(f"s_and_b32 s{S_T0k}, s{S_T0k}, 0xff")
        e(f"s_and_b32 s{S_MASK}, vcc_lo, 0xf0000")
        e(f"s_or_b32 s{S_MASK}, s{S_MASK}, s{S_T0k}")

    e(f"v_cmp_eq_u32 vcc, 1, v41")
    e("s_nop 3")
    e(f"s_lshr_b32 s{S_T0k}, vcc_lo, 8")
    e(f"s_and_b32 s{S_T0k}, s{S_T0k}, vcc_lo")
    e(f"s_and_b32 s{S_MASK}, s{S_T0k}, 0xff")
    e.label("L_op_w0done")

    wtok, otok = {}, {}

    def w_pieces(s):
        slot = (s % NSS) * 32768

        def p0():
            e(f"s_bfe_u32 s{S_T1k}, s{S_ORD}, {(4 << 16) | (4 * s):#x}")
            e(f"s_add_u32 m0, s{S_W4K}, {slot}")
            e(f"s_lshl_b32 s{S_T1k}, s{S_T1k}, 18")
            e(f"s_add_u32 s{S_T1k}, s{S_T1k}, s{S_WOFF}")
            e.vmem(f"buffer_load_dwordx4 v{V_WD}, s[{SRD_W}:{SRD_W+3}], s{S_T1k} offen{NT_WO} lds")
        ps = [p0]
        for q in range(1, 4):
            def pq(q=q):
                wtok[s] = e.vmem(f"buffer_load_dwordx4 v{V_WD+q}, s[{SRD_W}:{SRD_W+3}], s{S_T1k} offen offset:{q*1024}{NT_WO} lds")
            ps.append(pq)
        return ps

    def o_pieces(s):
        fo = FO + 16 * (s % 3)

        def p0():
            e(f"s_bfe_u32 s{S_T0k}, s{S_ORD}, {(4 << 16) | (4 * s):#x}")
            e(f"s_lshl_b32 s{S_T0k}, s{S_T0k}, 14")
            e(f"s_add_u32 s{S_T0k}, s{S_T0k}, s{S_OOFF}")
            e.vmem(f"buffer_load_dwordx4 {vr(fo,4)}, v{V_L16}, s[{SRD_A}:{SRD_A+3}], s{S_T0k} offen{NT_OLD}")
        ps = [p0]
        for q in range(1, 4):
            def pq(q=q):
                otok[s] = e.vmem(f"buffer_load_dwordx4 {vr(fo+4*q,4)}, v{V_L16}, s[{SRD_A}:{SRD_A+3}], s{S_T0k} offen offset:{q*1024}{NT_OLD}")
            ps.append(pq)
        return ps

    page = [0]

    def set_page(p):
        if p != page[0]:
            d = (p - page[0]) * 65536
            for i in range(16):
                e(f"v_add_u32 v{V_WR+i}, {d & 0xffffffff:#x}, v{V_WR+i}")
            page[0] = p

    rbuf = {}
    nb = [0]

    def reads(s, q):
        b = nb[0] % 3
        nb[0] += 1
        rbuf[(s, q)] = b
        fb = FA + 16 * b
        off = ((s % NSS) * 32768 & 0xffff) + (q >> 1) * 8192
        ee = q & 1
        t = None
        for nt in range(4):
            for z in range(2):
                t = e.lds(f"ds_read_b64_tr_b16 {vr(fb+4*nt+2*z,2)}, v{V_WR+4*nt+2*ee+z} offset:{off}")
        return t

    def mf(s, q, nt):
        fb = FA + 16 * rbuf[(s, q)]
        fo = FO + 16 * (s % 3)
        c = "0" if (s == 0 and q == 0) else vr(ACC + 16 * nt, 16)
        e(f"v_mfma_f32_32x32x16_bf16 {vr(ACC+16*nt,16)}, {vr(fb+4*nt,4)}, {vr(fo+4*q,4)}, {c}")

    def need(pos, lab):
        e(f"s_cmp_lg_u32 s{S_W}, 0")
        e(f"s_cbranch_scc1 {lab}r")
        e(f"s_mov_b32 s{S_CNT}, {SPIN}")
        e.label(f"{lab}c")
        e(f"s_bfe_u32 s{S_T2k}, s{S_ORD}, {(4 << 16) | (4 * pos):#x}")
        e(f"s_bitcmp1_b32 s{S_MASK}, s{S_T2k}")
        e(f"s_cbranch_scc1 {lab}r")
        e(f"s_sub_u32 s{S_CNT}, s{S_CNT}, 1")
        e(f"s_cmp_eq_u32 s{S_CNT}, 0")
        e(f"s_cbranch_scc1 {lab}r")
        poll(lab)
        e(f"s_branch {lab}c")
        e.label(f"{lab}r")

    NPW = int(OPT.get("npw", "2"))
    for sw in range(NPW):
        for p_ in w_pieces(sw):
            p_()
    need(0, "L_op_n0")
    need(1, "L_op_n1")
    e("s_barrier")
    stamp(e, 62, 40)
    for p_ in o_pieces(0) + o_pieces(1):
        p_()
    for sw in range(NPW, 4):
        for p_ in w_pieces(sw):
            p_()
    for s in range(8):
        e.comment(f"oproj step {s}")
        set_page(((s % NSS) * 32768) >> 16)
        if s + 2 < 8:
            e(f"s_cmp_lg_u32 s{S_W}, 0")
            e(f"s_cbranch_scc1 L_op_rdy{s}")
            e(f"s_mov_b32 s{S_CNT}, {SPIN}")
            e.label(f"L_op_chk{s}")
            e(f"s_bfe_u32 s{S_T2k}, s{S_ORD}, {(4 << 16) | (4 * (s + 2)):#x}")
            e(f"s_bitcmp1_b32 s{S_MASK}, s{S_T2k}")
            e(f"s_cbranch_scc1 L_op_rdy{s}")
            e(f"s_sub_u32 s{S_CNT}, s{S_CNT}, 1")
            e(f"s_cmp_eq_u32 s{S_CNT}, 0")
            e(f"s_cbranch_scc1 L_op_rdy{s}")
            poll(f"c{s}")
            e(f"s_branch L_op_chk{s}")
            e.label(f"L_op_rdy{s}")
        e.wait_vm(max(wtok[s], otok[s]))
        e("s_barrier")
        pcs = (o_pieces(s + 2) if s + 2 < 8 else []) + (w_pieces(s + 4) if s + 4 < 8 else [])
        pcs += [lambda: None] * (8 - len(pcs))
        rt = {}
        rt[0] = reads(s, 0)
        if s > 0:
            mf(s - 1, 3, 0)
            mf(s - 1, 3, 1)
        rt[1] = reads(s, 1)
        if s > 0:
            mf(s - 1, 3, 2)
            mf(s - 1, 3, 3)
        k = 0
        for q in range(3):
            e.wait_lds(rt[q])
            for nt in range(4):
                mf(s, q, nt)
                if nt == 0 and q + 2 < 4:
                    rt[q + 2] = reads(s, q + 2)
                elif nt > 0 and k < 8:
                    pcs[k]()
                    k += 1
        e.wait_lds(rt[3])
        if STAMP == 3:
            stamp(e, 1 + s, 40)
    for nt in range(4):
        mf(7, 3, nt)
    e("s_nop 15")
    e("s_nop 3")
    e("s_barrier")
    e(f"s_cmp_eq_u32 s{S_KH}, 1")
    e("s_cbranch_scc1 L_op_kh1")
    for k in range(8):
        e(f"ds_write_b128 v{V_RW}, {vr(ACC+32+4*k,4)} offset:{k*1024}")
    e("s_branch L_op_khd")
    e.label("L_op_kh1")
    for k in range(8):
        e(f"ds_write_b128 v{V_RW}, {vr(ACC+4*k,4)} offset:{k*1024}")
    e("s_waitcnt lgkmcnt(0)")
    for k in range(32):
        e(f"v_mov_b32 v{ACC+k}, v{ACC+32+k}")
    e.label("L_op_khd")
    e(f"s_lshl_b32 s{S_T2k}, s{S_BR}, 5")
    e(f"s_add_u32 s{S_T2k}, s{S_T2k}, s{S_CI}")
    e(f"s_lshl_b32 s{S_T2k}, s{S_T2k}, 18")
    e(f"s_lshl_b32 s{S_T0k}, s{S_MS}, 16")
    e(f"s_add_u32 s{S_T0k}, s{S_T0k}, s{S_T2k}")
    e(f"s_lshl_b32 s{S_T1k}, s{S_KQ}, 14")
    e(f"s_add_u32 s{S_T0k}, s{S_T0k}, s{S_T1k}")
    e(f"s_lshl_b32 s{S_T1k}, s{S_KH}, 13")
    e(f"s_add_u32 s{S_T0k}, s{S_T0k}, s{S_T1k}")
    e(f"s_add_u32 s{S_T1k}, s{S_T0k}, 4096")
    e("s_waitcnt lgkmcnt(0)")
    e("s_barrier")
    for k in range(8):
        e(f"ds_read_b128 {vr(FA+4*k,4)}, v{V_RR} offset:{k*1024}")
    for k in range(8):
        e(f"s_waitcnt lgkmcnt({7-k})")
        for r in range(4):
            e(f"v_add_f32 v{ACC+4*k+r}, v{ACC+4*k+r}, v{FA+4*k+r}")
        so = S_T0k if k < 4 else S_T1k
        e(f"buffer_store_dwordx4 {vr(ACC+4*k,4)}, v{V_L16}, s[{SRD_P}:{SRD_P+3}], s{so} offen offset:{(k&3)*1024} sc1")
    e(f"s_lshl_b32 s{S_T0k}, s{S_KQ}, 16")
    e(f"s_add_u32 s{S_T2k}, s{S_T2k}, s{S_T0k}")
    e(f"s_lshl_b32 s{S_T0k}, s{S_W}, 11")
    e(f"s_add_u32 s{S_T2k}, s{S_T2k}, s{S_T0k}")
    e(f"s_mov_b32 s{S_OOFF}, s{S_T2k}")
    e(f"s_lshl_b32 s{S_WOFF}, s{S_MT}, 19")
    e(f"s_lshl_b32 s{S_T0k}, s{S_KQ}, 17")
    e(f"s_add_u32 s{S_WOFF}, s{S_WOFF}, s{S_T0k}")
    e(f"s_lshl_b32 s{S_T0k}, s{S_BR}, 11")
    e(f"s_add_u32 s{S_WOFF}, s{S_WOFF}, s{S_T0k}")
    e(f"s_lshl_b32 s{S_T0k}, s{S_NT}, 8")
    e(f"s_add_u32 s{S_WOFF}, s{S_WOFF}, s{S_T0k}")
    e(f"s_lshr_b32 s{S_T0k}, s{S_W}, 1")
    e(f"s_lshl_b32 s{S_T0k}, s{S_T0k}, 6")
    e(f"s_add_u32 s{S_WOFF}, s{S_WOFF}, s{S_T0k}")
    e(f"s_and_b32 s{S_T0k}, s{S_W}, 1")
    e(f"s_lshl_b32 s{S_T0k}, s{S_T0k}, 4")
    e(f"s_add_u32 s{S_WOFF}, s{S_WOFF}, s{S_T0k}")
    e("s_waitcnt vmcnt(0)")
    e("s_barrier")
    stamp(e, 61, 40)
    e(f"s_cmp_lg_u32 s{S_W}, 0")
    e("s_cbranch_scc1 L_op_fin")
    e("s_mov_b64 exec, 0xf")
    e(f"buffer_store_dword v{V_ONE}, v{V_FA2}, s[{SRD_F}:{SRD_F+3}], 0 offen sc1")
    e("s_mov_b64 exec, -1")
    e(f"s_mov_b32 s{S_CNT}, {SPIN}")
    e.label("L_op_poll2")
    poll("p2")
    e(f"s_lshr_b32 s{S_T0k}, s{S_MASK}, 16")
    e(f"s_cmp_eq_u32 s{S_T0k}, 15")
    e("s_cbranch_scc1 L_op_fin")
    e(f"s_sub_u32 s{S_CNT}, s{S_CNT}, 1")
    e(f"s_cmp_eq_u32 s{S_CNT}, 0")
    e("s_cbranch_scc1 L_op_fin")
    e("s_sleep 2")
    e("s_branch L_op_poll2")
    e.label("L_op_fin")
    e("s_barrier")
    for src in range(4):
        for q in range(2):
            e(f"buffer_load_dwordx4 {vr(FA+8*src+4*q,4)}, v{V_L16}, s[{SRD_P}:{SRD_P+3}], s{S_OOFF} offen offset:{q*1024} sc1")
        if src < 3:
            e(f"s_add_u32 s{S_OOFF}, s{S_OOFF}, 16384")
    e("s_waitcnt vmcnt(0)")
    for r in range(8):
        e(f"v_add_f32 v{FA+r}, v{FA+r}, v{FA+8+r}")
        e(f"v_add_f32 v{FA+16+r}, v{FA+16+r}, v{FA+24+r}")
    for r in range(8):
        e(f"v_add_f32 v{FA+r}, v{FA+r}, v{FA+16+r}")
    for k in range(4):
        e(f"v_cvt_pk_bf16_f32 v{FA+32+k}, v{FA+2*k}, v{FA+2*k+1}")
    e(f"buffer_store_dwordx4 {vr(FA+32,4)}, v{V_OA}, s[{SRD_OUT}:{SRD_OUT+3}], s{S_WOFF} offen")
    if STAMP:
        e("s_waitcnt vmcnt(0)")
    stamp(e, 63, 40)


e = Em()
emit_k1(e)
txt = HEADER + e.text() + '.section .rodata,"a"\n.p2align 6\n' + kernel_desc("concat_heads__gqa_block_cached__mha_block_cached__near_ridge_kernel")
open(OUT, "w").write(txt)
print("wrote", OUT, len(txt), "bytes")
```

```python
import sys, math, struct
sys.path.insert(0, "tools")
from asmlib import Em, vr, sr, kernel_desc

OUT = sys.argv[1] if len(sys.argv) > 1 else "concat_heads__gqa_block_cached__mha_block_cached__near_ridge.s"
OPT = dict(a.split("=") for a in sys.argv[2:])


def pol(name, dflt):
    v = OPT.get(name, dflt).strip()
    return "" if v in ("", "0") else " " + v.replace("+", " ")


NT_KVB = pol("nt_kvb", "nt")
NT_KVA = pol("nt_kva", "0")
NT_W = pol("nt_w", "0")
NT_X = pol("nt_x", "0")
NT_WO = pol("nt_wo", "0")
NT_OST = pol("nt_ost", "sc1")
NT_OLD = pol("nt_old", "sc1")
STAMP = int(OPT.get("stamp", "0"))
ONLY = OPT.get("only", "")
GRPBIT = int(OPT.get("grpbit", "4"))
FT = int(OPT.get("ft", "0"))
FT2 = int(OPT.get("ft2", "0"))
FT2O = int(OPT.get("ft2o", "0"))
KPRE_STEP = int(OPT.get("kpre_step", "2"))
SRD_ST = 88


def srd(e, dst, lo, hi, size, add=0):
    if add:
        e(f"s_add_u32 s{dst}, s{lo}, {add:#x}")
        e(f"s_addc_u32 s{dst+1}, s{hi}, 0")
        e(f"s_and_b32 s{dst+1}, s{dst+1}, 0xffff")
    else:
        e(f"s_mov_b32 s{dst}, s{lo}")
        e(f"s_and_b32 s{dst+1}, s{hi}, 0xffff")
    e(f"s_mov_b32 s{dst+2}, {size:#x}")
    e(f"s_mov_b32 s{dst+3}, 0x20000")


def stamp_init(e, wsreg, wavereg, base):
    if not STAMP: return
    if STAMP == 9:
        srd(e, SRD_ST, 38, 39, 256)
        e(f"s_cmp_eq_u32 s2, 101")
        e(f"s_cselect_b32 s92, 32, 0")
        e(f"s_cselect_b32 s93, 0, s2")
        e(f"s_add_u32 s93, s93, s{wavereg}")
        e(f"s_cmp_eq_u32 s93, 0")
        e(f"s_cselect_b32 s{SRD_ST+2}, 256, 0")
        return
    srd(e, SRD_ST, wsreg, wsreg + 1, 1 << 20, add=base)
    e(f"s_lshl_b32 s92, s2, 3")
    e(f"s_add_u32 s92, s92, s{wavereg}")
    e(f"s_lshl_b32 s92, s92, 8")


def stamp(e, idx, vt=250):
    if not STAMP: return
    if STAMP == 9:
        idx = {0: 1, 33: 2, 60: 3, 61: 4, 62: 5, 63: 6}[idx]
    e("s_memrealtime s[94:95]")
    e("s_waitcnt lgkmcnt(0)")
    e(f"v_mov_b32 v{vt}, s94")
    e(f"v_mov_b32 v{vt+1}, 0")
    e.vmem(f"buffer_store_dword v{vt}, v{vt+1}, s[{SRD_ST}:{SRD_ST+3}], s92 offen offset:{idx*4}")


def f32bits(x):
    return struct.unpack("<I", struct.pack("<f", x))[0]


CSCALE = (128 ** -0.5) * math.log2(math.e)

HEADER = """; Kernarg layout (104 bytes, ptrs only, base s[0:1]):
; @launch grid=(256,1,1) block=(512,1,1) lds=163840
.amdgcn_target "amdgcn-amd-amdhsa--gfx950"
.text
"""

S_W, S_J, S_I, S_XCD, S_CI = 3, 4, 5, 7, 8
S_HA, S_BPA, S_HB, S_BPB = 9, 10, 11, 12
SRD_X, SRD_WQ, SRD_K, SRD_V, SRD_O = 44, 48, 52, 56, 60
S_WQOFF, S_XOFF, S_KVOFF, S_RING, S_C, S_T0, S_T1, S_T2 = 72, 73, 74, 75, 76, 77, 78, 79
S_WQK, S_XK, S_KROT, S_WQM, S_XM = 80, 81, 82, 83, 84
V_L16 = 5
V_KVD = 6
V_KR = 10
V_VR = 18
V_T = 26
V_Q = 32
V_F = 64
V_G = 96
V_S = 128
V_WQR = 96
V_XR = 100
V_QXW = 86
V_WQD = 80
V_XD = 84
V_TWQ, V_TX, V_TD = 120, 121, 122
V_TKV = 31
QF = 128
QACC = 224

NR = 4
KPRE1 = int(OPT.get("kpre1", "6"))
FTKV = int(OPT.get("ftkv", "0"))
PACE = int(OPT.get("pace", "1"))
AROT = int(OPT.get("arot", "1"))
FTA = int(OPT.get("fta", "0"))
STAG = int(OPT.get("stag", "1"))
RST = int(OPT.get("rst", "4"))
RST_STEPS = [int(x) for x in OPT.get("rst_steps", "21,24,27,30").split(",")]
RST_REG = [128, 160, 192, 224, 96]
FLAG_OFF = 8 << 20


def wq_piece(slot):
    return 98304 + 16384 * slot


def x_piece(slot):
    return 16384 + 24576 * slot


XCH = 98304


def emit_k1_prologue(e):
    e.raw(".globl concat_heads__gqa_block_cached__mha_block_cached__near_ridge_kernel")
    e.raw(".p2align 8")
    e.raw(".type concat_heads__gqa_block_cached__mha_block_cached__near_ridge_kernel,@function")
    e.label("concat_heads__gqa_block_cached__mha_block_cached__near_ridge_kernel")
    e("s_cmp_ge_u32 s2, 256")
    e("s_cbranch_scc1 L_k1_end")
    e("s_load_dwordx16 s[16:31], s[0:1], 0")
    e("s_load_dwordx8 s[32:39], s[0:1], 64")
    e("s_load_dwordx2 s[40:41], s[0:1], 96")
    e("v_lshrrev_b32 v1, 6, v0")
    e("v_and_b32 v0, 63, v0")
    e("s_nop 0")
    e(f"v_readfirstlane_b32 s{S_W}, v1")
    e(f"s_and_b32 s{S_XCD}, s2, 7")
    e(f"s_lshr_b32 s{S_CI}, s2, 3")
    e(f"s_and_b32 s{S_J}, s{S_W}, 3")
    e(f"s_lshr_b32 s{S_I}, s{S_W}, 2")
    e(f"s_mov_b32 s{S_C}, {f32bits(CSCALE):#x}")
    e(f"s_lshl_b32 s{S_WQM}, s{S_J}, 12")
    e(f"s_lshl_b32 s{S_XM}, s{S_J}, 11")
    e(f"s_lshr_b32 s{S_HA}, s{S_XCD}, 1")
    e(f"s_lshl_b32 s{S_HA}, s{S_HA}, 3")
    e(f"s_and_b32 s{S_T0}, s{S_CI}, 7")
    e(f"s_add_u32 s{S_HA}, s{S_HA}, s{S_T0}")
    e(f"s_and_b32 s{S_BPA}, s{S_XCD}, 1")
    e(f"s_lshl_b32 s{S_BPA}, s{S_BPA}, 2")
    e(f"s_lshr_b32 s{S_T0}, s{S_CI}, 3")
    e(f"s_add_u32 s{S_BPA}, s{S_BPA}, s{S_T0}")
    e(f"s_lshl_b32 s{S_HB}, s{S_XCD}, 2")
    e(f"s_and_b32 s{S_T0}, s{S_CI}, 3")
    e(f"s_add_u32 s{S_HB}, s{S_HB}, s{S_T0}")
    e(f"s_lshr_b32 s{S_BPB}, s{S_CI}, 2")
    T0, T1, T2, T3, T4, T5 = 64, 65, 66, 67, 68, 69
    e(f"v_lshlrev_b32 v{V_L16}, 4, v0")
    e(f"v_lshrrev_b32 v{T0}, 4, v0")
    e(f"v_and_b32 v{T1}, 15, v0")
    e(f"v_lshlrev_b32 v{T2}, 2, v{T0}")
    e(f"v_xor_b32 v{T1}, v{T1}, v{T2}")
    e(f"v_lshlrev_b32 v{T1}, 4, v{T1}")
    e(f"v_lshlrev_b32 v{T2}, 8, v{T0}")
    e(f"v_add_u32 v{V_KVD}, v{T1}, v{T2}")
    for n in range(1, 4):
        e(f"v_xor_b32 v{V_KVD+n}, {16*n}, v{V_KVD}")
    e(f"v_lshlrev_b32 v{T2}, 13, v{T0}")
    e(f"v_add_u32 v{V_WQD}, v{T1}, v{T2}")
    for q in range(1, 4):
        e(f"v_xor_b32 v{V_WQD+q}, {16*q}, v{V_WQD}")
        e(f"v_add_u32 v{V_WQD+q}, {q*(32768-1024)}, v{V_WQD+q}")
    e(f"v_lshrrev_b32 v{T2}, 3, v0")
    e(f"v_lshlrev_b32 v{T2}, 11, v{T2}")
    e(f"v_and_b32 v{T3}, 7, v0")
    e(f"v_xor_b32 v{T3}, v{T3}, v{T0}")
    e(f"v_lshlrev_b32 v{T3}, 4, v{T3}")
    e(f"v_add_u32 v{V_XD}, v{T2}, v{T3}")
    e(f"v_xor_b32 v{V_XD+1}, 64, v{V_XD}")
    e(f"v_add_u32 v{V_XD+1}, {8*2048-1024}, v{V_XD+1}")
    e(f"v_and_b32 v{T2}, 31, v0")
    e(f"v_lshrrev_b32 v{T3}, 5, v0")
    e(f"v_lshrrev_b32 v{T4}, 1, v{T2}")
    e(f"v_and_b32 v{T4}, 7, v{T4}")
    e(f"v_xor_b32 v{T4}, v{T4}, v{T3}")
    e(f"v_lshlrev_b32 v{T4}, 4, v{T4}")
    e(f"v_lshlrev_b32 v{T5}, 7, v{T2}")
    e(f"v_add_u32 v{T4}, v{T4}, v{T5}")
    e(f"v_mov_b32 v{V_XR}, v{T4}")
    for s in range(1, 4):
        e(f"v_xor_b32 v{V_XR+s}, {32*s}, v{V_XR}")
    for s in range(4):
        e(f"v_add_u32 v{V_XR+4+s}, 65536, v{V_XR+s}")
    e(f"v_and_b32 v{T4}, 3, v{T2}")
    e(f"v_lshlrev_b32 v{T4}, 2, v{T4}")
    e(f"v_lshrrev_b32 v{T5}, 2, v{T2}")
    e(f"v_and_b32 v{T5}, 3, v{T5}")
    e(f"v_or_b32 v{T4}, v{T4}, v{T5}")
    e(f"v_xor_b32 v{T4}, v{T4}, v{T3}")
    e(f"v_lshlrev_b32 v{T4}, 4, v{T4}")
    e(f"v_lshlrev_b32 v{T5}, 8, v{T2}")
    e(f"v_add_u32 v{V_KR}, v{T4}, v{T5}")
    for s in range(1, 8):
        e(f"v_xor_b32 v{V_KR+s}, {32*s}, v{V_KR}")
    e(f"v_and_b32 v{T1}, 1, v{T0}")
    e(f"v_lshrrev_b32 v{T2}, 2, v0")
    e(f"v_and_b32 v{T2}, 3, v{T2}")
    e(f"v_and_b32 v{T4}, 1, v0")
    e(f"v_lshrrev_b32 v{T5}, 1, v0")
    e(f"v_and_b32 v{T5}, 1, v{T5}")
    e(f"v_lshlrev_b32 v{T5}, 3, v{T5}")
    e(f"v_lshlrev_b32 v{V_VR+2}, 6, v{T2}")
    e(f"v_add_u32 v{T5}, v{T5}, v{V_VR+2}")
    e(f"v_lshlrev_b32 v1, 1, v{T4}")
    e(f"v_or_b32 v1, v1, v{T1}")
    e(f"v_xor_b32 v1, v1, v{T3}")
    e(f"v_lshlrev_b32 v1, 4, v1")
    e(f"v_add_u32 v1, v1, v{T5}")
    e(f"v_lshlrev_b32 v{V_VR+1}, 2, v{T3}")
    e(f"v_add_u32 v{V_VR+1}, v{V_VR+1}, v{T2}")
    e(f"v_lshlrev_b32 v{V_VR+1}, 8, v{V_VR+1}")
    e(f"v_add_u32 v{V_VR}, v1, v{V_VR+1}")
    for dt in range(4):
        for z in range(2):
            if dt == 0 and z == 0:
                continue
            e(f"v_xor_b32 v{V_VR+2*dt+z}, {64*dt + 32*z + 2048*z}, v{V_VR}")
    e(f"v_lshlrev_b32 v1, 1, v{T1}")
    e(f"v_or_b32 v1, v1, v{T4}")
    e(f"v_lshlrev_b32 v{V_WQR+1}, 1, v{T3}")
    e(f"v_xor_b32 v1, v1, v{V_WQR+1}")
    e(f"v_lshlrev_b32 v1, 4, v1")
    e(f"v_add_u32 v1, v1, v{T5}")
    e(f"v_lshlrev_b32 v{V_WQR+1}, 3, v{T3}")
    e(f"v_add_u32 v{V_WQR+1}, v{V_WQR+1}, v{T2}")
    e(f"v_lshlrev_b32 v{V_WQR+1}, 8, v{V_WQR+1}")
    e(f"v_add_u32 v1, v1, v{V_WQR+1}")
    e(f"s_lshl_b32 s{S_T0}, s{S_J}, 6")
    e(f"v_xor_b32 v1, s{S_T0}, v1")
    e(f"v_add_u32 v{V_WQR}, 65536, v1")
    e(f"v_xor_b32 v{V_WQR+1}, {16+1024}, v{V_WQR}")
    e(f"v_add_u32 v{V_WQR+2}, 65536, v{V_WQR}")
    e(f"v_add_u32 v{V_WQR+3}, 65536, v{V_WQR+1}")
    e(f"s_lshl_b32 s{S_T0}, s{S_I}, 14")
    e(f"s_add_u32 s{S_T0}, s{S_T0}, s{S_XM}")
    e(f"s_add_u32 s{S_T0}, s{S_T0}, {XCH}")
    e(f"v_add_u32 v{V_QXW}, s{S_T0}, v{V_L16}")
    e(f"v_and_b32 v1, 15, v0")
    e(f"v_lshrrev_b32 v{V_TWQ}, 1, v1")
    e(f"v_lshlrev_b32 v{V_TWQ}, 13, v{V_TWQ}")
    e(f"v_and_b32 v1, 1, v1")
    e(f"v_lshlrev_b32 v1, 7, v1")
    e(f"v_add_u32 v{V_TWQ}, v{V_TWQ}, v1")
    e(f"v_and_b32 v{V_TX}, 7, v0")
    e(f"v_lshlrev_b32 v{V_TX}, 11, v{V_TX}")
    e(f"v_lshlrev_b32 v{V_TKV}, 7, v0")
    e("s_waitcnt lgkmcnt(0)")
    stamp_init(e, 40, S_W, 16 << 20)
    srd(e, 64, 40, 41, 65536, add=FLAG_OFF)
    srd(e, 68, 38, 39, 256)
    e(f"s_cmp_lg_u32 s{S_W}, 7")
    e("s_cbranch_scc1 L_k1_noflag")
    e("s_lshl_b32 s14, s2, 8")
    e("v_mov_b32 v1, 0")
    e("v_lshlrev_b32 v2, 2, v0")
    e("buffer_store_dword v1, v2, s[64:67], s14 offen sc1")
    e("v_mov_b32 v2, 1")
    e("s_waitcnt vmcnt(0)")
    e("s_mov_b64 exec, 1")
    e("buffer_atomic_add v2, v1, s[68:71], 0 offen")
    e("s_mov_b64 exec, -1")
    e.label("L_k1_noflag")
    e(f"s_cmp_ge_u32 s{S_W}, 4")
    e("s_cbranch_scc1 L_k1_B")


def emit_k1_role(e, g):
    e.vm_issued = 0
    e.lg_issued = 0
    nslot = 3 if g == 1 else 2
    wstride = 24576 if g == 1 else 16384
    rbase = 0 if g == 1 else 98304
    SH, SBP = (S_HA, S_BPA) if g == 0 else (S_HB, S_BPB)
    kv_tok, wq_tok, x_tok = {}, {}, {}

    def ring_setup(br, adv=0):
        sh, sbp = (S_HA, S_BPA) if br == 0 else (S_HB, S_BPB)
        px, pw = (16, 22) if br == 0 else (26, 32)
        srd(e, SRD_X, px, px + 1, 1 << 20)
        srd(e, SRD_WQ, pw, pw + 1, 8 << 20)
        e(f"s_lshl_b32 s{S_XOFF}, s{sbp}, 17")
        e(f"s_lshl_b32 s{S_T0}, s{S_J}, 15")
        e(f"s_add_u32 s{S_XOFF}, s{S_XOFF}, s{S_T0}")
        e(f"s_lshl_b32 s{S_WQOFF}, s{sh}, 8")
        e(f"s_lshl_b32 s{S_T0}, s{S_J}, 17")
        e(f"s_add_u32 s{S_WQOFF}, s{S_WQOFF}, s{S_T0}")
        if br == 1:
            e(f"s_lshl_b32 s{S_T0}, s{sbp}, 1")
            e(f"s_and_b32 s{S_T1}, s{S_CI}, 3")
            e(f"s_lshl_b32 s{S_T1}, s{S_T1}, 2")
        else:
            e(f"s_lshr_b32 s{S_T0}, s{S_CI}, 3")
            e(f"s_lshl_b32 s{S_T0}, s{S_T0}, 2")
            e(f"s_and_b32 s{S_T1}, s{S_CI}, 7")
            e(f"s_lshl_b32 s{S_T1}, s{S_T1}, 1")
        e(f"s_add_u32 s{S_T0}, s{S_T0}, s{S_T1}")
        if adv:
            e(f"s_add_u32 s{S_T0}, s{S_T0}, {adv}")
        e(f"s_and_b32 s{S_T0}, s{S_T0}, 15")
        e(f"s_lshl_b32 s{S_WQK}, s{S_T0}, 19")
        e(f"s_lshl_b32 s{S_XK}, s{S_T0}, 7")

    def issue_chunk(c):
        if c == 16:
            ring_setup(0)
        e(f"s_add_u32 m0, s{S_XM}, {x_piece(c % NR)}")
        e(f"s_add_u32 s{S_T0}, s{S_XOFF}, s{S_XK}")
        e.vmem(f"buffer_load_dwordx4 v{V_XD}, s[{SRD_X}:{SRD_X+3}], s{S_T0} offen{NT_X} lds")
        e.vmem(f"buffer_load_dwordx4 v{V_XD+1}, s[{SRD_X}:{SRD_X+3}], s{S_T0} offen offset:1024{NT_X} lds")
        e(f"s_add_u32 m0, s{S_WQM}, {wq_piece(c % NR)}")
        e(f"s_add_u32 s{S_T0}, s{S_WQOFF}, s{S_WQK}")
        for q in range(4):
            wq_tok[c] = e.vmem(f"buffer_load_dwordx4 v{V_WQD+q}, s[{SRD_WQ}:{SRD_WQ+3}], s{S_T0} offen offset:{q*1024}{NT_W} lds")
        e(f"s_add_u32 s{S_XK}, s{S_XK}, 128")
        e(f"s_and_b32 s{S_XK}, s{S_XK}, 2047")
        e(f"s_add_u32 s{S_WQK}, s{S_WQK}, 0x80000")
        e(f"s_and_b32 s{S_WQK}, s{S_WQK}, 0x7fffff")

    def kv_setup():
        pk, pv = (18, 20) if g == 0 else (28, 30)
        kvsize = (8 << 20) if g == 0 else (64 << 20)
        srd(e, SRD_K, pk, pk + 1, kvsize)
        srd(e, SRD_V, pv, pv + 1, kvsize)
        srd(e, SRD_O, 40, 41, 4 << 20, add=g * (4 << 20))
        e(f"s_lshl_b32 s{S_T0}, s{SBP}, 1")
        e(f"s_lshr_b32 s{S_T1}, s{S_J}, 1")
        e(f"s_add_u32 s{S_T0}, s{S_T0}, s{S_T1}")
        if g == 0:
            e(f"s_lshl_b32 s{S_T1}, s{S_T0}, 2")
            e(f"s_lshr_b32 s{S_T2}, s{SH}, 3")
        else:
            e(f"s_lshl_b32 s{S_T1}, s{S_T0}, 5")
            e(f"s_mov_b32 s{S_T2}, s{SH}")
        e(f"s_add_u32 s{S_T1}, s{S_T1}, s{S_T2}")
        e(f"s_lshl_b32 s{S_KVOFF}, s{S_T1}, 17")
        e(f"s_and_b32 s{S_T1}, s{S_J}, 1")
        e(f"s_lshl_b32 s{S_T1}, s{S_T1}, 16")
        e(f"s_add_u32 s{S_KVOFF}, s{S_KVOFF}, s{S_T1}")
        if g == 1:
            e(f"s_add_u32 s{S_KROT}, s{SH}, s{S_T0}")
        elif AROT:
            e(f"s_mov_b32 s{S_KROT}, s{SH}")
        else:
            e(f"s_mov_b32 s{S_KROT}, s{S_T0}")
        e(f"s_and_b32 s{S_KROT}, s{S_KROT}, 7")
        e(f"s_lshl_b32 s{S_KROT}, s{S_KROT}, 13")
        e(f"s_mul_i32 s{S_RING}, s{S_J}, {wstride}")
        if rbase:
            e(f"s_add_u32 s{S_RING}, s{S_RING}, {rbase}")
        for i in range(8):
            e(f"v_add_u32 v{V_KR+i}, s{S_RING}, v{V_KR+i}")
            e(f"v_add_u32 v{V_VR+i}, s{S_RING}, v{V_VR+i}")

    def issue_kv(n):
        nt_kv = NT_KVB if g == 1 else NT_KVA
        srd_ = SRD_K if n < 8 else SRD_V
        t = n & 7
        slot = n % nslot
        fta = FTA and g == 0 and t == 0
        if fta:
            nt_kv = " nt"
        e(f"s_add_u32 s{S_T0}, s{S_KROT}, {t*8192}")
        e(f"s_and_b32 s{S_T0}, s{S_T0}, 0xffff")
        e(f"s_add_u32 s{S_T0}, s{S_T0}, s{S_KVOFF}")
        for half in range(2):
            e(f"s_add_u32 m0, s{S_RING}, {slot*8192 + half*4096}")
            if half:
                e(f"s_add_u32 s{S_T0}, s{S_T0}, 4096")
            else:
                e("s_nop 0")
            for q in range(4):
                tok = e.vmem(f"buffer_load_dwordx4 v{V_KVD+q}, s[{srd_}:{srd_+3}], s{S_T0} offen offset:{q*1024}{nt_kv} lds")
        kv_tok[n] = tok
        if fta:
            e(f"s_sub_u32 s{S_T0}, s{S_T0}, 4096")
            e.vmem(f"buffer_load_dword v1, v{V_TKV}, s[{srd_}:{srd_+3}], s{S_T0} offen")

    st_tok = {}

    def stage_load(k):
        t = 2 + k
        rb = RST_REG[k]
        e(f"s_add_u32 s{S_T0}, s{S_KROT}, {t*8192}")
        e(f"s_and_b32 s{S_T0}, s{S_T0}, 0xffff")
        e(f"s_add_u32 s{S_T0}, s{S_T0}, s{S_KVOFF}")
        for half in range(2):
            if half:
                e(f"s_add_u32 s{S_T0}, s{S_T0}, 4096")
            for q in range(4):
                st_tok[k] = e.vmem(f"buffer_load_dwordx4 {vr(rb+16*half+4*q,4)}, v{V_KVD+q}, s[{SRD_K}:{SRD_K+3}], s{S_T0} offen offset:{q*1024}{NT_KVB}")

    def stage_flush(k):
        t = 2 + k
        rb = RST_REG[k]
        e.wait_vm(st_tok[k])
        e(f"v_add_u32 v1, s{S_RING}, v{V_L16}")
        for i in range(8):
            e.lds(f"ds_write_b128 v1, {vr(rb+4*i,4)} offset:{(t % nslot)*8192 + i*1024}")
        kv_tok[t] = st_tok[k]

    def touch_kva():
        e(f"s_add_u32 s{S_T0}, s{S_KROT}, s{S_KVOFF}")
        for srd_ in (SRD_K, SRD_V):
            if FTKV == 1:
                e.vmem(f"buffer_load_dword v{V_TD}, v{V_TKV}, s[{srd_}:{srd_+3}], s{S_T0} offen nt")
            e.vmem(f"buffer_load_dword v{V_TD}, v{V_TKV}, s[{srd_}:{srd_+3}], s{S_T0} offen")

    def reads_ks(c, ks):
        fb = QF + 48 * (c & 1) + 12 * ks
        slot = c % NR
        off = wq_piece(slot) + ks * 4096
        for z in range(2):
            e.lds(f"ds_read_b64_tr_b16 {vr(fb+2*z,2)}, v{V_WQR+2*((off>>16)-1)+z} offset:{off & 0xffff}")
        for it in range(2):
            off = x_piece(slot) + it * 4096
            e.lds(f"ds_read_b128 {vr(fb+4+4*it,4)}, v{V_XR+4*(off>>16)+ks} offset:{off & 0xffff}")

    def mfma_ks(c, ks, its=(0, 1)):
        fb = QF + 48 * (c & 1) + 12 * ks
        for it in its:
            acc = QACC + 16 * it
            cc = "0" if ((c & 15) == 0 and ks == 0) else vr(acc, 16)
            e(f"v_mfma_f32_32x32x16_bf16 {vr(acc,16)}, {vr(fb,4)}, {vr(fb+4+4*it,4)}, {cc}")

    def mine(c):
        return 0 <= c < 32 and ((c < 16) == (g == 1))

    def loads(c):
        return c < 32 and ((c <= 18) == (g == 0))

    stamp(e, 0, 124)
    if g == 0:
        ring_setup(1)
        for c in range(NR - 1):
            issue_chunk(c)
    else:
        ring_setup(0, adv=3)
    kv_setup()
    for s in range(32):
        e.comment(f"qproj step {s}")
        if loads(s):
            e.wait_vm(wq_tok[s])
        e("s_barrier")
        for i in range(8):
            if mine(s - 1):
                mfma_ks(s - 1, i >> 1, (i & 1,))
            if mine(s) and i < 4:
                reads_ks(s, i)
        if loads(s + NR - 1):
            issue_chunk(s + NR - 1)
        if s == 8 and OPT.get("qonly"):
            stamp(e, 60, 124)
        if s == 15 and OPT.get("qonly"):
            stamp(e, 61, 124)
        if s == 22 and OPT.get("qonly"):
            stamp(e, 62, 124)
        if s == 31 and OPT.get("qonly"):
            stamp(e, 63, 124)
            stamp(e, 33, 124)
            e("s_endpgm")
        if g == 1 and s == KPRE_STEP and not OPT.get("qonly"):
            issue_kv(0)
        if g == 1 and s == KPRE1 and not OPT.get("qonly"):
            issue_kv(1)
        if g == 1 and RST and s == 17:
            for k in range(16):
                e(f"v_cvt_pk_bf16_f32 v{V_F+k}, v{QACC+2*k}, v{QACC+2*k+1}")
        if g == 1 and s in RST_STEPS[:RST]:
            stage_load(RST_STEPS.index(s))
        if mine(s):
            e("s_waitcnt lgkmcnt(0)")
        if STAMP == 2:
            stamp(e, 1 + s, 124)
    if mine(31):
        for ks in range(4):
            mfma_ks(31, ks)
    if not (g == 1 and RST):
        e("s_nop 15")
        e("s_nop 3")
        for k in range(16):
            e(f"v_cvt_pk_bf16_f32 v{V_F+k}, v{QACC+2*k}, v{QACC+2*k+1}")
    for it in range(2):
        for ss in range(2):
            e(f"ds_write_b128 v{V_QXW}, {vr(V_F+8*it+4*ss,4)} offset:{it*8192+ss*1024}")
    e(f"s_lshr_b32 s{S_T1}, s{S_J}, 1")
    e(f"s_lshl_b32 s{S_T1}, s{S_T1}, 13")
    e(f"s_add_u32 s{S_T1}, s{S_T1}, {XCH + g*16384}")
    e(f"v_add_u32 v{V_T}, s{S_T1}, v{V_L16}")
    e("s_waitcnt lgkmcnt(0)")
    e("s_barrier")
    for s in range(8):
        e(f"ds_read_b128 {vr(V_Q+4*s,4)}, v{V_T} offset:{s*1024}")
    e("s_waitcnt lgkmcnt(0)")
    e("s_barrier")
    def refill(n):
        if g == 1 and 2 <= n < 2 + RST:
            stage_flush(n - 2)
        else:
            issue_kv(n)

    for n in range(2 if (g == 1 and not OPT.get("qonly")) else 0, nslot):
        refill(n)
    stamp(e, 33, V_T + 2)

    FREE = int(OPT.get("free", "6"))
    if g == 1 and FREE:
        m = 16 - FREE
        nbar = [0] * FREE + [(15 * (i + 1)) // m - (15 * i) // m for i in range(m)]
    else:
        nbar = [0] + [1] * 15
    assert sum(nbar) == 15
    VMX = V_T
    VM, VMC, VL, VE, VP = V_Q, V_Q + 1, V_Q + 2, V_Q + 8, V_Q + 16

    def max_tile(t):
        b = V_S + 16 * t
        for ch in range(2):
            bb = b + 8 * ch
            if t == 0:
                e(f"v_max3_f32 v{VMX+ch}, v{bb}, v{bb+1}, v{bb+2}")
                e(f"v_max3_f32 v{VMX+ch}, v{VMX+ch}, v{bb+3}, v{bb+4}")
                e(f"v_max3_f32 v{VMX+ch}, v{VMX+ch}, v{bb+5}, v{bb+6}")
                e(f"v_max_f32 v{VMX+ch}, v{VMX+ch}, v{bb+7}")
            else:
                for k in range(4):
                    e(f"v_max3_f32 v{VMX+ch}, v{VMX+ch}, v{bb+2*k}, v{bb+2*k+1}")

    def exp_tile(t):
        p = VP + 8 * (t & 1)
        for hf in range(2):
            b = V_S + 16 * t + 8 * hf
            for i in range(8):
                e(f"v_fma_f32 v{VE+i}, v{b+i}, s{S_C}, -v{VMC}")
            for i in range(8):
                e(f"v_exp_f32 v{VE+i}, v{VE+i}")
            e("s_nop 0")
            for i in range(8):
                e(f"v_add_f32 v{VL+(i&3)}, v{VL+(i&3)}, v{VE+i}")
            for k in range(4):
                e(f"v_cvt_pk_bf16_f32 v{p+4*hf+k}, v{VE+2*k}, v{VE+2*k+1}")

    for t in range(8):
        e.comment(f"K tile {t}")
        if PACE == 2 and t > 0:
            e("s_barrier")
        e.wait_vm(kv_tok[t])
        if PACE == 1:
            for _ in range(nbar[t]):
                e("s_barrier")
        toks = []
        for s in range(8):
            toks.append(e.lds(f"ds_read_b128 {vr(V_F+4*s,4)}, v{V_KR+s} offset:{(t%nslot)*8192}"))
        if t > 0:
            max_tile(t - 1)
        for s in range(8):
            e.wait_lds(toks[s])
            c = "0" if s == 0 else vr(V_S + 16 * t, 16)
            e(f"v_mfma_f32_32x32x16_bf16 {vr(V_S+16*t,16)}, {vr(V_F+4*s,4)}, {vr(V_Q+4*s,4)}, {c}")
        refill(t + nslot)
        if STAMP == 2:
            stamp(e, 34 + t, V_T + 2)
    e("s_nop 7")
    max_tile(7)
    e(f"v_max_f32 v{VMX}, v{VMX}, v{VMX+1}")
    e(f"v_mov_b32 v{VMX+1}, v{VMX}")
    e("s_nop 1")
    e(f"v_permlane32_swap_b32 v{VMX}, v{VMX+1}")
    e("s_nop 1")
    e(f"v_max_f32 v{VM}, v{VMX}, v{VMX+1}")
    e(f"v_mul_f32 v{VMC}, s{S_C}, v{VM}")
    for i in range(4):
        e(f"v_mov_b32 v{VL+i}, 0")
    exp_tile(0)
    exp_tile(1)
    OA = [V_S, V_S + 16, V_G, V_G + 16]
    for t in range(8):
        n = 8 + t
        if PACE == 2:
            e("s_barrier")
        e.wait_vm(kv_tok[n])
        if PACE == 1:
            for _ in range(nbar[n]):
                e("s_barrier")
        toks = []
        for u in range(2):
            for dt in range(4):
                for z in range(2):
                    toks.append(e.lds(f"ds_read_b64_tr_b16 {vr(V_F+16*u+4*dt+2*z,2)}, v{V_VR+2*dt+z} offset:{(n%nslot)*8192+u*4096}"))
        p = VP + 8 * (t & 1)
        for u in range(2):
            for dt in range(4):
                e.wait_lds(toks[8 * u + 2 * dt + 1])
                c = "0" if (t == 0 and u == 0) else vr(OA[dt], 16)
                e(f"v_mfma_f32_32x32x16_bf16 {vr(OA[dt],16)}, {vr(V_F+16*u+4*dt,4)}, {vr(p+4*u,4)}, {c}")
        if n + nslot < 16:
            issue_kv(n + nslot)
        if t + 2 < 8:
            exp_tile(t + 2)
        if STAMP == 2:
            stamp(e, 42 + t, V_T + 2)
    stamp(e, 60, V_T + 2)
    e(f"v_add_f32 v{VL}, v{VL}, v{VL+1}")
    e(f"v_add_f32 v{VL+2}, v{VL+2}, v{VL+3}")
    e(f"v_add_f32 v{VL}, v{VL}, v{VL+2}")
    e(f"v_mov_b32 v{VL+1}, v{VL}")
    e("s_nop 1")
    e(f"v_permlane32_swap_b32 v{VL}, v{VL+1}")
    e("s_nop 1")
    e(f"v_add_f32 v{VM+1}, v{VL}, v{VL+1}")
    e("s_nop 15")
    lab = f"L_k1_g{g}"
    e(f"v_add_u32 v{V_T+1}, s{S_RING}, v{V_L16}")
    e(f"s_xor_b32 s{S_T1}, s{S_J}, 1")
    e(f"s_mul_i32 s{S_T1}, s{S_T1}, {wstride}")
    if rbase:
        e(f"s_add_u32 s{S_T1}, s{S_T1}, {rbase}")
    e(f"v_add_u32 v{V_T+2}, s{S_T1}, v{V_L16}")
    e(f"v_lshlrev_b32 v{V_T+3}, 3, v0")
    e(f"v_add_u32 v1, s{S_T1}, v{V_T+3}")
    e(f"v_add_u32 v{V_T+3}, s{S_RING}, v{V_T+3}")
    e(f"ds_write_b64 v{V_T+3}, {vr(VM,2)} offset:8192")
    e(f"s_and_b32 s{S_T2}, s{S_J}, 1")
    e(f"s_cmp_eq_u32 s{S_T2}, 1")
    e(f"s_cbranch_scc1 {lab}_j1")
    for k in range(8):
        e(f"ds_write_b128 v{V_T+1}, {vr(V_G+4*k,4)} offset:{k*1024}")
    e(f"s_branch {lab}_jd")
    e.label(f"{lab}_j1")
    for k in range(8):
        e(f"ds_write_b128 v{V_T+1}, {vr(V_S+4*k,4)} offset:{k*1024}")
    e("s_waitcnt lgkmcnt(0)")
    for k in range(32):
        e(f"v_mov_b32 v{V_S+k}, v{V_G+k}")
    e.label(f"{lab}_jd")
    e("s_waitcnt lgkmcnt(0)")
    e("s_barrier")
    PO = V_F
    OACC = V_S
    e(f"ds_read_b64 {vr(VM+2,2)}, v1 offset:8192")
    for k in range(8):
        e(f"ds_read_b128 {vr(PO+4*k,4)}, v{V_T+2} offset:{k*1024}")
    e("s_waitcnt lgkmcnt(8)")
    MT, FA_, FB_, LT = VM + 4, VM + 5, VM + 6, VM + 7
    e(f"v_max_f32 v{MT}, v{VM}, v{VM+2}")
    e(f"v_sub_f32 v{FA_}, v{VM}, v{MT}")
    e(f"v_sub_f32 v{FB_}, v{VM+2}, v{MT}")
    e(f"v_mul_f32 v{FA_}, s{S_C}, v{FA_}")
    e(f"v_mul_f32 v{FB_}, s{S_C}, v{FB_}")
    e(f"v_exp_f32 v{FA_}, v{FA_}")
    e(f"v_exp_f32 v{FB_}, v{FB_}")
    e("s_nop 0")
    e(f"v_mul_f32 v{LT}, v{VM+1}, v{FA_}")
    e(f"v_fma_f32 v{LT}, v{VM+3}, v{FB_}, v{LT}")
    e(f"v_rcp_f32 v{LT}, v{LT}")
    e("s_nop 0")
    e(f"v_mul_f32 v{FA_}, v{FA_}, v{LT}")
    e(f"v_mul_f32 v{FB_}, v{FB_}, v{LT}")
    e(f"s_lshl_b32 s{S_T0}, s{SBP}, 5")
    e(f"s_add_u32 s{S_T0}, s{S_T0}, s{SH}")
    e(f"s_lshl_b32 s{S_T0}, s{S_T0}, 14")
    e(f"s_lshl_b32 s{S_T1}, s{S_J}, 12")
    e(f"s_add_u32 s{S_T0}, s{S_T0}, s{S_T1}")
    e("s_waitcnt lgkmcnt(0)")
    for k in range(32):
        e(f"v_mul_f32 v{OACC+k}, v{OACC+k}, v{FA_}")
        e(f"v_fma_f32 v{OACC+k}, v{PO+k}, v{FB_}, v{OACC+k}")
    for k in range(16):
        e(f"v_cvt_pk_bf16_f32 v{PO+k}, v{OACC+2*k}, v{OACC+2*k+1}")
    for fr in range(4):
        e(f"buffer_store_dwordx4 {vr(PO+4*fr,4)}, v{V_L16}, s[{SRD_O}:{SRD_O+3}], s{S_T0} offen offset:{fr*1024}{NT_OST}")
    if g == 0:
        e("s_branch L_oproj")


def emit_k1(e):
    emit_k1_prologue(e)
    emit_k1_role(e, 0)
    e.label("L_k1_B")
    emit_k1_role(e, 1)
    emit_oproj(e)
    e.label("L_k1_end")
    e("s_endpgm")


PART_OFF = 32 << 20
NMIN = int(OPT.get("nmin", "3"))
SPIN = 0x40000


def emit_oproj(e):
    NSS = 5
    e.label("L_oproj")
    e.vm_issued = 0
    e.lg_issued = 0
    S_BR, S_KQ, S_MT, S_NT, S_MS, S_KH = 85, 86, 87, 13, 15, 6
    SRD_A, SRD_W, SRD_OUT, SRD_P = 44, 48, 52, 56
    SRD_F, SRD_D = 64, 68
    S_OOFF, S_WOFF, S_W4K, S_T0k, S_T1k, S_ORD, S_MASK, S_CNT, S_FL = 72, 73, 74, 77, 78, 80, 81, 82, 14
    S_T2k, S_ROT = 79, 75
    V_WD = 6
    V_WR = 10
    T0, T1, T2, T3, T4, T5 = range(26, 32)
    V_FA, V_ONE, V_L4, V_CN = 32, 33, 34, 35
    V_RW, V_RR, V_OA, V_FA2 = 36, 37, 38, 39
    FO = 80
    FA = 128
    ACC = 192
    e(f"s_lshr_b32 s{S_BR}, s{S_XCD}, 2")
    e(f"s_and_b32 s{S_KQ}, s{S_XCD}, 3")
    e(f"s_lshr_b32 s{S_MT}, s{S_CI}, 3")
    e(f"s_and_b32 s{S_NT}, s{S_CI}, 7")
    e(f"s_and_b32 s{S_MS}, s{S_W}, 3")
    e(f"s_lshr_b32 s{S_KH}, s{S_W}, 2")
    e(f"s_lshl_b32 s{S_FL}, s2, 8")
    e(f"v_lshlrev_b32 v{V_L4}, 2, v0")
    e(f"v_mov_b32 v{V_ONE}, 1")
    e(f"v_mov_b32 v{T0}, 0")
    e(f"s_cmp_lg_u32 s{S_W}, 0")
    e("s_cbranch_scc1 L_op_nocnt")
    e(f"buffer_load_dword v{V_CN}, v{T0}, s[{SRD_D}:{SRD_D+3}], 0 offen sc1")
    e.label("L_op_nocnt")
    for br, sh, sbp, dst in ((0, S_HA, S_BPA, S_T0k), (1, S_HB, S_BPB, S_T1k)):
        e(f"s_lshr_b32 s{dst}, s{sbp}, 1")
        e(f"s_lshl_b32 s{dst}, s{dst}, 6")
        e(f"s_lshr_b32 s{S_T2k}, s{sh}, 3")
        e(f"s_add_u32 s{dst}, s{dst}, s{S_T2k}")
        if br:
            e(f"s_add_u32 s{dst}, s{dst}, 4")
        e(f"s_lshl_b32 s{dst}, s{dst}, 8")
        e(f"s_and_b32 s{S_T2k}, s{sbp}, 1")
        e(f"s_lshl_b32 s{S_T2k}, s{S_T2k}, 5")
        e(f"s_add_u32 s{dst}, s{dst}, s{S_T2k}")
        e(f"s_and_b32 s{S_T2k}, s{sh}, 7")
        e(f"s_lshl_b32 s{S_T2k}, s{S_T2k}, 2")
        e(f"s_add_u32 s{dst}, s{dst}, s{S_T2k}")
    e(f"v_mov_b32 v{T1}, s{S_T0k}")
    e(f"v_mov_b32 v{T2}, s{S_T1k}")
    e(f"v_cmp_gt_u32 vcc, 8, v0")
    e(f"v_and_b32 v{T3}, 7, v0")
    e(f"v_lshlrev_b32 v{T3}, 11, v{T3}")
    e(f"v_cndmask_b32 v{V_FA}, v{T2}, v{T1}, vcc")
    e(f"v_add_u32 v{V_FA}, v{V_FA}, v{T3}")
    e(f"s_lshl_b32 s{S_T0k}, s{S_CI}, 3")
    e(f"s_lshl_b32 s{S_T1k}, s{S_BR}, 2")
    e(f"s_add_u32 s{S_T0k}, s{S_T0k}, s{S_T1k}")
    e(f"s_lshl_b32 s{S_T0k}, s{S_T0k}, 8")
    e(f"s_lshl_b32 s{S_T1k}, s{S_KQ}, 2")
    e(f"s_add_u32 s{S_T0k}, s{S_T0k}, s{S_T1k}")
    e(f"s_add_u32 s{S_T0k}, s{S_T0k}, 64")
    e(f"v_lshlrev_b32 v{V_FA2}, 8, v0")
    e(f"v_add_u32 v{V_FA2}, s{S_T0k}, v{V_FA2}")
    e(f"s_cmp_eq_u32 s{S_BR}, 1")
    e(f"s_cselect_b32 s{SRD_W}, s34, s24")
    e(f"s_cselect_b32 s{SRD_W+1}, s35, s25")
    e(f"s_and_b32 s{SRD_W+1}, s{SRD_W+1}, 0xffff")
    e(f"s_mov_b32 s{SRD_W+2}, {8<<20:#x}")
    e(f"s_mov_b32 s{SRD_W+3}, 0x20000")
    srd(e, SRD_A, 40, 41, 8 << 20)
    srd(e, SRD_OUT, 36, 37, 2 << 20)
    srd(e, SRD_P, 40, 41, 16 << 20, add=PART_OFF)
    e(f"s_lshl_b32 s{S_OOFF}, s{S_BR}, 22")
    e(f"s_lshl_b32 s{S_T0k}, s{S_MT}, 20")
    e(f"s_add_u32 s{S_OOFF}, s{S_OOFF}, s{S_T0k}")
    e(f"s_lshr_b32 s{S_T0k}, s{S_MS}, 1")
    e(f"s_lshl_b32 s{S_T0k}, s{S_T0k}, 19")
    e(f"s_add_u32 s{S_OOFF}, s{S_OOFF}, s{S_T0k}")
    e(f"s_lshl_b32 s{S_T0k}, s{S_KQ}, 17")
    e(f"s_add_u32 s{S_OOFF}, s{S_OOFF}, s{S_T0k}")
    e(f"s_and_b32 s{S_T0k}, s{S_MS}, 1")
    e(f"s_lshl_b32 s{S_T0k}, s{S_T0k}, 13")
    e(f"s_add_u32 s{S_OOFF}, s{S_OOFF}, s{S_T0k}")
    e(f"s_lshl_b32 s{S_T0k}, s{S_KH}, 12")
    e(f"s_add_u32 s{S_OOFF}, s{S_OOFF}, s{S_T0k}")
    e(f"s_lshl_b32 s{S_WOFF}, s{S_KQ}, 21")
    e(f"s_lshl_b32 s{S_T0k}, s{S_W}, 15")
    e(f"s_add_u32 s{S_WOFF}, s{S_WOFF}, s{S_T0k}")
    e(f"s_lshl_b32 s{S_T0k}, s{S_NT}, 8")
    e(f"s_add_u32 s{S_WOFF}, s{S_WOFF}, s{S_T0k}")
    e(f"s_lshl_b32 s{S_W4K}, s{S_W}, 12")
    e(f"s_lshl_b32 s{S_ROT}, s{S_MT}, 1")
    e(f"s_add_u32 s{S_ROT}, s{S_ROT}, s{S_NT}")
    e(f"v_lshrrev_b32 v{T0}, 4, v0")
    e(f"v_and_b32 v{T1}, 15, v0")
    e(f"v_lshlrev_b32 v{T2}, 2, v{T0}")
    e(f"v_xor_b32 v{T1}, v{T1}, v{T2}")
    e(f"v_lshlrev_b32 v{T1}, 4, v{T1}")
    e(f"v_lshlrev_b32 v{T2}, 11, v{T0}")
    e(f"v_add_u32 v{V_WD}, v{T1}, v{T2}")
    for q in range(1, 4):
        e(f"v_xor_b32 v{V_WD+q}, {16*q}, v{V_WD}")
        e(f"v_add_u32 v{V_WD+q}, {q*(8192-1024)}, v{V_WD+q}")
    e(f"v_lshrrev_b32 v{T3}, 5, v0")
    e(f"v_and_b32 v{T1}, 1, v{T0}")
    e(f"v_lshrrev_b32 v{T2}, 2, v0")
    e(f"v_and_b32 v{T2}, 3, v{T2}")
    e(f"v_and_b32 v{T4}, 1, v0")
    e(f"v_lshlrev_b32 v{T4}, 1, v{T4}")
    e(f"v_or_b32 v{T4}, v{T4}, v{T1}")
    e(f"v_lshlrev_b32 v{T4}, 4, v{T4}")
    e(f"v_lshrrev_b32 v{T5}, 1, v0")
    e(f"v_and_b32 v{T5}, 1, v{T5}")
    e(f"v_lshlrev_b32 v{T5}, 3, v{T5}")
    e(f"v_add_u32 v{T4}, v{T4}, v{T5}")
    e(f"v_lshlrev_b32 v{T5}, 6, v{T2}")
    e(f"v_add_u32 v{T4}, v{T4}, v{T5}")
    e(f"v_lshlrev_b32 v{T5}, 4, v{T3}")
    e(f"v_add_u32 v{T5}, v{T5}, v{T2}")
    e(f"v_lshlrev_b32 v{T5}, 8, v{T5}")
    e(f"v_add_u32 v{T4}, v{T4}, v{T5}")
    e(f"s_lshl_b32 s{S_T1k}, s{S_KH}, 14")
    e(f"v_add_u32 v{V_WR}, s{S_T1k}, v{T4}")
    for nt in range(4):
        for ee in range(2):
            for z in range(2):
                i = 4 * nt + 2 * ee + z
                if i:
                    e(f"v_xor_b32 v{V_WR+i}, {64*nt + 16*(2*ee+z) + (8*ee+4*z)*256}, v{V_WR}")
    e(f"s_lshl_b32 s{S_T0k}, s{S_W}, 13")
    e(f"v_add_u32 v{V_RW}, s{S_T0k}, v{V_L16}")
    e(f"s_xor_b32 s{S_T0k}, s{S_T0k}, {4*8192}")
    e(f"v_add_u32 v{V_RR}, s{S_T0k}, v{V_L16}")
    e(f"v_and_b32 v{V_OA}, 31, v0")
    e(f"v_lshlrev_b32 v{V_OA}, 12, v{V_OA}")
    e(f"v_lshlrev_b32 v{T4}, 5, v{T3}")
    e(f"v_add_u32 v{V_OA}, v{V_OA}, v{T4}")
    e(f"s_mov_b32 s{S_ORD}, 0")
    for i in range(8):
        e(f"s_add_u32 s{S_T0k}, s{S_ROT}, {i}")
        e(f"s_and_b32 s{S_T0k}, s{S_T0k}, 7")
        e(f"s_lshl_b32 s{S_T0k}, s{S_T0k}, {4*i}")
        e(f"s_or_b32 s{S_ORD}, s{S_ORD}, s{S_T0k}")
    e(f"s_cmp_lg_u32 s{S_W}, 0")
    e("s_cbranch_scc1 L_op_noep")
    e(f"buffer_load_dword v41, v{V_L4}, s[{SRD_F}:{SRD_F+3}], s{S_FL} offen sc1")
    e.label("L_op_noep")
    e("s_waitcnt vmcnt(0)")
    e("s_barrier")
    e(f"s_cmp_lg_u32 s{S_W}, 0")
    e("s_cbranch_scc1 L_op_w0done")
    e(f"s_mov_b32 s{S_CNT}, {SPIN}")
    e.label("L_op_cnt")
    e(f"v_readfirstlane_b32 s{S_T0k}, v{V_CN}")
    e(f"s_sub_u32 s{S_CNT}, s{S_CNT}, 1")
    e(f"s_and_b32 s{S_T0k}, s{S_T0k}, 255")
    e(f"s_cmp_eq_u32 s{S_T0k}, 0")
    e("s_cbranch_scc1 L_op_cntok")
    e(f"s_cmp_eq_u32 s{S_CNT}, 0")
    e("s_cbranch_scc1 L_op_cntok")
    e("s_sleep 16")
    e(f"v_mov_b32 v{T0}, 0")
    e(f"buffer_load_dword v{V_CN}, v{T0}, s[{SRD_D}:{SRD_D+3}], 0 offen sc1")
    e("s_waitcnt vmcnt(0)")
    e("s_branch L_op_cnt")
    e.label("L_op_cntok")
    e("s_mov_b64 exec, 0xffff")
    e(f"buffer_store_dword v{V_ONE}, v{V_FA}, s[{SRD_F}:{SRD_F+3}], 0 offen sc1")
    e("s_mov_b64 exec, -1")

    def poll(lab):
        e(f"buffer_load_dword v{T2}, v{V_L4}, s[{SRD_F}:{SRD_F+3}], s{S_FL} offen sc1")
        e("s_waitcnt vmcnt(0)")
        e(f"v_cmp_eq_u32 vcc, 1, v{T2}")
        e("s_nop 3")
        e(f"s_lshr_b32 s{S_T0k}, vcc_lo, 8")
        e(f"s_and_b32 s{S_T0k}, s{S_T0k}, vcc_lo")
        e(f"s_and_b32 s{S_T0k}, s{S_T0k}, 0xff")
        e(f"s_and_b32 s{S_MASK}, vcc_lo, 0xf0000")
        e(f"s_or_b32 s{S_MASK}, s{S_MASK}, s{S_T0k}")

    e(f"v_cmp_eq_u32 vcc, 1, v41")
    e("s_nop 3")
    e(f"s_lshr_b32 s{S_T0k}, vcc_lo, 8")
    e(f"s_and_b32 s{S_T0k}, s{S_T0k}, vcc_lo")
    e(f"s_and_b32 s{S_MASK}, s{S_T0k}, 0xff")
    e.label("L_op_w0done")

    wtok, otok = {}, {}

    def w_pieces(s):
        slot = (s % NSS) * 32768

        def p0():
            e(f"s_bfe_u32 s{S_T1k}, s{S_ORD}, {(4 << 16) | (4 * s):#x}")
            e(f"s_add_u32 m0, s{S_W4K}, {slot}")
            e(f"s_lshl_b32 s{S_T1k}, s{S_T1k}, 18")
            e(f"s_add_u32 s{S_T1k}, s{S_T1k}, s{S_WOFF}")
            e.vmem(f"buffer_load_dwordx4 v{V_WD}, s[{SRD_W}:{SRD_W+3}], s{S_T1k} offen{NT_WO} lds")
        ps = [p0]
        for q in range(1, 4):
            def pq(q=q):
                wtok[s] = e.vmem(f"buffer_load_dwordx4 v{V_WD+q}, s[{SRD_W}:{SRD_W+3}], s{S_T1k} offen offset:{q*1024}{NT_WO} lds")
            ps.append(pq)
        return ps

    def o_pieces(s):
        fo = FO + 16 * (s % 3)

        def p0():
            e(f"s_bfe_u32 s{S_T0k}, s{S_ORD}, {(4 << 16) | (4 * s):#x}")
            e(f"s_lshl_b32 s{S_T0k}, s{S_T0k}, 14")
            e(f"s_add_u32 s{S_T0k}, s{S_T0k}, s{S_OOFF}")
            e.vmem(f"buffer_load_dwordx4 {vr(fo,4)}, v{V_L16}, s[{SRD_A}:{SRD_A+3}], s{S_T0k} offen{NT_OLD}")
        ps = [p0]
        for q in range(1, 4):
            def pq(q=q):
                otok[s] = e.vmem(f"buffer_load_dwordx4 {vr(fo+4*q,4)}, v{V_L16}, s[{SRD_A}:{SRD_A+3}], s{S_T0k} offen offset:{q*1024}{NT_OLD}")
            ps.append(pq)
        return ps

    page = [0]

    def set_page(p):
        if p != page[0]:
            d = (p - page[0]) * 65536
            for i in range(16):
                e(f"v_add_u32 v{V_WR+i}, {d & 0xffffffff:#x}, v{V_WR+i}")
            page[0] = p

    rbuf = {}
    nb = [0]

    def reads(s, q):
        b = nb[0] % 3
        nb[0] += 1
        rbuf[(s, q)] = b
        fb = FA + 16 * b
        off = ((s % NSS) * 32768 & 0xffff) + (q >> 1) * 8192
        ee = q & 1
        t = None
        for nt in range(4):
            for z in range(2):
                t = e.lds(f"ds_read_b64_tr_b16 {vr(fb+4*nt+2*z,2)}, v{V_WR+4*nt+2*ee+z} offset:{off}")
        return t

    def mf(s, q, nt):
        fb = FA + 16 * rbuf[(s, q)]
        fo = FO + 16 * (s % 3)
        c = "0" if (s == 0 and q == 0) else vr(ACC + 16 * nt, 16)
        e(f"v_mfma_f32_32x32x16_bf16 {vr(ACC+16*nt,16)}, {vr(fb+4*nt,4)}, {vr(fo+4*q,4)}, {c}")

    def need(pos, lab):
        e(f"s_cmp_lg_u32 s{S_W}, 0")
        e(f"s_cbranch_scc1 {lab}r")
        e(f"s_mov_b32 s{S_CNT}, {SPIN}")
        e.label(f"{lab}c")
        e(f"s_bfe_u32 s{S_T2k}, s{S_ORD}, {(4 << 16) | (4 * pos):#x}")
        e(f"s_bitcmp1_b32 s{S_MASK}, s{S_T2k}")
        e(f"s_cbranch_scc1 {lab}r")
        e(f"s_sub_u32 s{S_CNT}, s{S_CNT}, 1")
        e(f"s_cmp_eq_u32 s{S_CNT}, 0")
        e(f"s_cbranch_scc1 {lab}r")
        poll(lab)
        e(f"s_branch {lab}c")
        e.label(f"{lab}r")

    NPW = int(OPT.get("npw", "2"))
    for sw in range(NPW):
        for p_ in w_pieces(sw):
            p_()
    need(0, "L_op_n0")
    need(1, "L_op_n1")
    e("s_barrier")
    stamp(e, 62, 40)
    for p_ in o_pieces(0) + o_pieces(1):
        p_()
    for sw in range(NPW, 4):
        for p_ in w_pieces(sw):
            p_()
    for s in range(8):
        e.comment(f"oproj step {s}")
        set_page(((s % NSS) * 32768) >> 16)
        if s + 2 < 8:
            e(f"s_cmp_lg_u32 s{S_W}, 0")
            e(f"s_cbranch_scc1 L_op_rdy{s}")
            e(f"s_mov_b32 s{S_CNT}, {SPIN}")
            e.label(f"L_op_chk{s}")
            e(f"s_bfe_u32 s{S_T2k}, s{S_ORD}, {(4 << 16) | (4 * (s + 2)):#x}")
            e(f"s_bitcmp1_b32 s{S_MASK}, s{S_T2k}")
            e(f"s_cbranch_scc1 L_op_rdy{s}")
            e(f"s_sub_u32 s{S_CNT}, s{S_CNT}, 1")
            e(f"s_cmp_eq_u32 s{S_CNT}, 0")
            e(f"s_cbranch_scc1 L_op_rdy{s}")
            poll(f"c{s}")
            e(f"s_branch L_op_chk{s}")
            e.label(f"L_op_rdy{s}")
        e.wait_vm(max(wtok[s], otok[s]))
        e("s_barrier")
        pcs = (o_pieces(s + 2) if s + 2 < 8 else []) + (w_pieces(s + 4) if s + 4 < 8 else [])
        pcs += [lambda: None] * (8 - len(pcs))
        rt = {}
        rt[0] = reads(s, 0)
        if s > 0:
            mf(s - 1, 3, 0)
            mf(s - 1, 3, 1)
        rt[1] = reads(s, 1)
        if s > 0:
            mf(s - 1, 3, 2)
            mf(s - 1, 3, 3)
        k = 0
        for q in range(3):
            e.wait_lds(rt[q])
            for nt in range(4):
                mf(s, q, nt)
                if nt == 0 and q + 2 < 4:
                    rt[q + 2] = reads(s, q + 2)
                elif nt > 0 and k < 8:
                    pcs[k]()
                    k += 1
        e.wait_lds(rt[3])
        if STAMP == 3:
            stamp(e, 1 + s, 40)
    for nt in range(4):
        mf(7, 3, nt)
    e("s_nop 15")
    e("s_nop 3")
    e("s_barrier")
    e(f"s_cmp_eq_u32 s{S_KH}, 1")
    e("s_cbranch_scc1 L_op_kh1")
    for k in range(8):
        e(f"ds_write_b128 v{V_RW}, {vr(ACC+32+4*k,4)} offset:{k*1024}")
    e("s_branch L_op_khd")
    e.label("L_op_kh1")
    for k in range(8):
        e(f"ds_write_b128 v{V_RW}, {vr(ACC+4*k,4)} offset:{k*1024}")
    e("s_waitcnt lgkmcnt(0)")
    for k in range(32):
        e(f"v_mov_b32 v{ACC+k}, v{ACC+32+k}")
    e.label("L_op_khd")
    e(f"s_lshl_b32 s{S_T2k}, s{S_BR}, 5")
    e(f"s_add_u32 s{S_T2k}, s{S_T2k}, s{S_CI}")
    e(f"s_lshl_b32 s{S_T2k}, s{S_T2k}, 18")
    e(f"s_lshl_b32 s{S_T0k}, s{S_MS}, 16")
    e(f"s_add_u32 s{S_T0k}, s{S_T0k}, s{S_T2k}")
    e(f"s_lshl_b32 s{S_T1k}, s{S_KQ}, 14")
    e(f"s_add_u32 s{S_T0k}, s{S_T0k}, s{S_T1k}")
    e(f"s_lshl_b32 s{S_T1k}, s{S_KH}, 13")
    e(f"s_add_u32 s{S_T0k}, s{S_T0k}, s{S_T1k}")
    e(f"s_add_u32 s{S_T1k}, s{S_T0k}, 4096")
    e("s_waitcnt lgkmcnt(0)")
    e("s_barrier")
    for k in range(8):
        e(f"ds_read_b128 {vr(FA+4*k,4)}, v{V_RR} offset:{k*1024}")
    for k in range(8):
        e(f"s_waitcnt lgkmcnt({7-k})")
        for r in range(4):
            e(f"v_add_f32 v{ACC+4*k+r}, v{ACC+4*k+r}, v{FA+4*k+r}")
        so = S_T0k if k < 4 else S_T1k
        e(f"buffer_store_dwordx4 {vr(ACC+4*k,4)}, v{V_L16}, s[{SRD_P}:{SRD_P+3}], s{so} offen offset:{(k&3)*1024} sc1")
    e(f"s_lshl_b32 s{S_T0k}, s{S_KQ}, 16")
    e(f"s_add_u32 s{S_T2k}, s{S_T2k}, s{S_T0k}")
    e(f"s_lshl_b32 s{S_T0k}, s{S_W}, 11")
    e(f"s_add_u32 s{S_T2k}, s{S_T2k}, s{S_T0k}")
    e(f"s_mov_b32 s{S_OOFF}, s{S_T2k}")
    e(f"s_lshl_b32 s{S_WOFF}, s{S_MT}, 19")
    e(f"s_lshl_b32 s{S_T0k}, s{S_KQ}, 17")
    e(f"s_add_u32 s{S_WOFF}, s{S_WOFF}, s{S_T0k}")
    e(f"s_lshl_b32 s{S_T0k}, s{S_BR}, 11")
    e(f"s_add_u32 s{S_WOFF}, s{S_WOFF}, s{S_T0k}")
    e(f"s_lshl_b32 s{S_T0k}, s{S_NT}, 8")
    e(f"s_add_u32 s{S_WOFF}, s{S_WOFF}, s{S_T0k}")
    e(f"s_lshr_b32 s{S_T0k}, s{S_W}, 1")
    e(f"s_lshl_b32 s{S_T0k}, s{S_T0k}, 6")
    e(f"s_add_u32 s{S_WOFF}, s{S_WOFF}, s{S_T0k}")
    e(f"s_and_b32 s{S_T0k}, s{S_W}, 1")
    e(f"s_lshl_b32 s{S_T0k}, s{S_T0k}, 4")
    e(f"s_add_u32 s{S_WOFF}, s{S_WOFF}, s{S_T0k}")
    e("s_waitcnt vmcnt(0)")
    e("s_barrier")
    stamp(e, 61, 40)
    e(f"s_cmp_lg_u32 s{S_W}, 0")
    e("s_cbranch_scc1 L_op_fin")
    e("s_mov_b64 exec, 0xf")
    e(f"buffer_store_dword v{V_ONE}, v{V_FA2}, s[{SRD_F}:{SRD_F+3}], 0 offen sc1")
    e("s_mov_b64 exec, -1")
    e(f"s_mov_b32 s{S_CNT}, {SPIN}")
    e.label("L_op_poll2")
    poll("p2")
    e(f"s_lshr_b32 s{S_T0k}, s{S_MASK}, 16")
    e(f"s_cmp_eq_u32 s{S_T0k}, 15")
    e("s_cbranch_scc1 L_op_fin")
    e(f"s_sub_u32 s{S_CNT}, s{S_CNT}, 1")
    e(f"s_cmp_eq_u32 s{S_CNT}, 0")
    e("s_cbranch_scc1 L_op_fin")
    e("s_sleep 2")
    e("s_branch L_op_poll2")
    e.label("L_op_fin")
    e("s_barrier")
    for src in range(4):
        for q in range(2):
            e(f"buffer_load_dwordx4 {vr(FA+8*src+4*q,4)}, v{V_L16}, s[{SRD_P}:{SRD_P+3}], s{S_OOFF} offen offset:{q*1024} sc1")
        if src < 3:
            e(f"s_add_u32 s{S_OOFF}, s{S_OOFF}, 16384")
    e("s_waitcnt vmcnt(0)")
    for r in range(8):
        e(f"v_add_f32 v{FA+r}, v{FA+r}, v{FA+8+r}")
        e(f"v_add_f32 v{FA+16+r}, v{FA+16+r}, v{FA+24+r}")
    for r in range(8):
        e(f"v_add_f32 v{FA+r}, v{FA+r}, v{FA+16+r}")
    for k in range(4):
        e(f"v_cvt_pk_bf16_f32 v{FA+32+k}, v{FA+2*k}, v{FA+2*k+1}")
    e(f"buffer_store_dwordx4 {vr(FA+32,4)}, v{V_OA}, s[{SRD_OUT}:{SRD_OUT+3}], s{S_WOFF} offen")
    if STAMP:
        e("s_waitcnt vmcnt(0)")
    stamp(e, 63, 40)


e = Em()
emit_k1(e)
txt = HEADER + e.text() + '.section .rodata,"a"\n.p2align 6\n' + kernel_desc("concat_heads__gqa_block_cached__mha_block_cached__near_ridge_kernel")
open(OUT, "w").write(txt)
print("wrote", OUT, len(txt), "bytes")
```

```python
import sys, math, struct
sys.path.insert(0, "tools")
from asmlib import Em, vr, sr, kernel_desc

OUT = sys.argv[1] if len(sys.argv) > 1 else "concat_heads__gqa_block_cached__mha_block_cached__near_ridge.s"
OPT = dict(a.split("=") for a in sys.argv[2:])


def pol(name, dflt):
    v = OPT.get(name, dflt).strip()
    return "" if v in ("", "0") else " " + v.replace("+", " ")


NT_KVB = pol("nt_kvb", "nt")
NT_KVA = pol("nt_kva", "0")
NT_W = pol("nt_w", "0")
NT_X = pol("nt_x", "0")
NT_WO = pol("nt_wo", "0")
NT_OST = pol("nt_ost", "sc1")
NT_OLD = pol("nt_old", "sc1")
STAMP = int(OPT.get("stamp", "0"))
ONLY = OPT.get("only", "")
GRPBIT = int(OPT.get("grpbit", "4"))
FT = int(OPT.get("ft", "0"))
FT2 = int(OPT.get("ft2", "0"))
FT2O = int(OPT.get("ft2o", "0"))
KPRE_STEP = int(OPT.get("kpre_step", "2"))
SRD_ST = 88


def srd(e, dst, lo, hi, size, add=0):
    if add:
        e(f"s_add_u32 s{dst}, s{lo}, {add:#x}")
        e(f"s_addc_u32 s{dst+1}, s{hi}, 0")
        e(f"s_and_b32 s{dst+1}, s{dst+1}, 0xffff")
    else:
        e(f"s_mov_b32 s{dst}, s{lo}")
        e(f"s_and_b32 s{dst+1}, s{hi}, 0xffff")
    e(f"s_mov_b32 s{dst+2}, {size:#x}")
    e(f"s_mov_b32 s{dst+3}, 0x20000")


def stamp_init(e, wsreg, wavereg, base):
    if not STAMP: return
    if STAMP == 9:
        srd(e, SRD_ST, 38, 39, 256)
        e(f"s_cmp_eq_u32 s2, 101")
        e(f"s_cselect_b32 s92, 32, 0")
        e(f"s_cselect_b32 s93, 0, s2")
        e(f"s_add_u32 s93, s93, s{wavereg}")
        e(f"s_cmp_eq_u32 s93, 0")
        e(f"s_cselect_b32 s{SRD_ST+2}, 256, 0")
        return
    srd(e, SRD_ST, wsreg, wsreg + 1, 1 << 20, add=base)
    e(f"s_lshl_b32 s92, s2, 3")
    e(f"s_add_u32 s92, s92, s{wavereg}")
    e(f"s_lshl_b32 s92, s92, 8")


def stamp(e, idx, vt=250):
    if not STAMP: return
    if STAMP == 9:
        idx = {0: 1, 33: 2, 60: 3, 61: 4, 62: 5, 63: 6}[idx]
    e("s_memrealtime s[94:95]")
    e("s_waitcnt lgkmcnt(0)")
    e(f"v_mov_b32 v{vt}, s94")
    e(f"v_mov_b32 v{vt+1}, 0")
    e.vmem(f"buffer_store_dword v{vt}, v{vt+1}, s[{SRD_ST}:{SRD_ST+3}], s92 offen offset:{idx*4}")


def f32bits(x):
    return struct.unpack("<I", struct.pack("<f", x))[0]


CSCALE = (128 ** -0.5) * math.log2(math.e)

HEADER = """; Kernarg layout (104 bytes, ptrs only, base s[0:1]):
; @launch grid=(256,1,1) block=(512,1,1) lds=163840
.amdgcn_target "amdgcn-amd-amdhsa--gfx950"
.text
"""

S_W, S_J, S_I, S_XCD, S_CI = 3, 4, 5, 7, 8
S_HA, S_BPA, S_HB, S_BPB = 9, 10, 11, 12
SRD_X, SRD_WQ, SRD_K, SRD_V, SRD_O = 44, 48, 52, 56, 60
S_WQOFF, S_XOFF, S_KVOFF, S_RING, S_C, S_T0, S_T1, S_T2 = 72, 73, 74, 75, 76, 77, 78, 79
S_WQK, S_XK, S_KROT, S_WQM, S_XM = 80, 81, 82, 83, 84
V_L16 = 5
V_KVD = 6
V_KR = 10
V_VR = 18
V_T = 26
V_Q = 32
V_F = 64
V_G = 96
V_S = 128
V_WQR = 96
V_XR = 100
V_QXW = 86
V_WQD = 80
V_XD = 84
V_TWQ, V_TX, V_TD = 120, 121, 122
V_TKV = 31
QF = 128
QACC = 224

NR = 4
KPRE1 = int(OPT.get("kpre1", "6"))
FTKV = int(OPT.get("ftkv", "0"))
PACE = int(OPT.get("pace", "1"))
AROT = int(OPT.get("arot", "1"))
FTA = int(OPT.get("fta", "0"))
STAG = int(OPT.get("stag", "1"))
RST = int(OPT.get("rst", "4"))
RST_STEPS = [int(x) for x in OPT.get("rst_steps", "21,24,27,30").split(",")]
RST_REG = [128, 160, 192, 224, 96]
FLAG_OFF = 8 << 20


def wq_piece(slot):
    return 98304 + 16384 * slot


def x_piece(slot):
    return 16384 + 24576 * slot


XCH = 98304


def emit_k1_prologue(e):
    e.raw(".globl concat_heads__gqa_block_cached__mha_block_cached__near_ridge_kernel")
    e.raw(".p2align 8")
    e.raw(".type concat_heads__gqa_block_cached__mha_block_cached__near_ridge_kernel,@function")
    e.label("concat_heads__gqa_block_cached__mha_block_cached__near_ridge_kernel")
    e("s_cmp_ge_u32 s2, 256")
    e("s_cbranch_scc1 L_k1_end")
    e("s_load_dwordx16 s[16:31], s[0:1], 0")
    e("s_load_dwordx8 s[32:39], s[0:1], 64")
    e("s_load_dwordx2 s[40:41], s[0:1], 96")
    e("v_lshrrev_b32 v1, 6, v0")
    e("v_and_b32 v0, 63, v0")
    e("s_nop 0")
    e(f"v_readfirstlane_b32 s{S_W}, v1")
    e(f"s_and_b32 s{S_XCD}, s2, 7")
    e(f"s_lshr_b32 s{S_CI}, s2, 3")
    e(f"s_and_b32 s{S_J}, s{S_W}, 3")
    e(f"s_lshr_b32 s{S_I}, s{S_W}, 2")
    e(f"s_mov_b32 s{S_C}, {f32bits(CSCALE):#x}")
    e(f"s_lshl_b32 s{S_WQM}, s{S_J}, 12")
    e(f"s_lshl_b32 s{S_XM}, s{S_J}, 11")
    e(f"s_lshr_b32 s{S_HA}, s{S_XCD}, 1")
    e(f"s_lshl_b32 s{S_HA}, s{S_HA}, 3")
    e(f"s_and_b32 s{S_T0}, s{S_CI}, 7")
    e(f"s_add_u32 s{S_HA}, s{S_HA}, s{S_T0}")
    e(f"s_and_b32 s{S_BPA}, s{S_XCD}, 1")
    e(f"s_lshl_b32 s{S_BPA}, s{S_BPA}, 2")
    e(f"s_lshr_b32 s{S_T0}, s{S_CI}, 3")
    e(f"s_add_u32 s{S_BPA}, s{S_BPA}, s{S_T0}")
    e(f"s_lshl_b32 s{S_HB}, s{S_XCD}, 2")
    e(f"s_and_b32 s{S_T0}, s{S_CI}, 3")
    e(f"s_add_u32 s{S_HB}, s{S_HB}, s{S_T0}")
    e(f"s_lshr_b32 s{S_BPB}, s{S_CI}, 2")
    T0, T1, T2, T3, T4, T5 = 64, 65, 66, 67, 68, 69
    e(f"v_lshlrev_b32 v{V_L16}, 4, v0")
    e(f"v_lshrrev_b32 v{T0}, 4, v0")
    e(f"v_and_b32 v{T1}, 15, v0")
    e(f"v_lshlrev_b32 v{T2}, 2, v{T0}")
    e(f"v_xor_b32 v{T1}, v{T1}, v{T2}")
    e(f"v_lshlrev_b32 v{T1}, 4, v{T1}")
    e(f"v_lshlrev_b32 v{T2}, 8, v{T0}")
    e(f"v_add_u32 v{V_KVD}, v{T1}, v{T2}")
    for n in range(1, 4):
        e(f"v_xor_b32 v{V_KVD+n}, {16*n}, v{V_KVD}")
    e(f"v_lshlrev_b32 v{T2}, 13, v{T0}")
    e(f"v_add_u32 v{V_WQD}, v{T1}, v{T2}")
    for q in range(1, 4):
        e(f"v_xor_b32 v{V_WQD+q}, {16*q}, v{V_WQD}")
        e(f"v_add_u32 v{V_WQD+q}, {q*(32768-1024)}, v{V_WQD+q}")
    e(f"v_lshrrev_b32 v{T2}, 3, v0")
    e(f"v_lshlrev_b32 v{T2}, 11, v{T2}")
    e(f"v_and_b32 v{T3}, 7, v0")
    e(f"v_xor_b32 v{T3}, v{T3}, v{T0}")
    e(f"v_lshlrev_b32 v{T3}, 4, v{T3}")
    e(f"v_add_u32 v{V_XD}, v{T2}, v{T3}")
    e(f"v_xor_b32 v{V_XD+1}, 64, v{V_XD}")
    e(f"v_add_u32 v{V_XD+1}, {8*2048-1024}, v{V_XD+1}")
    e(f"v_and_b32 v{T2}, 31, v0")
    e(f"v_lshrrev_b32 v{T3}, 5, v0")
    e(f"v_lshrrev_b32 v{T4}, 1, v{T2}")
    e(f"v_and_b32 v{T4}, 7, v{T4}")
    e(f"v_xor_b32 v{T4}, v{T4}, v{T3}")
    e(f"v_lshlrev_b32 v{T4}, 4, v{T4}")
    e(f"v_lshlrev_b32 v{T5}, 7, v{T2}")
    e(f"v_add_u32 v{T4}, v{T4}, v{T5}")
    e(f"v_mov_b32 v{V_XR}, v{T4}")
    for s in range(1, 4):
        e(f"v_xor_b32 v{V_XR+s}, {32*s}, v{V_XR}")
    for s in range(4):
        e(f"v_add_u32 v{V_XR+4+s}, 65536, v{V_XR+s}")
    e(f"v_and_b32 v{T4}, 3, v{T2}")
    e(f"v_lshlrev_b32 v{T4}, 2, v{T4}")
    e(f"v_lshrrev_b32 v{T5}, 2, v{T2}")
    e(f"v_and_b32 v{T5}, 3, v{T5}")
    e(f"v_or_b32 v{T4}, v{T4}, v{T5}")
    e(f"v_xor_b32 v{T4}, v{T4}, v{T3}")
    e(f"v_lshlrev_b32 v{T4}, 4, v{T4}")
    e(f"v_lshlrev_b32 v{T5}, 8, v{T2}")
    e(f"v_add_u32 v{V_KR}, v{T4}, v{T5}")
    for s in range(1, 8):
        e(f"v_xor_b32 v{V_KR+s}, {32*s}, v{V_KR}")
    e(f"v_and_b32 v{T1}, 1, v{T0}")
    e(f"v_lshrrev_b32 v{T2}, 2, v0")
    e(f"v_and_b32 v{T2}, 3, v{T2}")
    e(f"v_and_b32 v{T4}, 1, v0")
    e(f"v_lshrrev_b32 v{T5}, 1, v0")
    e(f"v_and_b32 v{T5}, 1, v{T5}")
    e(f"v_lshlrev_b32 v{T5}, 3, v{T5}")
    e(f"v_lshlrev_b32 v{V_VR+2}, 6, v{T2}")
    e(f"v_add_u32 v{T5}, v{T5}, v{V_VR+2}")
    e(f"v_lshlrev_b32 v1, 1, v{T4}")
    e(f"v_or_b32 v1, v1, v{T1}")
    e(f"v_xor_b32 v1, v1, v{T3}")
    e(f"v_lshlrev_b32 v1, 4, v1")
    e(f"v_add_u32 v1, v1, v{T5}")
    e(f"v_lshlrev_b32 v{V_VR+1}, 2, v{T3}")
    e(f"v_add_u32 v{V_VR+1}, v{V_VR+1}, v{T2}")
    e(f"v_lshlrev_b32 v{V_VR+1}, 8, v{V_VR+1}")
    e(f"v_add_u32 v{V_VR}, v1, v{V_VR+1}")
    for dt in range(4):
        for z in range(2):
            if dt == 0 and z == 0:
                continue
            e(f"v_xor_b32 v{V_VR+2*dt+z}, {64*dt + 32*z + 2048*z}, v{V_VR}")
    e(f"v_lshlrev_b32 v1, 1, v{T1}")
    e(f"v_or_b32 v1, v1, v{T4}")
    e(f"v_lshlrev_b32 v{V_WQR+1}, 1, v{T3}")
    e(f"v_xor_b32 v1, v1, v{V_WQR+1}")
    e(f"v_lshlrev_b32 v1, 4, v1")
    e(f"v_add_u32 v1, v1, v{T5}")
    e(f"v_lshlrev_b32 v{V_WQR+1}, 3, v{T3}")
    e(f"v_add_u32 v{V_WQR+1}, v{V_WQR+1}, v{T2}")
    e(f"v_lshlrev_b32 v{V_WQR+1}, 8, v{V_WQR+1}")
    e(f"v_add_u32 v1, v1, v{V_WQR+1}")
    e(f"s_lshl_b32 s{S_T0}, s{S_J}, 6")
    e(f"v_xor_b32 v1, s{S_T0}, v1")
    e(f"v_add_u32 v{V_WQR}, 65536, v1")
    e(f"v_xor_b32 v{V_WQR+1}, {16+1024}, v{V_WQR}")
    e(f"v_add_u32 v{V_WQR+2}, 65536, v{V_WQR}")
    e(f"v_add_u32 v{V_WQR+3}, 65536, v{V_WQR+1}")
    e(f"s_lshl_b32 s{S_T0}, s{S_I}, 14")
    e(f"s_add_u32 s{S_T0}, s{S_T0}, s{S_XM}")
    e(f"s_add_u32 s{S_T0}, s{S_T0}, {XCH}")
    e(f"v_add_u32 v{V_QXW}, s{S_T0}, v{V_L16}")
    e(f"v_and_b32 v1, 15, v0")
    e(f"v_lshrrev_b32 v{V_TWQ}, 1, v1")
    e(f"v_lshlrev_b32 v{V_TWQ}, 13, v{V_TWQ}")
    e(f"v_and_b32 v1, 1, v1")
    e(f"v_lshlrev_b32 v1, 7, v1")
    e(f"v_add_u32 v{V_TWQ}, v{V_TWQ}, v1")
    e(f"v_and_b32 v{V_TX}, 7, v0")
    e(f"v_lshlrev_b32 v{V_TX}, 11, v{V_TX}")
    e(f"v_lshlrev_b32 v{V_TKV}, 7, v0")
    e("s_waitcnt lgkmcnt(0)")
    stamp_init(e, 40, S_W, 16 << 20)
    srd(e, 64, 40, 41, 65536, add=FLAG_OFF)
    srd(e, 68, 38, 39, 256)
    e(f"s_cmp_lg_u32 s{S_W}, 7")
    e("s_cbranch_scc1 L_k1_noflag")
    e("s_lshl_b32 s14, s2, 8")
    e("v_mov_b32 v1, 0")
    e("v_lshlrev_b32 v2, 2, v0")
    e("buffer_store_dword v1, v2, s[64:67], s14 offen sc1")
    e("v_mov_b32 v2, 1")
    e("s_waitcnt vmcnt(0)")
    e("s_mov_b64 exec, 1")
    e("buffer_atomic_add v2, v1, s[68:71], 0 offen")
    e("s_mov_b64 exec, -1")
    e.label("L_k1_noflag")
    e(f"s_cmp_ge_u32 s{S_W}, 4")
    e("s_cbranch_scc1 L_k1_B")


def emit_k1_role(e, g):
    e.vm_issued = 0
    e.lg_issued = 0
    nslot = 3 if g == 1 else 2
    wstride = 24576 if g == 1 else 16384
    rbase = 0 if g == 1 else 98304
    SH, SBP = (S_HA, S_BPA) if g == 0 else (S_HB, S_BPB)
    kv_tok, wq_tok, x_tok = {}, {}, {}

    def ring_setup(br, adv=0):
        sh, sbp = (S_HA, S_BPA) if br == 0 else (S_HB, S_BPB)
        px, pw = (16, 22) if br == 0 else (26, 32)
        srd(e, SRD_X, px, px + 1, 1 << 20)
        srd(e, SRD_WQ, pw, pw + 1, 8 << 20)
        e(f"s_lshl_b32 s{S_XOFF}, s{sbp}, 17")
        e(f"s_lshl_b32 s{S_T0}, s{S_J}, 15")
        e(f"s_add_u32 s{S_XOFF}, s{S_XOFF}, s{S_T0}")
        e(f"s_lshl_b32 s{S_WQOFF}, s{sh}, 8")
        e(f"s_lshl_b32 s{S_T0}, s{S_J}, 17")
        e(f"s_add_u32 s{S_WQOFF}, s{S_WQOFF}, s{S_T0}")
        if br == 1:
            e(f"s_lshl_b32 s{S_T0}, s{sbp}, 1")
            e(f"s_and_b32 s{S_T1}, s{S_CI}, 3")
            e(f"s_lshl_b32 s{S_T1}, s{S_T1}, 2")
        else:
            e(f"s_lshr_b32 s{S_T0}, s{S_CI}, 3")
            e(f"s_lshl_b32 s{S_T0}, s{S_T0}, 2")
            e(f"s_and_b32 s{S_T1}, s{S_CI}, 7")
            e(f"s_lshl_b32 s{S_T1}, s{S_T1}, 1")
        e(f"s_add_u32 s{S_T0}, s{S_T0}, s{S_T1}")
        if adv:
            e(f"s_add_u32 s{S_T0}, s{S_T0}, {adv}")
        e(f"s_and_b32 s{S_T0}, s{S_T0}, 15")
        e(f"s_lshl_b32 s{S_WQK}, s{S_T0}, 19")
        e(f"s_lshl_b32 s{S_XK}, s{S_T0}, 7")

    def issue_chunk(c):
        if c == 16:
            ring_setup(0)
        e(f"s_add_u32 m0, s{S_XM}, {x_piece(c % NR)}")
        e(f"s_add_u32 s{S_T0}, s{S_XOFF}, s{S_XK}")
        e.vmem(f"buffer_load_dwordx4 v{V_XD}, s[{SRD_X}:{SRD_X+3}], s{S_T0} offen{NT_X} lds")
        e.vmem(f"buffer_load_dwordx4 v{V_XD+1}, s[{SRD_X}:{SRD_X+3}], s{S_T0} offen offset:1024{NT_X} lds")
        e(f"s_add_u32 m0, s{S_WQM}, {wq_piece(c % NR)}")
        e(f"s_add_u32 s{S_T0}, s{S_WQOFF}, s{S_WQK}")
        for q in range(4):
            wq_tok[c] = e.vmem(f"buffer_load_dwordx4 v{V_WQD+q}, s[{SRD_WQ}:{SRD_WQ+3}], s{S_T0} offen offset:{q*1024}{NT_W} lds")
        e(f"s_add_u32 s{S_XK}, s{S_XK}, 128")
        e(f"s_and_b32 s{S_XK}, s{S_XK}, 2047")
        e(f"s_add_u32 s{S_WQK}, s{S_WQK}, 0x80000")
        e(f"s_and_b32 s{S_WQK}, s{S_WQK}, 0x7fffff")

    def kv_setup():
        pk, pv = (18, 20) if g == 0 else (28, 30)
        kvsize = (8 << 20) if g == 0 else (64 << 20)
        srd(e, SRD_K, pk, pk + 1, kvsize)
        srd(e, SRD_V, pv, pv + 1, kvsize)
        srd(e, SRD_O, 40, 41, 4 << 20, add=g * (4 << 20))
        e(f"s_lshl_b32 s{S_T0}, s{SBP}, 1")
        e(f"s_lshr_b32 s{S_T1}, s{S_J}, 1")
        e(f"s_add_u32 s{S_T0}, s{S_T0}, s{S_T1}")
        if g == 0:
            e(f"s_lshl_b32 s{S_T1}, s{S_T0}, 2")
            e(f"s_lshr_b32 s{S_T2}, s{SH}, 3")
        else:
            e(f"s_lshl_b32 s{S_T1}, s{S_T0}, 5")
            e(f"s_mov_b32 s{S_T2}, s{SH}")
        e(f"s_add_u32 s{S_T1}, s{S_T1}, s{S_T2}")
        e(f"s_lshl_b32 s{S_KVOFF}, s{S_T1}, 17")
        e(f"s_and_b32 s{S_T1}, s{S_J}, 1")
        e(f"s_lshl_b32 s{S_T1}, s{S_T1}, 16")
        e(f"s_add_u32 s{S_KVOFF}, s{S_KVOFF}, s{S_T1}")
        if g == 1:
            e(f"s_add_u32 s{S_KROT}, s{SH}, s{S_T0}")
        elif AROT:
            e(f"s_mov_b32 s{S_KROT}, s{SH}")
        else:
            e(f"s_mov_b32 s{S_KROT}, s{S_T0}")
        e(f"s_and_b32 s{S_KROT}, s{S_KROT}, 7")
        e(f"s_lshl_b32 s{S_KROT}, s{S_KROT}, 13")
        e(f"s_mul_i32 s{S_RING}, s{S_J}, {wstride}")
        if rbase:
            e(f"s_add_u32 s{S_RING}, s{S_RING}, {rbase}")
        for i in range(8):
            e(f"v_add_u32 v{V_KR+i}, s{S_RING}, v{V_KR+i}")
            e(f"v_add_u32 v{V_VR+i}, s{S_RING}, v{V_VR+i}")

    def issue_kv(n):
        nt_kv = NT_KVB if g == 1 else NT_KVA
        srd_ = SRD_K if n < 8 else SRD_V
        t = n & 7
        slot = n % nslot
        fta = FTA and g == 0 and t == 0
        if fta:
            nt_kv = " nt"
        e(f"s_add_u32 s{S_T0}, s{S_KROT}, {t*8192}")
        e(f"s_and_b32 s{S_T0}, s{S_T0}, 0xffff")
        e(f"s_add_u32 s{S_T0}, s{S_T0}, s{S_KVOFF}")
        for half in range(2):
            e(f"s_add_u32 m0, s{S_RING}, {slot*8192 + half*4096}")
            if half:
                e(f"s_add_u32 s{S_T0}, s{S_T0}, 4096")
            else:
                e("s_nop 0")
            for q in range(4):
                tok = e.vmem(f"buffer_load_dwordx4 v{V_KVD+q}, s[{srd_}:{srd_+3}], s{S_T0} offen offset:{q*1024}{nt_kv} lds")
        kv_tok[n] = tok
        if fta:
            e(f"s_sub_u32 s{S_T0}, s{S_T0}, 4096")
            e.vmem(f"buffer_load_dword v1, v{V_TKV}, s[{srd_}:{srd_+3}], s{S_T0} offen")

    st_tok = {}

    def stage_load(k):
        t = 2 + k
        rb = RST_REG[k]
        e(f"s_add_u32 s{S_T0}, s{S_KROT}, {t*8192}")
        e(f"s_and_b32 s{S_T0}, s{S_T0}, 0xffff")
        e(f"s_add_u32 s{S_T0}, s{S_T0}, s{S_KVOFF}")
        for half in range(2):
            if half:
                e(f"s_add_u32 s{S_T0}, s{S_T0}, 4096")
            for q in range(4):
                st_tok[k] = e.vmem(f"buffer_load_dwordx4 {vr(rb+16*half+4*q,4)}, v{V_KVD+q}, s[{SRD_K}:{SRD_K+3}], s{S_T0} offen offset:{q*1024}{NT_KVB}")

    def stage_flush(k):
        t = 2 + k
        rb = RST_REG[k]
        e.wait_vm(st_tok[k])
        e(f"v_add_u32 v1, s{S_RING}, v{V_L16}")
        for i in range(8):
            e.lds(f"ds_write_b128 v1, {vr(rb+4*i,4)} offset:{(t % nslot)*8192 + i*1024}")
        kv_tok[t] = st_tok[k]

    def touch_kva():
        e(f"s_add_u32 s{S_T0}, s{S_KROT}, s{S_KVOFF}")
        for srd_ in (SRD_K, SRD_V):
            if FTKV == 1:
                e.vmem(f"buffer_load_dword v{V_TD}, v{V_TKV}, s[{srd_}:{srd_+3}], s{S_T0} offen nt")
            e.vmem(f"buffer_load_dword v{V_TD}, v{V_TKV}, s[{srd_}:{srd_+3}], s{S_T0} offen")

    def reads_ks(c, ks):
        fb = QF + 48 * (c & 1) + 12 * ks
        slot = c % NR
        off = wq_piece(slot) + ks * 4096
        for z in range(2):
            e.lds(f"ds_read_b64_tr_b16 {vr(fb+2*z,2)}, v{V_WQR+2*((off>>16)-1)+z} offset:{off & 0xffff}")
        for it in range(2):
            off = x_piece(slot) + it * 4096
            e.lds(f"ds_read_b128 {vr(fb+4+4*it,4)}, v{V_XR+4*(off>>16)+ks} offset:{off & 0xffff}")

    def mfma_ks(c, ks, its=(0, 1)):
        fb = QF + 48 * (c & 1) + 12 * ks
        for it in its:
            acc = QACC + 16 * it
            cc = "0" if ((c & 15) == 0 and ks == 0) else vr(acc, 16)
            e(f"v_mfma_f32_32x32x16_bf16 {vr(acc,16)}, {vr(fb,4)}, {vr(fb+4+4*it,4)}, {cc}")

    def mine(c):
        return 0 <= c < 32 and ((c < 16) == (g == 1))

    def loads(c):
        return c < 32 and ((c <= 18) == (g == 0))

    stamp(e, 0, 124)
    if g == 0:
        ring_setup(1)
        for c in range(NR - 1):
            issue_chunk(c)
    else:
        ring_setup(0, adv=3)
    kv_setup()
    for s in range(32):
        e.comment(f"qproj step {s}")
        if loads(s):
            e.wait_vm(wq_tok[s])
        e("s_barrier")
        for i in range(8):
            if mine(s - 1):
                mfma_ks(s - 1, i >> 1, (i & 1,))
            if mine(s) and i < 4:
                reads_ks(s, i)
        if loads(s + NR - 1):
            issue_chunk(s + NR - 1)
        if s == 8 and OPT.get("qonly"):
            stamp(e, 60, 124)
        if s == 15 and OPT.get("qonly"):
            stamp(e, 61, 124)
        if s == 22 and OPT.get("qonly"):
            stamp(e, 62, 124)
        if s == 31 and OPT.get("qonly"):
            stamp(e, 63, 124)
            stamp(e, 33, 124)
            e("s_endpgm")
        if g == 1 and s == KPRE_STEP and not OPT.get("qonly"):
            issue_kv(0)
        if g == 1 and s == KPRE1 and not OPT.get("qonly"):
            issue_kv(1)
        if g == 1 and RST and s == 17:
            for k in range(16):
                e(f"v_cvt_pk_bf16_f32 v{V_F+k}, v{QACC+2*k}, v{QACC+2*k+1}")
        if g == 1 and s in RST_STEPS[:RST]:
            stage_load(RST_STEPS.index(s))
        if mine(s):
            e("s_waitcnt lgkmcnt(0)")
        if STAMP == 2:
            stamp(e, 1 + s, 124)
    if mine(31):
        for ks in range(4):
            mfma_ks(31, ks)
    if not (g == 1 and RST):
        e("s_nop 15")
        e("s_nop 3")
        for k in range(16):
            e(f"v_cvt_pk_bf16_f32 v{V_F+k}, v{QACC+2*k}, v{QACC+2*k+1}")
    for it in range(2):
        for ss in range(2):
            e(f"ds_write_b128 v{V_QXW}, {vr(V_F+8*it+4*ss,4)} offset:{it*8192+ss*1024}")
    e(f"s_lshr_b32 s{S_T1}, s{S_J}, 1")
    e(f"s_lshl_b32 s{S_T1}, s{S_T1}, 13")
    e(f"s_add_u32 s{S_T1}, s{S_T1}, {XCH + g*16384}")
    e(f"v_add_u32 v{V_T}, s{S_T1}, v{V_L16}")
    e("s_waitcnt lgkmcnt(0)")
    e("s_barrier")
    for s in range(8):
        e(f"ds_read_b128 {vr(V_Q+4*s,4)}, v{V_T} offset:{s*1024}")
    e("s_waitcnt lgkmcnt(0)")
    e("s_barrier")
    def refill(n):
        if g == 1 and 2 <= n < 2 + RST:
            stage_flush(n - 2)
        else:
            issue_kv(n)

    for n in range(2 if (g == 1 and not OPT.get("qonly")) else 0, nslot):
        refill(n)
    stamp(e, 33, V_T + 2)

    FREE = int(OPT.get("free", "6"))
    NB = int(OPT.get("nb", "10"))
    if g == 1 and FREE:
        m = 16 - FREE
        nbar = [0] * FREE + [(NB * (i + 1)) // m - (NB * i) // m for i in range(m)]
    else:
        nbar = [0] + [(NB * (i + 1)) // 15 - (NB * i) // 15 for i in range(15)]
    assert sum(nbar) == NB
    VMX = V_T
    VM, VMC, VL, VE, VP = V_Q, V_Q + 1, V_Q + 2, V_Q + 8, V_Q + 16

    def max_tile(t):
        b = V_S + 16 * t
        for ch in range(2):
            bb = b + 8 * ch
            if t == 0:
                e(f"v_max3_f32 v{VMX+ch}, v{bb}, v{bb+1}, v{bb+2}")
                e(f"v_max3_f32 v{VMX+ch}, v{VMX+ch}, v{bb+3}, v{bb+4}")
                e(f"v_max3_f32 v{VMX+ch}, v{VMX+ch}, v{bb+5}, v{bb+6}")
                e(f"v_max_f32 v{VMX+ch}, v{VMX+ch}, v{bb+7}")
            else:
                for k in range(4):
                    e(f"v_max3_f32 v{VMX+ch}, v{VMX+ch}, v{bb+2*k}, v{bb+2*k+1}")

    def exp_tile(t):
        p = VP + 8 * (t & 1)
        for hf in range(2):
            b = V_S + 16 * t + 8 * hf
            for i in range(8):
                e(f"v_fma_f32 v{VE+i}, v{b+i}, s{S_C}, -v{VMC}")
            for i in range(8):
                e(f"v_exp_f32 v{VE+i}, v{VE+i}")
            e("s_nop 0")
            for i in range(8):
                e(f"v_add_f32 v{VL+(i&3)}, v{VL+(i&3)}, v{VE+i}")
            for k in range(4):
                e(f"v_cvt_pk_bf16_f32 v{p+4*hf+k}, v{VE+2*k}, v{VE+2*k+1}")

    for t in range(8):
        e.comment(f"K tile {t}")
        if PACE == 2 and t > 0:
            e("s_barrier")
        e.wait_vm(kv_tok[t])
        if PACE == 1:
            for _ in range(nbar[t]):
                e("s_barrier")
        toks = []
        for s in range(8):
            toks.append(e.lds(f"ds_read_b128 {vr(V_F+4*s,4)}, v{V_KR+s} offset:{(t%nslot)*8192}"))
        if t > 0:
            max_tile(t - 1)
        for s in range(8):
            e.wait_lds(toks[s])
            c = "0" if s == 0 else vr(V_S + 16 * t, 16)
            e(f"v_mfma_f32_32x32x16_bf16 {vr(V_S+16*t,16)}, {vr(V_F+4*s,4)}, {vr(V_Q+4*s,4)}, {c}")
        refill(t + nslot)
        if STAMP == 2:
            stamp(e, 34 + t, V_T + 2)
    e("s_nop 7")
    max_tile(7)
    e(f"v_max_f32 v{VMX}, v{VMX}, v{VMX+1}")
    e(f"v_mov_b32 v{VMX+1}, v{VMX}")
    e("s_nop 1")
    e(f"v_permlane32_swap_b32 v{VMX}, v{VMX+1}")
    e("s_nop 1")
    e(f"v_max_f32 v{VM}, v{VMX}, v{VMX+1}")
    e(f"v_mul_f32 v{VMC}, s{S_C}, v{VM}")
    for i in range(4):
        e(f"v_mov_b32 v{VL+i}, 0")
    exp_tile(0)
    exp_tile(1)
    OA = [V_S, V_S + 16, V_G, V_G + 16]
    for t in range(8):
        n = 8 + t
        if PACE == 2:
            e("s_barrier")
        e.wait_vm(kv_tok[n])
        if PACE == 1:
            for _ in range(nbar[n]):
                e("s_barrier")
        toks = []
        for u in range(2):
            for dt in range(4):
                for z in range(2):
                    toks.append(e.lds(f"ds_read_b64_tr_b16 {vr(V_F+16*u+4*dt+2*z,2)}, v{V_VR+2*dt+z} offset:{(n%nslot)*8192+u*4096}"))
        p = VP + 8 * (t & 1)
        for u in range(2):
            for dt in range(4):
                e.wait_lds(toks[8 * u + 2 * dt + 1])
                c = "0" if (t == 0 and u == 0) else vr(OA[dt], 16)
                e(f"v_mfma_f32_32x32x16_bf16 {vr(OA[dt],16)}, {vr(V_F+16*u+4*dt,4)}, {vr(p+4*u,4)}, {c}")
        if n + nslot < 16:
            issue_kv(n + nslot)
        if t + 2 < 8:
            exp_tile(t + 2)
        if STAMP == 2:
            stamp(e, 42 + t, V_T + 2)
    stamp(e, 60, V_T + 2)
    e(f"v_add_f32 v{VL}, v{VL}, v{VL+1}")
    e(f"v_add_f32 v{VL+2}, v{VL+2}, v{VL+3}")
    e(f"v_add_f32 v{VL}, v{VL}, v{VL+2}")
    e(f"v_mov_b32 v{VL+1}, v{VL}")
    e("s_nop 1")
    e(f"v_permlane32_swap_b32 v{VL}, v{VL+1}")
    e("s_nop 1")
    e(f"v_add_f32 v{VM+1}, v{VL}, v{VL+1}")
    e("s_nop 15")
    lab = f"L_k1_g{g}"
    e(f"v_add_u32 v{V_T+1}, s{S_RING}, v{V_L16}")
    e(f"s_xor_b32 s{S_T1}, s{S_J}, 1")
    e(f"s_mul_i32 s{S_T1}, s{S_T1}, {wstride}")
    if rbase:
        e(f"s_add_u32 s{S_T1}, s{S_T1}, {rbase}")
    e(f"v_add_u32 v{V_T+2}, s{S_T1}, v{V_L16}")
    e(f"v_lshlrev_b32 v{V_T+3}, 3, v0")
    e(f"v_add_u32 v1, s{S_T1}, v{V_T+3}")
    e(f"v_add_u32 v{V_T+3}, s{S_RING}, v{V_T+3}")
    e(f"ds_write_b64 v{V_T+3}, {vr(VM,2)} offset:8192")
    e(f"s_and_b32 s{S_T2}, s{S_J}, 1")
    e(f"s_cmp_eq_u32 s{S_T2}, 1")
    e(f"s_cbranch_scc1 {lab}_j1")
    for k in range(8):
        e(f"ds_write_b128 v{V_T+1}, {vr(V_G+4*k,4)} offset:{k*1024}")
    e(f"s_branch {lab}_jd")
    e.label(f"{lab}_j1")
    for k in range(8):
        e(f"ds_write_b128 v{V_T+1}, {vr(V_S+4*k,4)} offset:{k*1024}")
    e("s_waitcnt lgkmcnt(0)")
    for k in range(32):
        e(f"v_mov_b32 v{V_S+k}, v{V_G+k}")
    e.label(f"{lab}_jd")
    e("s_waitcnt lgkmcnt(0)")
    e("s_barrier")
    PO = V_F
    OACC = V_S
    e(f"ds_read_b64 {vr(VM+2,2)}, v1 offset:8192")
    for k in range(8):
        e(f"ds_read_b128 {vr(PO+4*k,4)}, v{V_T+2} offset:{k*1024}")
    e("s_waitcnt lgkmcnt(8)")
    MT, FA_, FB_, LT = VM + 4, VM + 5, VM + 6, VM + 7
    e(f"v_max_f32 v{MT}, v{VM}, v{VM+2}")
    e(f"v_sub_f32 v{FA_}, v{VM}, v{MT}")
    e(f"v_sub_f32 v{FB_}, v{VM+2}, v{MT}")
    e(f"v_mul_f32 v{FA_}, s{S_C}, v{FA_}")
    e(f"v_mul_f32 v{FB_}, s{S_C}, v{FB_}")
    e(f"v_exp_f32 v{FA_}, v{FA_}")
    e(f"v_exp_f32 v{FB_}, v{FB_}")
    e("s_nop 0")
    e(f"v_mul_f32 v{LT}, v{VM+1}, v{FA_}")
    e(f"v_fma_f32 v{LT}, v{VM+3}, v{FB_}, v{LT}")
    e(f"v_rcp_f32 v{LT}, v{LT}")
    e("s_nop 0")
    e(f"v_mul_f32 v{FA_}, v{FA_}, v{LT}")
    e(f"v_mul_f32 v{FB_}, v{FB_}, v{LT}")
    e(f"s_lshl_b32 s{S_T0}, s{SBP}, 5")
    e(f"s_add_u32 s{S_T0}, s{S_T0}, s{SH}")
    e(f"s_lshl_b32 s{S_T0}, s{S_T0}, 14")
    e(f"s_lshl_b32 s{S_T1}, s{S_J}, 12")
    e(f"s_add_u32 s{S_T0}, s{S_T0}, s{S_T1}")
    e("s_waitcnt lgkmcnt(0)")
    for k in range(32):
        e(f"v_mul_f32 v{OACC+k}, v{OACC+k}, v{FA_}")
        e(f"v_fma_f32 v{OACC+k}, v{PO+k}, v{FB_}, v{OACC+k}")
    for k in range(16):
        e(f"v_cvt_pk_bf16_f32 v{PO+k}, v{OACC+2*k}, v{OACC+2*k+1}")
    for fr in range(4):
        e(f"buffer_store_dwordx4 {vr(PO+4*fr,4)}, v{V_L16}, s[{SRD_O}:{SRD_O+3}], s{S_T0} offen offset:{fr*1024}{NT_OST}")
    if g == 0:
        e("s_branch L_oproj")


def emit_k1(e):
    emit_k1_prologue(e)
    emit_k1_role(e, 0)
    e.label("L_k1_B")
    emit_k1_role(e, 1)
    emit_oproj(e)
    e.label("L_k1_end")
    e("s_endpgm")


PART_OFF = 32 << 20
NMIN = int(OPT.get("nmin", "3"))
SPIN = 0x40000


def emit_oproj(e):
    NSS = 5
    e.label("L_oproj")
    e.vm_issued = 0
    e.lg_issued = 0
    S_BR, S_KQ, S_MT, S_NT, S_MS, S_KH = 85, 86, 87, 13, 15, 6
    SRD_A, SRD_W, SRD_OUT, SRD_P = 44, 48, 52, 56
    SRD_F, SRD_D = 64, 68
    S_OOFF, S_WOFF, S_W4K, S_T0k, S_T1k, S_ORD, S_MASK, S_CNT, S_FL = 72, 73, 74, 77, 78, 80, 81, 82, 14
    S_T2k, S_ROT = 79, 75
    V_WD = 6
    V_WR = 10
    T0, T1, T2, T3, T4, T5 = range(26, 32)
    V_FA, V_ONE, V_L4, V_CN = 32, 33, 34, 35
    V_RW, V_RR, V_OA, V_FA2 = 36, 37, 38, 39
    FO = 80
    FA = 128
    ACC = 192
    e(f"s_lshr_b32 s{S_BR}, s{S_XCD}, 2")
    e(f"s_and_b32 s{S_KQ}, s{S_XCD}, 3")
    e(f"s_lshr_b32 s{S_MT}, s{S_CI}, 3")
    e(f"s_and_b32 s{S_NT}, s{S_CI}, 7")
    e(f"s_and_b32 s{S_MS}, s{S_W}, 3")
    e(f"s_lshr_b32 s{S_KH}, s{S_W}, 2")
    e(f"s_lshl_b32 s{S_FL}, s2, 8")
    e(f"v_lshlrev_b32 v{V_L4}, 2, v0")
    e(f"v_mov_b32 v{V_ONE}, 1")
    e(f"v_mov_b32 v{T0}, 0")
    e(f"s_cmp_lg_u32 s{S_W}, 0")
    e("s_cbranch_scc1 L_op_nocnt")
    e(f"buffer_load_dword v{V_CN}, v{T0}, s[{SRD_D}:{SRD_D+3}], 0 offen sc1")
    e.label("L_op_nocnt")
    for br, sh, sbp, dst in ((0, S_HA, S_BPA, S_T0k), (1, S_HB, S_BPB, S_T1k)):
        e(f"s_lshr_b32 s{dst}, s{sbp}, 1")
        e(f"s_lshl_b32 s{dst}, s{dst}, 6")
        e(f"s_lshr_b32 s{S_T2k}, s{sh}, 3")
        e(f"s_add_u32 s{dst}, s{dst}, s{S_T2k}")
        if br:
            e(f"s_add_u32 s{dst}, s{dst}, 4")
        e(f"s_lshl_b32 s{dst}, s{dst}, 8")
        e(f"s_and_b32 s{S_T2k}, s{sbp}, 1")
        e(f"s_lshl_b32 s{S_T2k}, s{S_T2k}, 5")
        e(f"s_add_u32 s{dst}, s{dst}, s{S_T2k}")
        e(f"s_and_b32 s{S_T2k}, s{sh}, 7")
        e(f"s_lshl_b32 s{S_T2k}, s{S_T2k}, 2")
        e(f"s_add_u32 s{dst}, s{dst}, s{S_T2k}")
    e(f"v_mov_b32 v{T1}, s{S_T0k}")
    e(f"v_mov_b32 v{T2}, s{S_T1k}")
    e(f"v_cmp_gt_u32 vcc, 8, v0")
    e(f"v_and_b32 v{T3}, 7, v0")
    e(f"v_lshlrev_b32 v{T3}, 11, v{T3}")
    e(f"v_cndmask_b32 v{V_FA}, v{T2}, v{T1}, vcc")
    e(f"v_add_u32 v{V_FA}, v{V_FA}, v{T3}")
    e(f"s_lshl_b32 s{S_T0k}, s{S_CI}, 3")
    e(f"s_lshl_b32 s{S_T1k}, s{S_BR}, 2")
    e(f"s_add_u32 s{S_T0k}, s{S_T0k}, s{S_T1k}")
    e(f"s_lshl_b32 s{S_T0k}, s{S_T0k}, 8")
    e(f"s_lshl_b32 s{S_T1k}, s{S_KQ}, 2")
    e(f"s_add_u32 s{S_T0k}, s{S_T0k}, s{S_T1k}")
    e(f"s_add_u32 s{S_T0k}, s{S_T0k}, 64")
    e(f"v_lshlrev_b32 v{V_FA2}, 8, v0")
    e(f"v_add_u32 v{V_FA2}, s{S_T0k}, v{V_FA2}")
    e(f"s_cmp_eq_u32 s{S_BR}, 1")
    e(f"s_cselect_b32 s{SRD_W}, s34, s24")
    e(f"s_cselect_b32 s{SRD_W+1}, s35, s25")
    e(f"s_and_b32 s{SRD_W+1}, s{SRD_W+1}, 0xffff")
    e(f"s_mov_b32 s{SRD_W+2}, {8<<20:#x}")
    e(f"s_mov_b32 s{SRD_W+3}, 0x20000")
    srd(e, SRD_A, 40, 41, 8 << 20)
    srd(e, SRD_OUT, 36, 37, 2 << 20)
    srd(e, SRD_P, 40, 41, 16 << 20, add=PART_OFF)
    e(f"s_lshl_b32 s{S_OOFF}, s{S_BR}, 22")
    e(f"s_lshl_b32 s{S_T0k}, s{S_MT}, 20")
    e(f"s_add_u32 s{S_OOFF}, s{S_OOFF}, s{S_T0k}")
    e(f"s_lshr_b32 s{S_T0k}, s{S_MS}, 1")
    e(f"s_lshl_b32 s{S_T0k}, s{S_T0k}, 19")
    e(f"s_add_u32 s{S_OOFF}, s{S_OOFF}, s{S_T0k}")
    e(f"s_lshl_b32 s{S_T0k}, s{S_KQ}, 17")
    e(f"s_add_u32 s{S_OOFF}, s{S_OOFF}, s{S_T0k}")
    e(f"s_and_b32 s{S_T0k}, s{S_MS}, 1")
    e(f"s_lshl_b32 s{S_T0k}, s{S_T0k}, 13")
    e(f"s_add_u32 s{S_OOFF}, s{S_OOFF}, s{S_T0k}")
    e(f"s_lshl_b32 s{S_T0k}, s{S_KH}, 12")
    e(f"s_add_u32 s{S_OOFF}, s{S_OOFF}, s{S_T0k}")
    e(f"s_lshl_b32 s{S_WOFF}, s{S_KQ}, 21")
    e(f"s_lshl_b32 s{S_T0k}, s{S_W}, 15")
    e(f"s_add_u32 s{S_WOFF}, s{S_WOFF}, s{S_T0k}")
    e(f"s_lshl_b32 s{S_T0k}, s{S_NT}, 8")
    e(f"s_add_u32 s{S_WOFF}, s{S_WOFF}, s{S_T0k}")
    e(f"s_lshl_b32 s{S_W4K}, s{S_W}, 12")
    e(f"s_lshl_b32 s{S_ROT}, s{S_MT}, 1")
    e(f"s_add_u32 s{S_ROT}, s{S_ROT}, s{S_NT}")
    e(f"v_lshrrev_b32 v{T0}, 4, v0")
    e(f"v_and_b32 v{T1}, 15, v0")
    e(f"v_lshlrev_b32 v{T2}, 2, v{T0}")
    e(f"v_xor_b32 v{T1}, v{T1}, v{T2}")
    e(f"v_lshlrev_b32 v{T1}, 4, v{T1}")
    e(f"v_lshlrev_b32 v{T2}, 11, v{T0}")
    e(f"v_add_u32 v{V_WD}, v{T1}, v{T2}")
    for q in range(1, 4):
        e(f"v_xor_b32 v{V_WD+q}, {16*q}, v{V_WD}")
        e(f"v_add_u32 v{V_WD+q}, {q*(8192-1024)}, v{V_WD+q}")
    e(f"v_lshrrev_b32 v{T3}, 5, v0")
    e(f"v_and_b32 v{T1}, 1, v{T0}")
    e(f"v_lshrrev_b32 v{T2}, 2, v0")
    e(f"v_and_b32 v{T2}, 3, v{T2}")
    e(f"v_and_b32 v{T4}, 1, v0")
    e(f"v_lshlrev_b32 v{T4}, 1, v{T4}")
    e(f"v_or_b32 v{T4}, v{T4}, v{T1}")
    e(f"v_lshlrev_b32 v{T4}, 4, v{T4}")
    e(f"v_lshrrev_b32 v{T5}, 1, v0")
    e(f"v_and_b32 v{T5}, 1, v{T5}")
    e(f"v_lshlrev_b32 v{T5}, 3, v{T5}")
    e(f"v_add_u32 v{T4}, v{T4}, v{T5}")
    e(f"v_lshlrev_b32 v{T5}, 6, v{T2}")
    e(f"v_add_u32 v{T4}, v{T4}, v{T5}")
    e(f"v_lshlrev_b32 v{T5}, 4, v{T3}")
    e(f"v_add_u32 v{T5}, v{T5}, v{T2}")
    e(f"v_lshlrev_b32 v{T5}, 8, v{T5}")
    e(f"v_add_u32 v{T4}, v{T4}, v{T5}")
    e(f"s_lshl_b32 s{S_T1k}, s{S_KH}, 14")
    e(f"v_add_u32 v{V_WR}, s{S_T1k}, v{T4}")
    for nt in range(4):
        for ee in range(2):
            for z in range(2):
                i = 4 * nt + 2 * ee + z
                if i:
                    e(f"v_xor_b32 v{V_WR+i}, {64*nt + 16*(2*ee+z) + (8*ee+4*z)*256}, v{V_WR}")
    e(f"s_lshl_b32 s{S_T0k}, s{S_W}, 13")
    e(f"v_add_u32 v{V_RW}, s{S_T0k}, v{V_L16}")
    e(f"s_xor_b32 s{S_T0k}, s{S_T0k}, {4*8192}")
    e(f"v_add_u32 v{V_RR}, s{S_T0k}, v{V_L16}")
    e(f"v_and_b32 v{V_OA}, 31, v0")
    e(f"v_lshlrev_b32 v{V_OA}, 12, v{V_OA}")
    e(f"v_lshlrev_b32 v{T4}, 5, v{T3}")
    e(f"v_add_u32 v{V_OA}, v{V_OA}, v{T4}")
    e(f"s_mov_b32 s{S_ORD}, 0")
    for i in range(8):
        e(f"s_add_u32 s{S_T0k}, s{S_ROT}, {i}")
        e(f"s_and_b32 s{S_T0k}, s{S_T0k}, 7")
        e(f"s_lshl_b32 s{S_T0k}, s{S_T0k}, {4*i}")
        e(f"s_or_b32 s{S_ORD}, s{S_ORD}, s{S_T0k}")
    e(f"s_cmp_lg_u32 s{S_W}, 0")
    e("s_cbranch_scc1 L_op_noep")
    e(f"buffer_load_dword v41, v{V_L4}, s[{SRD_F}:{SRD_F+3}], s{S_FL} offen sc1")
    e.label("L_op_noep")
    e("s_waitcnt vmcnt(0)")
    e("s_barrier")
    e(f"s_cmp_lg_u32 s{S_W}, 0")
    e("s_cbranch_scc1 L_op_w0done")
    e(f"s_mov_b32 s{S_CNT}, {SPIN}")
    e.label("L_op_cnt")
    e(f"v_readfirstlane_b32 s{S_T0k}, v{V_CN}")
    e(f"s_sub_u32 s{S_CNT}, s{S_CNT}, 1")
    e(f"s_and_b32 s{S_T0k}, s{S_T0k}, 255")
    e(f"s_cmp_eq_u32 s{S_T0k}, 0")
    e("s_cbranch_scc1 L_op_cntok")
    e(f"s_cmp_eq_u32 s{S_CNT}, 0")
    e("s_cbranch_scc1 L_op_cntok")
    e("s_sleep 16")
    e(f"v_mov_b32 v{T0}, 0")
    e(f"buffer_load_dword v{V_CN}, v{T0}, s[{SRD_D}:{SRD_D+3}], 0 offen sc1")
    e("s_waitcnt vmcnt(0)")
    e("s_branch L_op_cnt")
    e.label("L_op_cntok")
    e("s_mov_b64 exec, 0xffff")
    e(f"buffer_store_dword v{V_ONE}, v{V_FA}, s[{SRD_F}:{SRD_F+3}], 0 offen sc1")
    e("s_mov_b64 exec, -1")

    def poll(lab):
        e(f"buffer_load_dword v{T2}, v{V_L4}, s[{SRD_F}:{SRD_F+3}], s{S_FL} offen sc1")
        e("s_waitcnt vmcnt(0)")
        e(f"v_cmp_eq_u32 vcc, 1, v{T2}")
        e("s_nop 3")
        e(f"s_lshr_b32 s{S_T0k}, vcc_lo, 8")
        e(f"s_and_b32 s{S_T0k}, s{S_T0k}, vcc_lo")
        e(f"s_and_b32 s{S_T0k}, s{S_T0k}, 0xff")
        e(f"s_and_b32 s{S_MASK}, vcc_lo, 0xf0000")
        e(f"s_or_b32 s{S_MASK}, s{S_MASK}, s{S_T0k}")

    e(f"v_cmp_eq_u32 vcc, 1, v41")
    e("s_nop 3")
    e(f"s_lshr_b32 s{S_T0k}, vcc_lo, 8")
    e(f"s_and_b32 s{S_T0k}, s{S_T0k}, vcc_lo")
    e(f"s_and_b32 s{S_MASK}, s{S_T0k}, 0xff")
    e.label("L_op_w0done")

    wtok, otok = {}, {}

    def w_pieces(s):
        slot = (s % NSS) * 32768

        def p0():
            e(f"s_bfe_u32 s{S_T1k}, s{S_ORD}, {(4 << 16) | (4 * s):#x}")
            e(f"s_add_u32 m0, s{S_W4K}, {slot}")
            e(f"s_lshl_b32 s{S_T1k}, s{S_T1k}, 18")
            e(f"s_add_u32 s{S_T1k}, s{S_T1k}, s{S_WOFF}")
            e.vmem(f"buffer_load_dwordx4 v{V_WD}, s[{SRD_W}:{SRD_W+3}], s{S_T1k} offen{NT_WO} lds")
        ps = [p0]
        for q in range(1, 4):
            def pq(q=q):
                wtok[s] = e.vmem(f"buffer_load_dwordx4 v{V_WD+q}, s[{SRD_W}:{SRD_W+3}], s{S_T1k} offen offset:{q*1024}{NT_WO} lds")
            ps.append(pq)
        return ps

    def o_pieces(s):
        fo = FO + 16 * (s % 3)

        def p0():
            e(f"s_bfe_u32 s{S_T0k}, s{S_ORD}, {(4 << 16) | (4 * s):#x}")
            e(f"s_lshl_b32 s{S_T0k}, s{S_T0k}, 14")
            e(f"s_add_u32 s{S_T0k}, s{S_T0k}, s{S_OOFF}")
            e.vmem(f"buffer_load_dwordx4 {vr(fo,4)}, v{V_L16}, s[{SRD_A}:{SRD_A+3}], s{S_T0k} offen{NT_OLD}")
        ps = [p0]
        for q in range(1, 4):
            def pq(q=q):
                otok[s] = e.vmem(f"buffer_load_dwordx4 {vr(fo+4*q,4)}, v{V_L16}, s[{SRD_A}:{SRD_A+3}], s{S_T0k} offen offset:{q*1024}{NT_OLD}")
            ps.append(pq)
        return ps

    page = [0]

    def set_page(p):
        if p != page[0]:
            d = (p - page[0]) * 65536
            for i in range(16):
                e(f"v_add_u32 v{V_WR+i}, {d & 0xffffffff:#x}, v{V_WR+i}")
            page[0] = p

    rbuf = {}
    nb = [0]

    def reads(s, q):
        b = nb[0] % 3
        nb[0] += 1
        rbuf[(s, q)] = b
        fb = FA + 16 * b
        off = ((s % NSS) * 32768 & 0xffff) + (q >> 1) * 8192
        ee = q & 1
        t = None
        for nt in range(4):
            for z in range(2):
                t = e.lds(f"ds_read_b64_tr_b16 {vr(fb+4*nt+2*z,2)}, v{V_WR+4*nt+2*ee+z} offset:{off}")
        return t

    def mf(s, q, nt):
        fb = FA + 16 * rbuf[(s, q)]
        fo = FO + 16 * (s % 3)
        c = "0" if (s == 0 and q == 0) else vr(ACC + 16 * nt, 16)
        e(f"v_mfma_f32_32x32x16_bf16 {vr(ACC+16*nt,16)}, {vr(fb+4*nt,4)}, {vr(fo+4*q,4)}, {c}")

    def need(pos, lab):
        e(f"s_cmp_lg_u32 s{S_W}, 0")
        e(f"s_cbranch_scc1 {lab}r")
        e(f"s_mov_b32 s{S_CNT}, {SPIN}")
        e.label(f"{lab}c")
        e(f"s_bfe_u32 s{S_T2k}, s{S_ORD}, {(4 << 16) | (4 * pos):#x}")
        e(f"s_bitcmp1_b32 s{S_MASK}, s{S_T2k}")
        e(f"s_cbranch_scc1 {lab}r")
        e(f"s_sub_u32 s{S_CNT}, s{S_CNT}, 1")
        e(f"s_cmp_eq_u32 s{S_CNT}, 0")
        e(f"s_cbranch_scc1 {lab}r")
        poll(lab)
        e(f"s_branch {lab}c")
        e.label(f"{lab}r")

    NPW = int(OPT.get("npw", "2"))
    for sw in range(NPW):
        for p_ in w_pieces(sw):
            p_()
    need(0, "L_op_n0")
    need(1, "L_op_n1")
    e("s_barrier")
    stamp(e, 62, 40)
    for p_ in o_pieces(0) + o_pieces(1):
        p_()
    for sw in range(NPW, 4):
        for p_ in w_pieces(sw):
            p_()
    for s in range(8):
        e.comment(f"oproj step {s}")
        set_page(((s % NSS) * 32768) >> 16)
        if s + 2 < 8:
            e(f"s_cmp_lg_u32 s{S_W}, 0")
            e(f"s_cbranch_scc1 L_op_rdy{s}")
            e(f"s_mov_b32 s{S_CNT}, {SPIN}")
            e.label(f"L_op_chk{s}")
            e(f"s_bfe_u32 s{S_T2k}, s{S_ORD}, {(4 << 16) | (4 * (s + 2)):#x}")
            e(f"s_bitcmp1_b32 s{S_MASK}, s{S_T2k}")
            e(f"s_cbranch_scc1 L_op_rdy{s}")
            e(f"s_sub_u32 s{S_CNT}, s{S_CNT}, 1")
            e(f"s_cmp_eq_u32 s{S_CNT}, 0")
            e(f"s_cbranch_scc1 L_op_rdy{s}")
            poll(f"c{s}")
            e(f"s_branch L_op_chk{s}")
            e.label(f"L_op_rdy{s}")
        e.wait_vm(max(wtok[s], otok[s]))
        e("s_barrier")
        pcs = (o_pieces(s + 2) if s + 2 < 8 else []) + (w_pieces(s + 4) if s + 4 < 8 else [])
        pcs += [lambda: None] * (8 - len(pcs))
        rt = {}
        rt[0] = reads(s, 0)
        if s > 0:
            mf(s - 1, 3, 0)
            mf(s - 1, 3, 1)
        rt[1] = reads(s, 1)
        if s > 0:
            mf(s - 1, 3, 2)
            mf(s - 1, 3, 3)
        k = 0
        for q in range(3):
            e.wait_lds(rt[q])
            for nt in range(4):
                mf(s, q, nt)
                if nt == 0 and q + 2 < 4:
                    rt[q + 2] = reads(s, q + 2)
                elif nt > 0 and k < 8:
                    pcs[k]()
                    k += 1
        e.wait_lds(rt[3])
        if STAMP == 3:
            stamp(e, 1 + s, 40)
    for nt in range(4):
        mf(7, 3, nt)
    e("s_nop 15")
    e("s_nop 3")
    e("s_barrier")
    e(f"s_cmp_eq_u32 s{S_KH}, 1")
    e("s_cbranch_scc1 L_op_kh1")
    for k in range(8):
        e(f"ds_write_b128 v{V_RW}, {vr(ACC+32+4*k,4)} offset:{k*1024}")
    e("s_branch L_op_khd")
    e.label("L_op_kh1")
    for k in range(8):
        e(f"ds_write_b128 v{V_RW}, {vr(ACC+4*k,4)} offset:{k*1024}")
    e("s_waitcnt lgkmcnt(0)")
    for k in range(32):
        e(f"v_mov_b32 v{ACC+k}, v{ACC+32+k}")
    e.label("L_op_khd")
    e(f"s_lshl_b32 s{S_T2k}, s{S_BR}, 5")
    e(f"s_add_u32 s{S_T2k}, s{S_T2k}, s{S_CI}")
    e(f"s_lshl_b32 s{S_T2k}, s{S_T2k}, 18")
    e(f"s_lshl_b32 s{S_T0k}, s{S_MS}, 16")
    e(f"s_add_u32 s{S_T0k}, s{S_T0k}, s{S_T2k}")
    e(f"s_lshl_b32 s{S_T1k}, s{S_KQ}, 14")
    e(f"s_add_u32 s{S_T0k}, s{S_T0k}, s{S_T1k}")
    e(f"s_lshl_b32 s{S_T1k}, s{S_KH}, 13")
    e(f"s_add_u32 s{S_T0k}, s{S_T0k}, s{S_T1k}")
    e(f"s_add_u32 s{S_T1k}, s{S_T0k}, 4096")
    e("s_waitcnt lgkmcnt(0)")
    e("s_barrier")
    for k in range(8):
        e(f"ds_read_b128 {vr(FA+4*k,4)}, v{V_RR} offset:{k*1024}")
    for k in range(8):
        e(f"s_waitcnt lgkmcnt({7-k})")
        for r in range(4):
            e(f"v_add_f32 v{ACC+4*k+r}, v{ACC+4*k+r}, v{FA+4*k+r}")
        so = S_T0k if k < 4 else S_T1k
        e(f"buffer_store_dwordx4 {vr(ACC+4*k,4)}, v{V_L16}, s[{SRD_P}:{SRD_P+3}], s{so} offen offset:{(k&3)*1024} sc1")
    e(f"s_lshl_b32 s{S_T0k}, s{S_KQ}, 16")
    e(f"s_add_u32 s{S_T2k}, s{S_T2k}, s{S_T0k}")
    e(f"s_lshl_b32 s{S_T0k}, s{S_W}, 11")
    e(f"s_add_u32 s{S_T2k}, s{S_T2k}, s{S_T0k}")
    e(f"s_mov_b32 s{S_OOFF}, s{S_T2k}")
    e(f"s_lshl_b32 s{S_WOFF}, s{S_MT}, 19")
    e(f"s_lshl_b32 s{S_T0k}, s{S_KQ}, 17")
    e(f"s_add_u32 s{S_WOFF}, s{S_WOFF}, s{S_T0k}")
    e(f"s_lshl_b32 s{S_T0k}, s{S_BR}, 11")
    e(f"s_add_u32 s{S_WOFF}, s{S_WOFF}, s{S_T0k}")
    e(f"s_lshl_b32 s{S_T0k}, s{S_NT}, 8")
    e(f"s_add_u32 s{S_WOFF}, s{S_WOFF}, s{S_T0k}")
    e(f"s_lshr_b32 s{S_T0k}, s{S_W}, 1")
    e(f"s_lshl_b32 s{S_T0k}, s{S_T0k}, 6")
    e(f"s_add_u32 s{S_WOFF}, s{S_WOFF}, s{S_T0k}")
    e(f"s_and_b32 s{S_T0k}, s{S_W}, 1")
    e(f"s_lshl_b32 s{S_T0k}, s{S_T0k}, 4")
    e(f"s_add_u32 s{S_WOFF}, s{S_WOFF}, s{S_T0k}")
    e("s_waitcnt vmcnt(0)")
    e("s_barrier")
    stamp(e, 61, 40)
    e(f"s_cmp_lg_u32 s{S_W}, 0")
    e("s_cbranch_scc1 L_op_fin")
    e("s_mov_b64 exec, 0xf")
    e(f"buffer_store_dword v{V_ONE}, v{V_FA2}, s[{SRD_F}:{SRD_F+3}], 0 offen sc1")
    e("s_mov_b64 exec, -1")
    e(f"s_mov_b32 s{S_CNT}, {SPIN}")
    e.label("L_op_poll2")
    poll("p2")
    e(f"s_lshr_b32 s{S_T0k}, s{S_MASK}, 16")
    e(f"s_cmp_eq_u32 s{S_T0k}, 15")
    e("s_cbranch_scc1 L_op_fin")
    e(f"s_sub_u32 s{S_CNT}, s{S_CNT}, 1")
    e(f"s_cmp_eq_u32 s{S_CNT}, 0")
    e("s_cbranch_scc1 L_op_fin")
    e("s_sleep 2")
    e("s_branch L_op_poll2")
    e.label("L_op_fin")
    e("s_barrier")
    for src in range(4):
        for q in range(2):
            e(f"buffer_load_dwordx4 {vr(FA+8*src+4*q,4)}, v{V_L16}, s[{SRD_P}:{SRD_P+3}], s{S_OOFF} offen offset:{q*1024} sc1")
        if src < 3:
            e(f"s_add_u32 s{S_OOFF}, s{S_OOFF}, 16384")
    e("s_waitcnt vmcnt(0)")
    for r in range(8):
        e(f"v_add_f32 v{FA+r}, v{FA+r}, v{FA+8+r}")
        e(f"v_add_f32 v{FA+16+r}, v{FA+16+r}, v{FA+24+r}")
    for r in range(8):
        e(f"v_add_f32 v{FA+r}, v{FA+r}, v{FA+16+r}")
    for k in range(4):
        e(f"v_cvt_pk_bf16_f32 v{FA+32+k}, v{FA+2*k}, v{FA+2*k+1}")
    e(f"buffer_store_dwordx4 {vr(FA+32,4)}, v{V_OA}, s[{SRD_OUT}:{SRD_OUT+3}], s{S_WOFF} offen")
    if STAMP:
        e("s_waitcnt vmcnt(0)")
    stamp(e, 63, 40)


e = Em()
emit_k1(e)
txt = HEADER + e.text() + '.section .rodata,"a"\n.p2align 6\n' + kernel_desc("concat_heads__gqa_block_cached__mha_block_cached__near_ridge_kernel")
open(OUT, "w").write(txt)
print("wrote", OUT, len(txt), "bytes")
```
